```python
import torch

def _softmax(x, axis=-1):
    return torch.softmax(x, dim=axis)
def _gelu(x):
    return torch.nn.functional.gelu(x, approximate="tanh")
def _silu(x):
    return torch.nn.functional.silu(x)
def _sigmoid(x):
    return torch.sigmoid(x)
def _layernorm(x, axis=-1, eps=1e-5):
    m = x.mean(dim=axis, keepdim=True)
    v = x.var(dim=axis, keepdim=True, unbiased=False)
    return (x - m) / torch.sqrt(v + eps)
def _scatter_add(tgt, idx, src, axis=0):
    return tgt.clone().index_add_(axis, idx, src)
def _segment_sum(src, seg, n):
    out = torch.zeros((n,) + src.shape[1:], dtype=src.dtype)
    return out.index_add_(0, seg, src)
def _pad(x, pw):
    flat = tuple(v for pair in reversed(pw) for v in pair)
    return torch.nn.functional.pad(x, flat)

kernel_name = 'recurrent_scan__ssm_conv_s4__glu_gated_glu__prompt'

def setup_inputs():

    _w = (lambda a: (lambda t: t.to(torch.bfloat16) if t.is_floating_point() else t)(torch.as_tensor(a)))
    def _A_setup():
        B, L, D, N = 1, 2048, 512, 128
        A_re = -(lambda _x: torch.exp(torch.as_tensor(_x)))((lambda *s: torch.randn(*s, dtype=torch.bfloat16) * 6.4)(D, N))
        A_im = torch.pi * (lambda *s: torch.randn(*s, dtype=torch.bfloat16) * 0.05)(D, N)
        B_re = (lambda *s: torch.randn(*s, dtype=torch.bfloat16) * 0.1)(D, N)
        B_im = (lambda *s: torch.randn(*s, dtype=torch.bfloat16) * 0.1)(D, N)
        C_re = (lambda *s: torch.randn(*s, dtype=torch.bfloat16) * 0.1)(D, N)
        C_im = (lambda *s: torch.randn(*s, dtype=torch.bfloat16) * 0.1)(D, N)
        log_dt = (lambda *s: torch.randn(*s, dtype=torch.bfloat16) * 0.05)(D) * 0.5 - 4.0
        Dskip = (lambda *s: torch.randn(*s, dtype=torch.bfloat16) * 0.05)(D)
        return {
            "u": _w((lambda *s: torch.randn(*s, dtype=torch.bfloat16) * 0.05)(B, L, D)),
            "A_re": _w(A_re),
            "A_im": _w(A_im),
            "B_re": _w(B_re),
            "B_im": _w(B_im),
            "C_re": _w(C_re),
            "C_im": _w(C_im),
            "log_dt": _w(log_dt),
            "Dskip": _w(Dskip),
        }
    _A_in = _A_setup()

    def _B_setup():
        B, S, D, F = 1, 2048, 512, 1376
        return {
            "x": _w((lambda *s: torch.randn(*s, dtype=torch.bfloat16) * 0.05)(B, S, D)),
            "w_gate": _w((lambda *s: torch.randn(*s, dtype=torch.bfloat16) * 0.05)(D, F)),
            "w_up": _w((lambda *s: torch.randn(*s, dtype=torch.bfloat16) * 0.05)(D, F)),
            "w_down": _w((lambda *s: torch.randn(*s, dtype=torch.bfloat16) * 0.05)(F, D)),
        }
    _B_in = _B_setup()

    return {
        "A_u": _A_in["u"],
        "A_A_re": _A_in["A_re"],
        "A_A_im": _A_in["A_im"],
        "A_B_re": _A_in["B_re"],
        "A_B_im": _A_in["B_im"],
        "A_C_re": _A_in["C_re"],
        "A_C_im": _A_in["C_im"],
        "A_log_dt": _A_in["log_dt"],
        "A_Dskip": _A_in["Dskip"],
        "B_x": _B_in["x"],
        "B_w_gate": _B_in["w_gate"],
        "B_w_up": _B_in["w_up"],
        "B_w_down": _B_in["w_down"],
    }

def reference(A_u, A_A_re, A_A_im, A_B_re, A_B_im, A_C_re, A_C_im, A_log_dt, A_Dskip, B_x, B_w_gate, B_w_up, B_w_down):
    def _A_ref(u, A_re, A_im, B_re, B_im, C_re, C_im, log_dt, Dskip):
        Bsz, L, D = u.shape
        dt = torch.exp(log_dt)[:, None]
        A = A_re + 1j * A_im
        Bc = B_re + 1j * B_im
        Cc = C_re + 1j * C_im
        logdA = dt * A
        dB = dt * Bc
        l = (lambda x, dt: x.to(dt))(torch.arange(L), A_re.dtype)
        P = torch.exp(logdA[:, :, None] * l[None, None, :])
        K = torch.einsum("dn,dnl,dn->dl", Cc, P, dB).real
        L2 = 2 * L
        Kp = _pad(K, ((0, 0), (0, L)))
        up = (lambda x, *d: x.permute(*d))(u, 0, 2, 1)
        up = _pad(up, ((0, 0), (0, 0), (0, L)))
        Kf = (lambda x, axes=(-2,-1): torch.fft.rfft2(x.float(), dim=axes))(Kp[:, None, :], axes=(-2, -1))
        Uf = (lambda x, axes=(-2,-1): torch.fft.rfft2(x.float(), dim=axes))(up[:, :, None, :], axes=(-2, -1))
        Yf = Uf * Kf[None, :, :, :]
        y = (lambda x, s, axes=(-2,-1): torch.fft.irfft2(x, s=s, dim=axes).to(torch.bfloat16))(Yf, (1, L2), axes=(-2, -1))[:, :, 0, :L]
        y = (lambda x, *d: x.permute(*d))(y, 0, 2, 1) + u * Dskip[None, None, :]
        return y

    def _B_ref(x, w_gate, w_up, w_down):
        g = torch.einsum("bsd,df->bsf", x, w_gate)
        u = torch.einsum("bsd,df->bsf", x, w_up)
        h = _sigmoid(g) * u
        return torch.einsum("bsf,fd->bsd", h, w_down)

    x = A_u
    xn = _layernorm(x, axis=-1)
    s = _A_ref(xn, A_A_re, A_A_im, A_B_re, A_B_im, A_C_re, A_C_im, A_log_dt, A_Dskip)
    g = _silu(_B_ref(xn, B_w_gate, B_w_up, B_w_down))
    return x + s * g
```

```python
import re
class Asm:
    def __init__(self):
        self.lines = []
        self.uid = 0
    def __call__(self, s):
        for l in s.split("\n"):
            l = l.strip()
            if l: self.lines.append("    " + l if not l.endswith(":") else l)
    def label(self, l): self.lines.append(l + ":")
    def new(self, base):
        self.uid += 1
        return f"{base}_{self.uid}"
    def text(self): return "\n".join(self.lines) + "\n"

def v(a, n=1): return f"v{a}" if n == 1 else f"v[{a}:{a+n-1}]"
def s(a, n=1): return f"s{a}" if n == 1 else f"s[{a}:{a+n-1}]"

_REG = re.compile(r"^-?\|?(v|s|a)(?:(\d+)|\[(\d+):(\d+)\])\|?$")
def regs(tok):
    tok = tok.strip()
    if tok in ("vcc",): return {("s", 106), ("s", 107)}
    if tok == "vcc_lo": return {("s", 106)}
    if tok == "vcc_hi": return {("s", 107)}
    if tok == "m0": return {("s", 124)}
    if tok == "exec": return {("s", 126), ("s", 127)}
    m = _REG.match(tok.replace("abs(", "").replace(")", "").replace("neg(", ""))
    if not m: return set()
    k = m.group(1)
    if m.group(2) is not None: return {(k, int(m.group(2)))}
    return {(k, i) for i in range(int(m.group(3)), int(m.group(4)) + 1)}

TRANS = ("v_exp_f32", "v_log_f32", "v_rcp_f32", "v_rsq_f32", "v_sqrt_f32", "v_sin_f32", "v_cos_f32")
class I:
    def __init__(self, line, idx):
        self.line = line; self.idx = idx
        t = line.split(";")[0].strip()
        p = t.split(None, 1)
        self.op = p[0]
        rest = p[1] if len(p) > 1 else ""
        ops = []; cur = ""; dep = 0
        for ch in rest:
            if ch == "[": dep += 1
            if ch == "]": dep -= 1
            if ch == "," and dep == 0: ops.append(cur.strip()); cur = ""
            else: cur += ch
        if cur.strip(): ops.append(cur.strip())
        self.mods = ""
        if ops:
            q = ops[-1].split(None, 1); ops[-1] = q[0]; self.mods = q[1] if len(q) > 1 else ""
        self.ops = ops
        op = self.op
        base = re.sub(r"_(e32|e64|dpp|sdwa)$", "", op)
        self.base = base
        self.mfma = op.startswith("v_mfma")
        self.valu = op.startswith("v_") and not self.mfma
        self.trans = base in TRANS
        self.dot = op.startswith("v_dot")
        self.dpp = op.endswith("_dpp") or "row_" in self.mods or "quad_perm" in self.mods
        self.perml = op.startswith("v_permlane")
        self.vmem = op.startswith(("buffer_", "global_", "flat_"))
        self.ds = op.startswith("ds_")
        self.salu = op.startswith("s_")
        R = [regs(o) for o in ops]
        self.w = set(); self.r = set(); self.srcC = set(); self.srcAB = set(); self.sdata = set()
        if self.mfma:
            self.w = R[0]; self.srcAB = R[1] | R[2]; self.srcC = R[3]; self.r = self.srcAB | self.srcC
            self.passes = 8 if "32x32x16" in op else 4 if "16x16x32" in op else 16
        elif self.valu:
            nd = 1
            if base in ("v_add_co_u32", "v_sub_co_u32", "v_addc_co_u32", "v_mad_u64_u32", "v_div_scale_f32"): nd = 2
            for x in R[:nd]: self.w |= x
            for x in R[nd:]: self.r |= x
            if self.perml: self.w = R[0] | R[1]; self.r = R[0] | R[1]
            if base in ("v_fmac_f32", "v_dot2c_f32_bf16", "v_writelane_b32", "v_pk_fmac_f16") or (self.dpp and "bound_ctrl" not in self.mods): self.r |= R[0]
            if base.startswith("v_cmpx"): self.w |= regs("exec")
            if base == "v_cndmask_b32" and len(ops) == 3: self.r |= regs("vcc")
        elif self.vmem:
            st = "store" in op or "atomic" in op
            lds = " lds" in (" " + self.mods)
            self.ldsdma = lds or "load_lds" in op
            if op.startswith("buffer_"):
                if lds:
                    for x in R: self.r |= x
                elif st:
                    for x in R: self.r |= x
                    self.sdata = R[0]
                else:
                    self.w = R[0]
                    for x in R[1:]: self.r |= x
            else:
                if st:
                    for x in R: self.r |= x
                    self.sdata = R[1]
                elif self.ldsdma:
                    for x in R: self.r |= x
                else:
                    self.w = R[0]
                    for x in R[1:]: self.r |= x
            self.wide = "x3" in op or "x4" in op
        elif self.ds:
            if "read" in op or "permute" in op or "swizzle" in op or "rtn" in op:
                self.w = R[0]
                for x in R[1:]: self.r |= x
            else:
                for x in R: self.r |= x
        elif self.salu:
            if op.startswith(("s_cmp", "s_cbranch", "s_branch", "s_waitcnt", "s_nop", "s_barrier", "s_sleep", "s_setprio", "s_endpgm", "s_bitcmp")):
                for x in R: self.r |= x
            else:
                if R: self.w = R[0]
                for x in R[1:]: self.r |= x
                if "saveexec" in op: self.w |= regs("exec")
        self.states = 1
        if op == "s_nop": self.states = int(ops[0], 0) + 1

def need(p, c):
    n = 0
    vw = {x for x in p.w if x[0] in "va"}; sw = {x for x in p.w if x[0] == "s"}
    if p.valu:
        if c.mfma and vw & c.r: n = max(n, 3 if p.dot else 2)
        if p.trans and c.valu and not c.trans and vw & c.r: n = max(n, 1)
        if p.trans and (c.vmem or c.ds) and vw & c.r: n = max(n, 1)
        if (c.perml or c.dpp) and vw & c.r: n = max(n, 2)
        if c.base in ("v_readlane_b32", "v_readfirstlane_b32") and vw & c.r: n = max(n, 1)
        if c.valu and sw & c.r:
            n = max(n, 4 if c.base in ("v_readlane_b32", "v_writelane_b32") else 2)
        if c.vmem and sw & c.r: n = max(n, 5)
        if c.salu and sw & c.r: n = max(n, 1)
        if p.dot and (c.valu or c.vmem or c.ds) and vw & (c.r | c.w):
            if c.op == p.op and len(c.ops) >= 3:
                ab = regs(c.ops[1]) | regs(c.ops[2])
                n = max(n, 3 if vw & ab else 0)
            else: n = max(n, 3)
        if regs("exec") & p.w:
            if c.mfma or c.perml or c.base in ("v_readlane_b32", "v_readfirstlane_b32", "v_writelane_b32"): n = max(n, 4)
            if c.dpp: n = max(n, 5)
        if ("op_sel" in p.mods and not p.op.startswith("v_pk") or p.op.endswith("sdwa")) and c.valu and vw & (c.r | c.w): n = max(n, 1)
    if p.mfma:
        P = p.passes
        if c.mfma:
            if vw & c.srcAB: n = max(n, {4: 8, 8: 12, 16: 20}[P])
            if vw & c.srcC:
                if not (p.w == c.srcC and p.passes == c.passes): n = max(n, {4: 6, 8: 10, 16: 18}[P])
            elif vw & c.w: n = max(n, {4: 6, 8: 10, 16: 18}[P])
        elif (c.valu and vw & (c.r | c.w)) or ((c.vmem or c.ds) and vw & (c.r | c.w)): n = max(n, {4: 8, 8: 12, 16: 20}[P])
        if c.valu and p.srcC & c.w: n = max(n, {4: 3, 8: 7, 16: 15}[P])
    if p.salu and ("s", 124) in p.w and c.vmem and getattr(c, "ldsdma", False): n = max(n, 1)
    if p.vmem and p.sdata and p.wide and p.sdata & c.w: n = max(n, 2 if c.valu else 1)
    if p.ds and "write" in p.op and ("b128" in p.op or "b96" in p.op) and False: pass
    return n

def check(text, verbose=True):
    ins = []
    for k, l in enumerate(text.split("\n")):
        t = l.split(";")[0].strip()
        if not t or t.endswith(":") or t.startswith("."):
            continue
        ins.append(I(t, k + 1))
    bad = 0
    for j, c in enumerate(ins):
        dist = 0
        for i in range(j - 1, max(-1, j - 22), -1):
            p = ins[i]
            if p.op in ("s_branch", "s_endpgm", "s_setpc_b64"): break
            n = need(p, c)
            if n > dist:
                bad += 1
                if verbose: print(f"HAZARD need {n} have {dist}: line {p.idx}: {p.line}  ->  line {c.idx}: {c.line}")
            dist += p.states
            if dist >= 21: break
    return bad
```

```python
from asmlib import *
import struct
def fl(x): return "0x%08x" % struct.unpack("<I", struct.pack("<f", x))[0]
LOG2E = 1.4426950408889634

WS_U  = 0x100000; UBLK = 8320
WS_H  = 0x400000
WS_S  = 0xA00000
WS_SIZE = 0x10000000
WSLOT = 12352; NWS = 5; UPOFF = 6176
XSLOT = 16384; NXS = 3
L_W = 0
L_X = L_W + WSLOT * NWS
L_RINGEND = L_X + XSLOT * NXS
KCS = 4160; KROW = 528
L_K = [L_RINGEND, L_RINGEND + 16896]
L_U = [L_RINGEND + 2 * 16896, L_RINGEND + 2 * 16896 + 4608]
L_SSMEND = L_U[1] + 4608
L_ST = L_SSMEND
L_CTL = L_ST + 8192
L_CS = L_CTL + 256
LDS_TOTAL = 163840
sX, sWG, sWU, sWD, sWS, sOUT = 8, 12, 16, 20, 24, 28
KA = 64
P_X, P_ARE, P_AIM, P_BRE, P_BIM, P_CRE, P_CIM, P_LDT, P_DSK, P_BX, P_WG, P_WU, P_WD, P_OUT, P_DBG, P_WS = [KA + 2 * i for i in range(16)]
sWAVE = 3
vLANE = 1

def prologue(A, nwg=256, done="L_done"):
    A(f"s_load_dwordx16 s[64:79], s[0:1], 0")
    A(f"s_load_dwordx16 s[80:95], s[0:1], 64")
    A(f"s_cmp_ge_u32 s2, {nwg}")
    A(f"s_cbranch_scc1 {done}")
    A(f"v_lshrrev_b32 v2, 6, v0")
    A(f"v_and_b32 {v(vLANE)}, 63, v0")
    A(f"v_readfirstlane_b32 {s(sWAVE)}, v2")
    for srd, sz in ((sX, 0x200000), (sWG, 1409024), (sWU, 1409024), (sWD, 1409024), (sWS, WS_SIZE), (sOUT, 0x200000)):
        A(f"s_mov_b32 {s(srd+2)}, {sz}")
        A(f"s_mov_b32 {s(srd+3)}, 0x20000")
    A("s_waitcnt lgkmcnt(0)")
    for srd, p in ((sX, P_X), (sWG, P_WG), (sWU, P_WU), (sWD, P_WD), (sWS, P_WS), (sOUT, P_OUT)):
        A(f"s_mov_b64 {s(srd,2)}, {s(p,2)}")

def ln_loads(A, sB, X=16, vOff=2, sT=32):
    A(f"v_lshlrev_b32 {v(vOff)}, 4, {v(vLANE)}")
    A(f"s_lshl_b32 {s(sT)}, {s(sB)}, 13")
    A(f"s_add_u32 {s(sT+1)}, {s(sT)}, 4096")
    for r in range(8):
        A(f"buffer_load_dwordx4 {v(X+4*r,4)}, {v(vOff)}, {s(sX,4)}, {s(sT + r//4)} offen offset:{(r%4)*1024}")

def reduce8(A, S):
    A("s_nop 2")
    for i in range(4): A(f"v_permlane32_swap_b32 {v(S+i)}, {v(S+i+4)}")
    for i in range(4): A(f"v_add_f32 {v(S+i)}, {v(S+i)}, {v(S+i+4)}")
    A("s_nop 0")
    for i in range(2): A(f"v_permlane16_swap_b32 {v(S+i)}, {v(S+i+2)}")
    for i in range(2): A(f"v_add_f32 {v(S+i)}, {v(S+i)}, {v(S+i+2)}")
    for k in (8, 4, 2, 1):
        A("s_nop 0")
        for i in range(2): A(f"v_add_f32_dpp {v(S+i)}, {v(S+i)}, {v(S+i)} row_ror:{k} row_mask:0xf bank_mask:0xf")

def ln_compute(A, sB, sc, X=16, D=48, T=112, vOff=2, sM=36, sT=32, extra_vm=0):
    S = T; ONE = T + 8; LO = T + 9; HI = T + 10; MU = T + 12; M = T + 14; Q = X
    A(f"v_mov_b32 {v(ONE)}, 0x3f803f80")
    A(f"v_mov_b32 {v(LO)}, 0x3f80")
    A(f"v_mov_b32 {v(HI)}, 0x3f800000")
    for q in range(4):
        for r in range(8):
            if q == 0: A(f"s_waitcnt vmcnt({7-r+extra_vm})")
            A(f"v_dot2_f32_bf16 {v(S+r)}, {v(X+4*r+q)}, {v(ONE)}, {'0' if q == 0 else v(S+r)}")
    reduce8(A, S)
    for i in range(2): A(f"v_mul_f32 {v(MU+i)}, {fl(1/512)}, {v(S+i)}")
    A(f"v_cvt_pk_bf16_f32 {v(S+2)}, {v(MU)}, {v(MU+1)}")
    A(f"v_lshlrev_b32 {v(M)}, 16, {v(S+2)}")
    A(f"v_and_b32 {v(M+1)}, 0xffff0000, {v(S+2)}")
    for i in range(2): A(f"v_xor_b32 {v(S+4+i)}, 0x80000000, {v(M+i)}")
    A("s_nop 0")
    for r in range(8): A(f"v_readlane_b32 {s(sM+r)}, {v(S+4+(r&1))}, {16*(r>>1)}")
    for i in range(2): A(f"v_sub_f32 {v(MU+i)}, {v(MU+i)}, {v(M+i)}")
    for r in range(8):
        for q in range(4):
            A(f"v_dot2_f32_bf16 {v(D+8*r+2*q)}, {v(X+4*r+q)}, {v(LO)}, {s(sM+r)}")
            A(f"v_dot2_f32_bf16 {v(D+8*r+2*q+1)}, {v(X+4*r+q)}, {v(HI)}, {s(sM+r)}")
    for q in range(4):
        for r in range(8):
            d = v(D+8*r+2*q, 2)
            if q == 0: A(f"v_pk_mul_f32 {v(Q+2*r,2)}, {d}, {d}")
            else: A(f"v_pk_fma_f32 {v(Q+2*r,2)}, {d}, {d}, {v(Q+2*r,2)}")
    for r in range(8): A(f"v_add_f32 {v(S+r)}, {v(Q+2*r)}, {v(Q+2*r+1)}")
    reduce8(A, S)
    for i in range(2): A(f"v_mul_f32 {v(S+i)}, {fl(1/512)}, {v(S+i)}")
    for i in range(2): A(f"v_fma_f32 {v(S+i)}, -{v(MU+i)}, {v(MU+i)}, {v(S+i)}")
    for i in range(2): A(f"v_max_f32 {v(S+i)}, 0, {v(S+i)}")
    def rb2():
        A(f"v_cvt_pk_bf16_f32 {v(S+2)}, {v(S)}, {v(S+1)}")
        A(f"v_lshlrev_b32 {v(S)}, 16, {v(S+2)}")
        A(f"v_and_b32 {v(S+1)}, 0xffff0000, {v(S+2)}")
    rb2()
    for i in range(2): A(f"v_add_f32 {v(S+i)}, {fl(1e-5)}, {v(S+i)}")
    rb2()
    for i in range(2): A(f"v_sqrt_f32 {v(S+i)}, {v(S+i)}")
    A("s_nop 0")
    rb2()
    A(f"v_rcp_f32 {v(S+5)}, {v(S)}")
    A(f"v_rcp_f32 {v(S+7)}, {v(S+1)}")
    A(f"v_mov_b32 {v(S+4)}, {v(M)}")
    A(f"v_mov_b32 {v(S+6)}, {v(M+1)}")
    for r in range(8): A(f"v_readlane_b32 {s(sM+r)}, {v(S+5+2*(r&1))}, {16*(r>>1)}")
    A(f"s_mul_i32 {s(sT)}, {s(sB)}, {UBLK}")
    A(f"s_add_u32 {s(sT)}, {s(sT)}, {WS_U}")
    A(f"s_add_u32 {s(sT+1)}, {s(sT)}, 4096")
    A(f"s_add_u32 {s(sT+2)}, {s(sT)}, 8192")
    for r in range(8):
        sel = "op_sel_hi:[1,0]" if r % 2 == 0 else "op_sel:[0,1] op_sel_hi:[1,1]"
        for q in range(4):
            d = v(D+8*r+2*q, 2)
            A(f"v_pk_mul_f32 {d}, {d}, {s(sM+(r&~1),2)} {sel}")
    for e in range(8):
        for p in range(4): A(f"v_cvt_pk_bf16_f32 {v(X+4*e+p)}, {v(D+16*p+e)}, {v(D+16*p+8+e)}")
        A(f"buffer_store_dwordx4 {v(X+4*e,4)}, {v(vOff)}, {s(sWS,4)}, {s(sT+e//4)} offen offset:{(e%4)*1024} {sc}")
    A(f"s_mov_b32 exec_lo, 0x00010001")
    A(f"s_mov_b32 exec_hi, 0x00010001")
    A(f"buffer_store_dwordx4 {v(S+4,4)}, {v(vLANE)}, {s(sWS,4)}, {s(sT+2)} offen {sc}")
    A(f"s_mov_b64 exec, -1")

CROWS = [[0,1,2,3,4,5,6,7, 512,516,520, 1024,1032, 1536,1544],
         [256,256,258,260,260,260,262,264, 768,772,776, 1280,1288, 1792,1800]]
def mrow(h, reg): return 8 * (reg >> 2) + 4 * h + (reg & 3)

def cmul(A, d, p, z):
    assert d != p and d != z
    A(f"v_pk_mul_f32 {v(d,2)}, {v(p,2)}, {v(z,2)} op_sel:[0,0] op_sel_hi:[0,1]")
    return lambda: A(f"v_pk_fma_f32 {v(d,2)}, {v(p,2)}, {v(z,2)}, {v(d,2)} op_sel:[1,1,0] op_sel_hi:[1,0,1] neg_lo:[0,1,0]")

def cmul2(A, ds, ps, zs):
    fin = [cmul(A, d, p, z) for d, p, z in zip(ds, ps, zs)]
    for f_ in fin: f_()

def kgen_loads(A, sD, P=8, vOff=2, sT=32):
    A(f"s_lshl_b32 {s(sT+2)}, {s(sD)}, 8")
    A(f"v_lshl_add_u32 {v(vOff)}, {v(vLANE)}, 2, {s(sT+2)}")
    for i, p in enumerate((P_ARE, P_AIM, P_BRE, P_BIM, P_CRE, P_CIM)):
        A(f"global_load_dword {v(P+i)}, {v(vOff)}, {s(p,2)}")
    A(f"s_lshr_b32 {s(sT+2)}, {s(sD)}, 1")
    A(f"s_lshl_b32 {s(sT+2)}, {s(sT+2)}, 2")
    A(f"s_load_dword {s(sT)}, {s(P_LDT,2)}, {s(sT+2)}")
    A(f"s_load_dword {s(sT+1)}, {s(P_DSK,2)}, {s(sT+2)}")

def kgen_compute(A, sD, sKB, P=8, sT=32, extra_vm=0):
    DT = 14; vW = 15; vR = 16
    U = 18
    Z1, Z8, ZB, W = 30, 34, 38, 42
    T = 46
    YF = 64
    XW = 128
    XW2 = 164
    XF = 184
    ACC = 200
    PK = 216
    A("s_waitcnt lgkmcnt(0)")
    A(f"s_bitcmp1_b32 {s(sD)}, 0")
    A(f"s_cselect_b32 {s(sT+2)}, 0, 16")
    A(f"s_lshl_b32 {s(sT)}, {s(sT)}, {s(sT+2)}")
    A(f"s_lshl_b32 {s(sT+1)}, {s(sT+1)}, {s(sT+2)}")
    A(f"s_and_b32 {s(sT)}, {s(sT)}, 0xffff0000")
    A(f"s_and_b32 {s(sT+1)}, {s(sT+1)}, 0xffff0000")
    hi = struct.unpack("<f", struct.pack("<f", LOG2E))[0]; lo = LOG2E - hi
    A(f"v_mov_b32 {v(T)}, {fl(hi)}")
    A(f"v_mul_f32 {v(T+1)}, {s(sT)}, {v(T)}")
    A(f"v_fma_f32 {v(T+2)}, {s(sT)}, {v(T)}, -{v(T+1)}")
    A(f"v_mov_b32 {v(T+3)}, {fl(lo)}")
    A(f"v_fma_f32 {v(T+2)}, {s(sT)}, {v(T+3)}, {v(T+2)}")
    A(f"v_exp_f32 {v(T+1)}, {v(T+1)}")
    A(f"v_mul_f32 {v(T+2)}, {fl(0.6931471805599453)}, {v(T+2)}")
    A(f"v_fma_f32 {v(T+1)}, {v(T+1)}, {v(T+2)}, {v(T+1)}")
    A(f"v_cvt_pk_bf16_f32 {v(T+1)}, {v(T+1)}, {v(T+1)}")
    A(f"v_and_b32 {v(DT)}, 0xffff0000, {v(T+1)}")
    A(f"v_lshl_add_u32 {v(vW)}, {v(vLANE)}, 3, {s(sKB)}")
    A(f"v_and_b32 {v(T)}, 31, {v(vLANE)}")
    A(f"v_mul_u32_u24 {v(T)}, {KROW}, {v(T)}")
    A(f"v_lshrrev_b32 {v(T+1)}, 5, {v(vLANE)}")
    A(f"v_lshlrev_b32 {v(T+1)}, 4, {v(T+1)}")
    A(f"v_add3_u32 {v(vR)}, {v(T)}, {v(T+1)}, {s(sKB)}")
    A(f"v_mov_b32 {v(PK)}, 0x3f80")
    A(f"v_mov_b32 {v(PK+1)}, 0x3f80")
    A(f"ds_write_b64 {v(vW)}, {v(PK,2)}")
    A(f"s_waitcnt vmcnt({extra_vm})")
    for i in range(6):
        A(f"v_lshlrev_b32 {v(U+2*i)}, 16, {v(P+i)}")
        A(f"v_and_b32 {v(U+2*i+1)}, 0xffff0000, {v(P+i)}")
    for u in range(2):
        A(f"v_mul_f32 {v(U+u)}, {v(DT)}, {v(U+u)}")
        A(f"v_mul_f32 {v(U+2+u)}, {v(DT)}, {v(U+2+u)}")
    for u in range(2):
        A(f"v_mul_f32 {v(U+u)}, {fl(LOG2E)}, {v(U+u)}")
        A(f"v_mul_f32 {v(U+2+u)}, {fl(0.15915494309189535)}, {v(U+2+u)}")
    def anchor(Z, e):
        for u in range(2):
            t = T + 4 * u
            A(f"v_mul_f32 {v(t)}, {fl(e)}, {v(U+u)}")
            A(f"v_mul_f32 {v(t+1)}, {fl(e)}, {v(U+2+u)}")
            A(f"v_exp_f32 {v(t)}, {v(t)}")
            A(f"v_rndne_f32 {v(t+2)}, {v(t+1)}")
            A(f"v_sub_f32 {v(t+1)}, {v(t+1)}, {v(t+2)}")
            A(f"v_cos_f32 {v(t+2)}, {v(t+1)}")
            A(f"v_sin_f32 {v(t+3)}, {v(t+1)}")
        A("s_nop 0")
        for u in range(2):
            t = T + 4 * u
            A(f"v_pk_mul_f32 {v(Z+2*u,2)}, {v(t+2,2)}, {v(t,2)} op_sel_hi:[1,0]")
    anchor(Z8, 8.0)
    pk = [0]
    def emit_row(rows, src, neg):
        b = PK + 2 * (pk[0] % 4); pk[0] += 1
        for u in range(2):
            A(f"v_cvt_pk_bf16_f32 {v(b+u)}, {v(src+2*u)}, {'-' if neg else ''}{v(src+2*u+1)}")
        for r in rows: A(f"ds_write_b64 {v(vW)}, {v(b,2)} offset:{r*KROW}")
    pk[0] = 1
    emit_row([1], Z8, False)
    cur = Z8
    Ya, Yb = T + 8, T + 12
    for j in range(2, 32):
        nxt = Ya if j % 2 == 0 else Yb
        cmul2(A, [nxt, nxt+2], [cur, cur+2], [Z8, Z8+2])
        emit_row([j], nxt, False)
        cur = nxt
    for k in range(16): A(f"ds_read_b128 {v(YF+4*k,4)}, {v(vR)} offset:{32*k}")
    anchor(Z1, 1.0)
    anchor(ZB, 256.0)
    for u in range(2):
        A(f"v_mul_f32 {v(T+2*u)}, {v(DT)}, {v(U+4+u)}")
        A(f"v_mul_f32 {v(T+2*u+1)}, {v(DT)}, {v(U+6+u)}")
        A(f"v_mov_b32 {v(T+4+2*u)}, {v(U+8+u)}")
        A(f"v_mov_b32 {v(T+5+2*u)}, {v(U+10+u)}")
    x = lambda i: XW + 4 * i
    cmul2(A, [x(0), x(0)+2], [T+4, T+6], [T, T+2])
    where = {}
    for h in range(2):
        for reg, c in enumerate(CROWS[h]): where.setdefault(c, []).append(mrow(h, reg))
    emit_row(where[0], x(0), True)
    for i in range(1, 8):
        cmul2(A, [x(i), x(i)+2], [x(i-1), x(i-1)+2], [Z1, Z1+2])
        emit_row(where[i], x(i), True)
    cmul2(A, [x(8), x(8)+2], [x(0), x(0)+2], [Z8, Z8+2])
    loc = {i: x(i) for i in (0, 2, 4, 6, 8)}
    alt = {0: XW2, 2: XW2+4, 4: XW2+8, 6: XW2+12, 8: XW2+16}
    for q in range(1, 8):
        offs = (0,2,4,6,8) if q == 1 else (0,4,8) if q < 4 else (0,8)
        for o in offs:
            cmul2(A, [alt[o], alt[o]+2], [loc[o], loc[o]+2], [ZB, ZB+2])
            loc[o], alt[o] = alt[o], loc[o]
            emit_row(where[256*q+o], loc[o], True)
    for k in range(4): A(f"ds_read_b128 {v(XF+4*k,4)}, {v(vR)} offset:{32*k}")
    for k in range(16):
        A(f"s_waitcnt lgkmcnt({min(3, 15-k)})")
        c = "0" if k == 0 else v(ACC, 16)
        A(f"v_mfma_f32_32x32x16_bf16 {v(ACC,16)}, {v(XF+4*(k%4),4)}, {v(YF+4*k,4)}, {c}")
        if k + 4 < 16: A(f"ds_read_b128 {v(XF+4*(k%4),4)}, {v(vR)} offset:{32*(k+4)}")
    A(f"v_and_b32 {v(T)}, 31, {v(vLANE)}")
    A(f"v_lshlrev_b32 {v(T)}, 4, {v(T)}")
    A(f"v_lshrrev_b32 {v(T+1)}, 5, {v(vLANE)}")
    A(f"v_lshlrev_b32 {v(T+1)}, 9, {v(T+1)}")
    A(f"v_add_u32 {v(T)}, {v(T)}, {v(T+1)}")
    A(f"v_sub_u32 {v(T)}, {4080-3072}, {v(T)}")
    A(f"v_add_u32 {v(T)}, {s(sKB)}, {v(T)}")
    A(f"v_and_b32 {v(T+1)}, 1, {v(vLANE)}")
    A(f"v_cmp_eq_u32 vcc, 1, {v(T+1)}")
    A(f"v_mov_b32 {v(T+2)}, 0")
    A(f"v_writelane_b32 {v(T+2)}, {s(sT+1)}, 0")
    for i in range(4): A(f"v_mov_b32 {v(T+12+i)}, 0")
    A(f"v_add_f32 {v(ACC)}, {v(ACC)}, {v(T+2)}")
    C = YF
    for p in range(4): A(f"v_cvt_pk_bf16_f32 {v(C+p)}, {v(ACC+7-2*p)}, {v(ACC+6-2*p)}")
    A(f"ds_write_b128 {v(T)}, {v(C,4)} offset:3072")
    for p, (a_, b_) in enumerate(((10,10),(9,9),(9,8),(8,8))): A(f"v_cvt_pk_bf16_f32 {v(C+4+p)}, {v(ACC+a_)}, {v(ACC+b_)}")
    A(f"ds_write_b128 {v(T)}, {v(C+4,4)} offset:2048")
    for qq, lo_ in ((2, 11), (3, 13)):
        c = C + 4 * qq
        A(f"v_cndmask_b32 {v(T+3)}, {v(ACC+lo_)}, {v(ACC+lo_+1)}, vcc")
        A(f"v_cvt_pk_bf16_f32 {v(c)}, {v(ACC+lo_+1)}, {v(ACC+lo_+1)}")
        A(f"v_cvt_pk_bf16_f32 {v(c+1)}, {v(ACC+lo_+1)}, {v(T+3)}")
        A(f"v_cvt_pk_bf16_f32 {v(c+2)}, {v(ACC+lo_)}, {v(ACC+lo_)}")
        A(f"v_cvt_pk_bf16_f32 {v(c+3)}, {v(ACC+lo_)}, {v(ACC+lo_)}")
        A(f"ds_write_b128 {v(T)}, {v(c,4)} offset:{1024*(3-qq)}")
    A(f"v_lshrrev_b32 {v(T+4)}, 2, {v(vLANE)}")
    A(f"v_mul_u32_u24 {v(T+4)}, {KCS}, {v(T+4)}")
    A(f"v_and_b32 {v(T+5)}, 3, {v(vLANE)}")
    A(f"v_lshlrev_b32 {v(T+5)}, 4, {v(T+5)}")
    A(f"v_add3_u32 {v(T+4)}, {v(T+4)}, {v(T+5)}, {s(sKB)}")
    A(f"s_mov_b64 exec, 0xffff")
    A(f"ds_write_b128 {v(T+4)}, {v(T+12,4)} offset:4096")
    A(f"s_mov_b64 exec, -1")
    A(f"v_lshl_add_u32 {v(T)}, {v(vLANE)}, 4, {s(sKB)}")
    Rr = YF + 16
    for it in range(4):
        A(f"ds_read_b128 {v(Rr+8*it,4)}, {v(T)} offset:{1024*it}")
        A(f"ds_read_b64 {v(Rr+8*it+4,2)}, {v(T)} offset:{1024*it+16}")
    for it in range(4):
        R = Rr + 8 * it; O = XW + 12 * it
        A(f"s_waitcnt lgkmcnt({min(15, 6 - 2*it + 3*it)})")
        for k in range(4): A(f"v_alignbit_b32 {v(O+k)}, {v(R+k+1)}, {v(R+k)}, 16")
        A(f"ds_write_b128 {v(T)}, {v(O,4)} offset:{KCS+1024*it}")
        for k in range(4): A(f"v_mov_b32 {v(O+4+k)}, {v(R+k+1)}")
        A(f"ds_write_b128 {v(T)}, {v(O+4,4)} offset:{2*KCS+1024*it}")
        for k in range(4): A(f"v_alignbit_b32 {v(O+8+k)}, {v(R+k+2)}, {v(R+k+1)}, 16")
        A(f"ds_write_b128 {v(T)}, {v(O+8,4)} offset:{3*KCS+1024*it}")

def u_zero(A, sUB, T=46):
    for i in range(4): A(f"v_mov_b32 {v(T+i)}, 0")
    A(f"v_lshl_add_u32 {v(T+4)}, {v(vLANE)}, 4, {s(sUB)}")
    A(f"s_mov_b64 exec, 0xffffffff")
    A(f"ds_write_b128 {v(T+4)}, {v(T,4)}")
    A(f"s_mov_b64 exec, -1")

def u_gather(A, sD, sUB, sc, vT=46, sT=32):
    A(f"v_mul_u32_u24 {v(vT)}, {UBLK}, {v(vLANE)}")
    A(f"s_and_b32 {s(sT)}, {s(sD)}, 7")
    A(f"s_lshl_b32 {s(sT)}, {s(sT)}, 10")
    A(f"s_lshr_b32 {s(sT+1)}, {s(sD)}, 3")
    A(f"s_lshl_b32 {s(sT+1)}, {s(sT+1)}, 4")
    A(f"s_add_u32 {s(sT)}, {s(sT)}, {s(sT+1)}")
    A(f"s_add_u32 {s(sT)}, {s(sT)}, {WS_U}")
    for i in range(4):
        A(f"s_add_u32 m0, {s(sUB)}, {512+1024*i}")
        if i: A(f"s_add_u32 {s(sT)}, {s(sT)}, {64*UBLK}")
        else: A("s_nop 0")
        A(f"buffer_load_dwordx4 {v(vT)}, {s(sWS,4)}, {s(sT)} offen {sc} lds")

CV_ACC = 32; CV_F = 64
def conv_main(A, sKB, sUB, sNH, filler=None, vA=8, vB=9, T=10):
    A(f"v_and_b32 {v(T)}, 3, {v(vLANE)}")
    A(f"v_sub_u32 {v(T)}, 3, {v(T)}")
    A(f"v_mul_u32_u24 {v(T)}, {KCS}, {v(T)}")
    A(f"v_bfe_u32 {v(T+1)}, {v(vLANE)}, 2, 2")
    A(f"v_lshlrev_b32 {v(T+1)}, 3, {v(T+1)}")
    A(f"v_sub_u32 {v(T)}, {v(T)}, {v(T+1)}")
    A(f"v_and_b32 {v(T+2)}, 48, {v(vLANE)}")
    A(f"s_lshl_b32 s32, {s(sNH)}, 8")
    A(f"s_sub_u32 s33, {s(sKB)}, s32")
    A(f"s_add_u32 s33, s33, {24+256}")
    A(f"v_add3_u32 {v(vA)}, {v(T)}, {v(T+2)}, s33")
    A(f"v_and_b32 {v(T)}, 15, {v(vLANE)}")
    A(f"v_lshlrev_b32 {v(T)}, 5, {v(T)}")
    A(f"s_sub_u32 s33, {s(sUB)}, s32")
    A(f"s_add_u32 s33, s33, {480-192}")
    A(f"v_add3_u32 {v(vB)}, {v(T)}, {v(T+2)}, s33")
    def reads(i):
        F = CV_F + 64 * (i & 1); L = []
        order = [("B", 0), ("A", 0)]
        for k in range(1, 8): order += [("B", k), ("A", k)]
        for kind, k in order:
            if kind == "A":
                o = 64 * (59 - i - 8 * k)
                L.append(f"ds_read_b64 {v(F+4*k,2)}, {v(vA)} offset:{o}")
                L.append(f"ds_read_b64 {v(F+4*k+2,2)}, {v(vA)} offset:{o+8}")
            else:
                L.append(f"ds_read_b128 {v(F+32+4*k,4)}, {v(vB)} offset:{512*k+64*(3-i)}")
        return L
    for l in reads(0): A(l)
    first = set()
    nm = 0
    for i in range(4):
        F = CV_F + 64 * (i & 1)
        nxt = reads(i + 1) if i < 3 else []
        pairs = sorted([(a, b) for a in range(8) for b in range(8) if a + b <= 7], key=lambda p: (max(p), p[0] + p[1]))
        if i > 0: A("s_waitcnt lgkmcnt(0)")
        lastmax = -1
        for n, (a, b) in enumerate(pairs):
            if i == 0 and max(a, b) > lastmax and lastmax < 4:
                lastmax = max(a, b)
                A(f"s_waitcnt lgkmcnt({0 if lastmax == 4 else min(15, 3*(7-lastmax))})")
            c = a + b
            acc = v(CV_ACC + 4 * c, 4)
            src = acc if c in first else "0"
            first.add(c)
            A(f"v_mfma_f32_16x16x32_bf16 {acc}, {v(F+4*a,4)}, {v(F+32+4*b,4)}, {src}")
            nm += 1
            if nxt and (i > 0 or lastmax == 4):
                A(nxt.pop(0))
                if i == 0 and nxt: A(nxt.pop(0))
            if filler: filler(nm)
        assert not nxt

def conv_finish(A, sD, sNH, sXB, sync, sc, T=10, sT=32):
    A(f"v_lshl_add_u32 {v(T)}, {v(vLANE)}, 4, {s(sXB)}")
    A(f"s_lshl_b32 {s(sT)}, {s(sNH)}, 12")
    A(f"v_add_u32 {v(T+1)}, {s(sT)}, {v(T)}")
    A(f"s_xor_b32 {s(sT)}, {s(sT)}, 4096")
    A(f"v_add_u32 {v(T)}, {s(sT)}, {v(T)}")
    l1 = A.new("L_cf"); l2 = A.new("L_cf")
    A(f"s_cmp_eq_u32 {s(sNH)}, 0")
    A("s_nop 4")
    A(f"s_cbranch_scc1 {l1}")
    for k in range(4): A(f"ds_write_b128 {v(T+1)}, {v(CV_ACC+4*k,4)} offset:{1024*k}")
    A("s_nop 1")
    for k in range(16): A(f"v_mov_b32 {v(CV_F+16+k)}, {v(CV_ACC+16+k)}")
    A(f"s_branch {l2}")
    A.label(l1)
    for k in range(4): A(f"ds_write_b128 {v(T+1)}, {v(CV_ACC+16+4*k,4)} offset:{1024*k}")
    for k in range(16): A(f"v_mov_b32 {v(CV_F+16+k)}, {v(CV_ACC+k)}")
    A.label(l2)
    A("s_waitcnt lgkmcnt(0)")
    sync()
    for k in range(4): A(f"ds_read_b128 {v(CV_F+4*k,4)}, {v(T)} offset:{1024*k}")
    A(f"v_and_b32 {v(T+2)}, 15, {v(vLANE)}")
    A(f"v_lshlrev_b32 {v(T+2)}, 5, {v(T+2)}")
    A(f"v_bfe_u32 {v(T+3)}, {v(vLANE)}, 4, 1")
    A(f"v_lshlrev_b32 {v(T+3)}, 9, {v(T+3)}")
    A(f"v_lshrrev_b32 {v(T+4)}, 5, {v(vLANE)}")
    A(f"v_lshlrev_b32 {v(T+4)}, 4, {v(T+4)}")
    A(f"v_add3_u32 {v(T+2)}, {v(T+2)}, {v(T+3)}, {v(T+4)}")
    A(f"s_lshl_b32 {s(sT)}, {s(sD)}, 12")
    A(f"s_lshl_b32 {s(sT+1)}, {s(sNH)}, 11")
    A(f"s_add_u32 {s(sT)}, {s(sT)}, {s(sT+1)}")
    A(f"s_add_u32 {s(sT)}, {s(sT)}, {WS_S}")
    A("s_waitcnt lgkmcnt(0)")
    for k in range(8): A(f"v_pk_add_f32 {v(CV_F+2*k,2)}, {v(CV_F+2*k,2)}, {v(CV_F+16+2*k,2)}")
    O = CV_F + 32
    for k in range(8): A(f"v_cvt_pk_bf16_f32 {v(O+k)}, {v(CV_F+2*k)}, {v(CV_F+2*k+1)}")
    A("s_nop 1")
    for pr in range(2):
        A(f"v_permlane16_swap_b32 {v(O+4*pr)}, {v(O+4*pr+2)}")
        A(f"v_permlane16_swap_b32 {v(O+4*pr+1)}, {v(O+4*pr+3)}")
    for pr in range(2):
        A(f"buffer_store_dwordx4 {v(O+4*pr,4)}, {v(T+2)}, {s(sWS,4)}, {s(sT)} offen offset:{1024*pr} {sc}")

C_FULL = L_CTL
C_FREE = L_CTL + 16
L_JUNK = L_CTL + 256
def sig_addr(A, vD, sAddr):
    A(f"v_lshlrev_b32 {v(vD)}, 2, {v(vLANE)}")
    A(f"v_add_u32 {v(vD)}, {L_JUNK}, {v(vD)}")
    A(f"v_writelane_b32 {v(vD)}, {sAddr}, 0")
def poll_addr(A, vD, base, n):
    A(f"v_and_b32 {v(vD)}, {n-1}, {v(vLANE)}")
    A(f"v_lshlrev_b32 {v(vD)}, 2, {v(vD)}")
    A(f"v_add_u32 {v(vD)}, {base}, {v(vD)}")
def lds_spin(A, vAddr, vT, n):
    lp = A.new("L_sp")
    A.label(lp)
    A(f"ds_read_b32 {v(vT)}, {v(vAddr)}")
    A("s_waitcnt lgkmcnt(0)")
    A(f"v_cmp_gt_u32 vcc, {n}, {v(vT)}")
    A(f"s_cbranch_vccnz {lp}")
def ctl_init(A, T=4):
    A(f"v_lshlrev_b32 {v(T)}, 2, {v(vLANE)}")
    A(f"v_add_u32 {v(T)}, {L_CTL}, {v(T)}")
    A(f"v_mov_b32 {v(T+1)}, 0")
    A(f"ds_write_b32 {v(T)}, {v(T+1)}")
NSTAGE = 16
L_CSX = L_ST

def lds_signal(A, vAddr, vTmp, val, off):
    A(f"v_mov_b32 {v(vTmp)}, {val}")
    A(f"ds_write_b32 {v(vAddr)}, {v(vTmp)} offset:{off}")

def g1_loader(A, which, sRT, sFC, sROT, D=13, Vw=8, Vx=12, vZ=16, T=18, sT=40, pre=None, post=None):
    srdW = sWG if which == 0 else sWU
    A(f"s_mov_b32 {s(sT)}, 2752")
    A(f"s_mov_b32 {s(sT+1)}, 0x15555556")
    for j in range(3):
        A(f"v_add_u32 {v(T)}, {64*j}, {v(vLANE)}")
        A(f"v_mul_hi_u32 {v(T+1)}, {v(T)}, {s(sT+1)}")
        A(f"v_mul_u32_u24 {v(T+2)}, 12, {v(T+1)}")
        A(f"v_sub_u32 {v(T+2)}, {v(T)}, {v(T+2)}")
        A(f"v_mul_u32_u24 {v(T+1)}, {s(sT)}, {v(T+1)}")
        A(f"v_lshl_add_u32 {v(Vw+j)}, {v(T+2)}, 4, {v(T+1)}")
        if j: A(f"v_subrev_u32 {v(Vw+j)}, {1024*j}, {v(Vw+j)}")
    A(f"v_lshrrev_b32 {v(T)}, 3, {v(vLANE)}")
    A(f"v_lshlrev_b32 {v(T)}, 10, {v(T)}")
    A(f"v_lshrrev_b32 {v(T+1)}, 4, {v(vLANE)}")
    A(f"v_and_b32 {v(T+2)}, 7, {v(vLANE)}")
    A(f"v_xor_b32 {v(T+1)}, {v(T+1)}, {v(T+2)}")
    A(f"v_lshl_add_u32 {v(Vx)}, {v(T+1)}, 4, {v(T)}")
    A(f"v_xor_b32 {v(Vx+1)}, 64, {v(Vx)}")
    A(f"v_add_u32 {v(Vx+2)}, {2*7168}, {v(Vx)}")
    A(f"v_add_u32 {v(Vx+3)}, {3*7168}, {v(Vx+1)}")
    A(f"v_add_u32 {v(Vx+1)}, {7168}, {v(Vx+1)}")
    A(f"s_mov_b32 {s(sT)}, {C_FULL + 4*which}")
    sig_addr(A, vZ, s(sT))
    poll_addr(A, vZ+1, C_FREE, 4)
    sXB, sWB, sC, sXo, sWo = sT+2, sT+3, sT+4, sT+5, sT+6
    A(f"s_lshl_b32 {s(sXB)}, {s(sRT)}, 17")
    if which: A(f"s_add_u32 {s(sXB)}, {s(sXB)}, 65536")
    A(f"s_mul_i32 {s(sWB)}, {s(sFC)}, 192")
    A(f"s_mov_b32 {s(sC)}, {s(sROT)}")
    npre = pre() if pre else 0
    ops = []
    for st in range(NSTAGE):
        if st % 2 == 0:
            for i in range(8): ops.append((st, "x", i))
        for i in range(6): ops.append((st, "w", i))
    last_of = {}
    for n, (st, k, i) in enumerate(ops): last_of[st] = n
    signaled = 0
    for n, (st, k, i) in enumerate(ops):
        firstop = n == 0 or ops[n-1][0] != st
        if firstop and st % 2 == 0:
            A(f"s_lshl_b32 {s(sXo)}, {s(sC)}, 7")
            A(f"s_add_u32 {s(sXo)}, {s(sXo)}, {s(sXB)}")
            A(f"s_mul_i32 {s(sWo)}, {s(sC)}, {64*2752}")
            A(f"s_add_u32 {s(sWo)}, {s(sWo)}, {s(sWB)}")
            A(f"s_add_u32 {s(sC)}, {s(sC)}, 1")
            A(f"s_and_b32 {s(sC)}, {s(sC)}, 7")
        if firstop and st >= NWS:
            lds_spin(A, vZ+1, T, st-NWS+1)
        if n >= D:
            A(f"s_waitcnt vmcnt({D-1})")
            done = n - D
            if done == last_of[signaled]:
                signaled += 1
                lds_signal(A, vZ, T, signaled, 0)
        if k == "x":
            if i % 4 == 0:
                A(f"s_mov_b32 m0, {L_X + ((st//2) % NXS) * XSLOT + (8*which + i) * 1024}")
                if i: A(f"s_add_u32 {s(sXo)}, {s(sXo)}, 32768")
                else: A("s_nop 0")
            A(f"buffer_load_dwordx4 {v(Vx + i%4)}, {s(sX,4)}, {s(sXo)} offen offset:{1024*(i%4)} lds")
        else:
            if i % 3 == 0:
                A(f"s_mov_b32 m0, {L_W + (st % NWS) * WSLOT + which * UPOFF + (i//3) * 3072}")
                if i or st % 2: A(f"s_add_u32 {s(sWo)}, {s(sWo)}, {16*2752}")
                else: A("s_nop 0")
            A(f"buffer_load_dwordx4 {v(Vw + i%3)}, {s(srdW,4)}, {s(sWo)} offen offset:{1024*(i%3)} lds")
    npost = post() if post else 0
    while signaled < NSTAGE:
        A(f"s_waitcnt vmcnt({len(ops) - 1 - last_of[signaled] + npost})")
        signaled += 1
        lds_signal(A, vZ, T, signaled, 0)

G_ACC = 64
G_CS = 160
G_SEL = 172
G_F = 176
def g1_setup(A, sMH, sNH, vW=8, vXs=9, vC=13, T=16):
    A(f"v_bfe_u32 {v(T)}, {v(vLANE)}, 4, 1")
    A(f"v_mul_u32_u24 {v(T)}, {UPOFF}, {v(T)}")
    A(f"v_lshrrev_b32 {v(T+1)}, 5, {v(vLANE)}")
    A(f"v_bfe_u32 {v(T+2)}, {v(vLANE)}, 2, 2")
    A(f"v_lshl_add_u32 {v(T+2)}, {v(T+1)}, 3, {v(T+2)}")
    A(f"v_mul_u32_u24 {v(T+2)}, 192, {v(T+2)}")
    A(f"v_and_b32 {v(T+3)}, 3, {v(vLANE)}")
    A(f"v_lshl_add_u32 {v(T+2)}, {v(T+3)}, 3, {v(T+2)}")
    A(f"s_mul_i32 s32, {s(sMH)}, 96")
    A(f"v_add3_u32 {v(vW)}, {v(T)}, {v(T+2)}, s32")
    A(f"v_and_b32 {v(T)}, 31, {v(vLANE)}")
    A(f"v_bfe_u32 {v(T+2)}, {v(vLANE)}, 1, 3")
    A(f"v_xor_b32 {v(T+2)}, {v(T+2)}, {v(T+1)}")
    A(f"v_lshlrev_b32 {v(T+2)}, 4, {v(T+2)}")
    A(f"v_lshl_add_u32 {v(T)}, {v(T)}, 7, {v(T+2)}")
    A(f"s_lshl_b32 s32, {s(sNH)}, 13")
    A(f"s_add_u32 s32, s32, {L_X}")
    for k in range(4):
        A(f"v_xor_b32 {v(T+3)}, {32*k}, {v(T)}")
        A(f"v_add_u32 {v(vXs+k)}, s32, {v(T+3)}")
    poll_addr(A, vC, C_FULL, 2)
    A(f"s_lshl_b32 s32, {s(sWAVE)}, 2")
    A(f"s_add_u32 s32, s32, {C_FREE}")
    sig_addr(A, vC+1, "s32")
    A(f"v_lshrrev_b32 {v(T)}, 2, {v(vLANE)}")
    A(f"v_lshrrev_b32 {v(T+1)}, 4, {v(vLANE)}")
    A(f"v_xor_b32 {v(T)}, {v(T)}, {v(T+1)}")
    A(f"v_and_b32 {v(T)}, 1, {v(T)}")
    A(f"v_cmp_eq_u32 vcc, 0, {v(T)}")
    A(f"v_mov_b32 {v(T+1)}, 0x3f803f80")
    A("s_nop 0")
    for k in range(4): A(f"v_cndmask_b32 {v(G_SEL+k)}, 0, {v(T+1)}, vcc")

def g1_main(A, sNH, vW=8, vXs=9, vC=13, T=16):
    def reads(ks):
        st, i = ks // 2, ks % 2
        F = G_F + 20 * (ks & 1); L = []
        wo = L_W + (st % NWS) * WSLOT + i * 3072
        xo = ((ks // 4) % NXS) * XSLOT
        L.append(f"ds_read_b128 {v(F+12,4)}, {v(vXs + ks%4)} offset:{xo}")
        for mt in range(3):
            for h in range(2): L.append(f"ds_read_b64_tr_b16 {v(F+4*mt+2*h,2)}, {v(vW)} offset:{wo + h*768 + mt*32}")
            if mt == 0: L.append(f"ds_read_b128 {v(F+16,4)}, {v(vXs + ks%4)} offset:{xo+4096}")
        return L
    def wait_full(n, pre_read):
        ok = A.new("L_gk")
        if pre_read:
            A(f"v_cmp_gt_u32 vcc, {n}, {v(T)}")
            A(f"s_cbranch_vccz {ok}")
        lds_spin(A, vC, T, n)
        A.label(ok)
    for k in range(12): A(f"v_mov_b32 {v(G_CS+k)}, 0")
    wait_full(1, False)
    for l in reads(0): A(l)
    for ks in range(32):
        F = G_F + 20 * (ks & 1)
        A("s_waitcnt lgkmcnt(0)")
        if ks % 2 == 1:
            lds_signal(A, vC+1, T+2, ks // 2 + 1, 0)
            if ks < 31: wait_full(ks // 2 + 2, True)
        nxt = reads(ks + 1) if ks < 31 else []
        if ks % 2 == 0 and ks < 30: nxt.append(f"ds_read_b32 {v(T)}, {v(vC)}")
        for mt in range(3):
            for nt in range(2):
                acc = v(G_ACC + 16*(2*mt+nt), 16)
                A(f"v_mfma_f32_32x32x16_bf16 {acc}, {v(F+4*mt,4)}, {v(F+12+4*nt,4)}, {'0' if ks == 0 else acc}")
                for _ in range(2):
                    if nxt: A(nxt.pop(0))
        assert not nxt
        if ks == 30:
            A(f"s_mul_i32 s32, {s(sWAVE)}, 768")
            A(f"s_add_u32 s32, s32, {L_CSX}")
            A(f"v_lshl_add_u32 {v(T+4)}, {v(vLANE)}, 2, s32")
            for mt in range(3): A(f"ds_write_b32 {v(T+4)}, {v(G_CS+4*mt)} offset:{256*mt}")
        sk = None
        if ks < 30:
            sk = A.new("L_cs")
            A(f"s_cmp_lg_u32 {s(sNH)}, {ks & 1}")
            A(f"s_cbranch_scc1 {sk}")
        for mt in range(3):
            A(f"v_mfma_f32_16x16x32_bf16 {v(G_CS+4*mt,4)}, {v(G_SEL,4)}, {v(F+4*mt,4)}, {v(G_CS+4*mt,4)}")
        if sk: A.label(sk)

def g1_stats_load(A, sRT, sNH, sc, ST=20, T=24):
    A(f"v_bfe_u32 {v(T)}, {v(vLANE)}, 3, 2")
    A(f"v_mul_u32_u24 {v(T)}, {UBLK}, {v(T)}")
    A(f"v_and_b32 {v(T+1)}, 7, {v(vLANE)}")
    A(f"v_lshl_add_u32 {v(T)}, {v(T+1)}, 3, {v(T)}")
    A(f"s_lshl_b32 s32, {s(sRT)}, 1")
    A(f"s_add_u32 s32, s32, {s(sNH)}")
    A(f"s_mul_i32 s32, s32, {8*UBLK}")
    A(f"s_add_u32 s32, s32, {WS_U + 8192}")
    A(f"s_add_u32 s33, s32, {4*UBLK}")
    for nt in range(2): A(f"buffer_load_dwordx2 {v(ST+2*nt,2)}, {v(T)}, {s(sWS,4)}, s{32+nt} offen {sc}")

def g1_epilogue(A, sRT, sFC, sMH, sNH, sc, ST=20, vC=13, T=24):
    A(f"s_xor_b32 s32, {s(sWAVE)}, 2")
    A(f"s_lshl_b32 s33, s32, 2")
    A(f"s_add_u32 s33, s33, {C_FREE}")
    A(f"v_mov_b32 {v(T)}, s33")
    A(f"s_mul_i32 s32, s32, 768")
    A(f"s_add_u32 s32, s32, {L_CSX}")
    A(f"v_lshl_add_u32 {v(T+1)}, {v(vLANE)}, 2, s32")
    lp = A.new("L_pw")
    A.label(lp)
    A(f"ds_read_b32 {v(T+2)}, {v(T)}")
    for mt in range(3): A(f"ds_read_b32 {v(T+4+mt)}, {v(T+1)} offset:{256*mt}")
    A("s_waitcnt lgkmcnt(0)")
    A(f"v_cmp_gt_u32 vcc, 16, {v(T+2)}")
    A(f"s_cbranch_vccnz {lp}")
    BF = G_F; AF = G_F + 8
    A(f"v_cmp_gt_u32 vcc, 32, {v(vLANE)}")
    A("s_nop 0")
    for nt in range(2):
        A(f"v_xor_b32 {v(T+8)}, 0x80000000, {v(ST+2*nt)}")
        A(f"v_cndmask_b32 {v(T+8)}, 0, {v(T+8)}, vcc")
        A(f"v_lshrrev_b32 {v(BF+4*nt+1)}, 16, {v(T+8)}")
        A(f"v_or_b32 {v(BF+4*nt)}, {v(T+8)}, {v(BF+4*nt+1)}")
        A(f"v_mov_b32 {v(BF+4*nt+2)}, 0")
        A(f"v_mov_b32 {v(BF+4*nt+3)}, 0")
        A(f"v_mul_f32 {v(ST+2*nt)}, {fl(-LOG2E)}, {v(ST+2*nt+1)}")
    for mt in range(3):
        c = T + 4 + mt; a = AF + 4 * mt
        A(f"v_add_f32 {v(c)}, {v(c)}, {v(G_CS+4*mt)}")
        A(f"v_and_b32 {v(T+8)}, 0xffff0000, {v(c)}")
        A(f"v_sub_f32 {v(c)}, {v(c)}, {v(T+8)}")
        A(f"v_and_b32 {v(T+9)}, 0xffff0000, {v(c)}")
        A(f"v_sub_f32 {v(c)}, {v(c)}, {v(T+9)}")
        A(f"v_lshrrev_b32 {v(T+8)}, 16, {v(T+8)}")
        A(f"v_or_b32 {v(a)}, {v(T+8)}, {v(T+9)}")
        A(f"v_lshrrev_b32 {v(a+1)}, 16, {v(c)}")
        A(f"v_mov_b32 {v(a+2)}, 0")
        A(f"v_mov_b32 {v(a+3)}, 0")
    A("s_nop 1")
    for mt in range(3):
        for nt in range(2):
            acc = v(G_ACC + 16*(2*mt+nt), 16)
            A(f"v_mfma_f32_32x32x16_bf16 {acc}, {v(AF+4*mt,4)}, {v(BF+4*nt,4)}, {acc}")
    A(f"v_lshlrev_b32 {v(T)}, 4, {v(vLANE)}")
    A(f"s_lshl_b32 s32, {s(sRT)}, 2")
    A(f"s_lshl_b32 s33, {s(sNH)}, 1")
    A(f"s_add_u32 s32, s32, s33")
    A(f"s_mul_i32 s32, s32, 86")
    A(f"s_mul_i32 s33, {s(sFC)}, 6")
    A(f"s_mul_i32 s34, {s(sMH)}, 3")
    A(f"s_add_u32 s33, s33, s34")
    A(f"s_add_u32 s32, s32, s33")
    A(f"s_lshl_b32 s32, s32, 10")
    A(f"s_add_u32 s34, s32, {WS_H}")
    A(f"s_add_u32 s35, s34, {86*1024}")
    A(f"v_mov_b32 {v(T+2)}, 1.0")
    end = A.new("L_e1")
    for mt in range(3):
        A(f"s_cmp_ge_u32 s33, {86-mt}")
        A(f"s_cbranch_scc1 {end}")
        for nt in range(2):
            a = G_ACC + 16*(2*mt+nt); O = T + 4 + 4 * nt
            for k in range(4): A(f"v_pk_mul_f32 {v(a+2*k,2)}, {v(a+2*k,2)}, {v(ST+2*nt,2)} op_sel_hi:[1,0]")
            for k in range(8): A(f"v_exp_f32 {v(a+k)}, {v(a+k)}")
            for k in range(4): A(f"v_pk_add_f32 {v(a+2*k,2)}, {v(a+2*k,2)}, {v(T+2,2)} op_sel_hi:[1,0]")
            for k in range(8): A(f"v_rcp_f32 {v(a+k)}, {v(a+k)}")
            for k in range(4): A(f"v_pk_mul_f32 {v(a+2*k,2)}, {v(a+2*k,2)}, {v(a+8+2*k,2)}")
            for k in range(4): A(f"v_cvt_pk_bf16_f32 {v(a+8+k)}, {v(a+2*k)}, {v(a+2*k+1)}")
            A(f"buffer_store_dwordx4 {v(a+8,4)}, {v(T)}, {s(sWS,4)}, s{34+nt} offen offset:{1024*mt} {sc}")
    A.label(end)

G2_P = 16
G2_NA = 27
G2_ACC = 16
G2_PRE = 48
G2_JIT = 176
G2_H = 192; G2_NH = 14
def g2_slot(kq, i):
    j = i if i < G2_NA else i - G2_NA
    return (kq * G2_NA + j) * 2048
L_PART = L_RINGEND; PROW = 272

def wd_addr(A, vA, T):
    A(f"v_lshrrev_b32 {v(T)}, 3, {v(vLANE)}")
    A(f"v_lshlrev_b32 {v(T)}, 10, {v(T)}")
    A(f"v_lshrrev_b32 {v(T+1)}, 2, {v(vLANE)}")
    A(f"v_and_b32 {v(T+1)}, 4, {v(T+1)}")
    A(f"v_and_b32 {v(T+2)}, 7, {v(vLANE)}")
    A(f"v_xor_b32 {v(T+1)}, {v(T+1)}, {v(T+2)}")
    A(f"v_lshl_add_u32 {v(vA)}, {v(T+1)}, 4, {v(T)}")
    A(f"v_add_u32 {v(vA+1)}, 7168, {v(vA)}")

def wd_dma(A, vA, sSoff, ldsexpr):
    A(ldsexpr)
    A("s_nop 0")
    A(f"buffer_load_dwordx4 {v(vA)}, {s(sWD,4)}, {s(sSoff)} offen lds")
    A(f"buffer_load_dwordx4 {v(vA+1)}, {s(sWD,4)}, {s(sSoff)} offen offset:1024 lds")

def g2_setup(A, sKQ, vR=8, T=10):
    A(f"v_bfe_u32 {v(T)}, {v(vLANE)}, 2, 2")
    A(f"v_lshrrev_b32 {v(T+1)}, 5, {v(vLANE)}")
    A(f"v_lshl_add_u32 {v(T+1)}, {v(T+1)}, 2, {v(T)}")
    A(f"v_lshlrev_b32 {v(T+1)}, 7, {v(T+1)}")
    A(f"v_lshrrev_b32 {v(T)}, 1, {v(T)}")
    A(f"v_lshlrev_b32 {v(T)}, 6, {v(T)}")
    A(f"v_bfe_u32 {v(T+2)}, {v(vLANE)}, 4, 1")
    A(f"v_lshlrev_b32 {v(T+2)}, 5, {v(T+2)}")
    A(f"v_and_b32 {v(T+3)}, 3, {v(vLANE)}")
    A(f"v_lshl_add_u32 {v(T+2)}, {v(T+3)}, 3, {v(T+2)}")
    A(f"v_add3_u32 {v(T)}, {v(T)}, {v(T+1)}, {v(T+2)}")
    A(f"s_mul_i32 s32, {s(sKQ)}, {G2_NA*2048}")
    A(f"v_add_u32 {v(vR)}, s32, {v(T)}")
    A(f"v_xor_b32 {v(vR+1)}, 64, {v(vR)}")

def g2_wd_reads(i, F, vR=8):
    o = g2_slot(0, i); L = []
    for dt in range(2):
        for h in range(2): L.append(f"ds_read_b64_tr_b16 {v(F+4*dt+2*h,2)}, {v(vR+dt)} offset:{o + 1024*h}")
    return L

def g2_pull(A, vR=8):
    for i in range(G2_P):
        for l in g2_wd_reads(i, G2_PRE + 8*i, vR): A(l)
    A("s_waitcnt lgkmcnt(0)")

def g2_main(A, sTT, sTB, sKQ, sc, mid=None, vR=8, vH=10, extra_vm=0):
    A(f"v_lshlrev_b32 {v(vH)}, 4, {v(vLANE)}")
    A(f"s_lshl_b32 s32, {s(sTT)}, 1")
    A(f"s_add_u32 s32, s32, {s(sTB)}")
    A(f"s_mul_i32 s32, s32, 86")
    A(f"s_mul_i32 s33, {s(sKQ)}, 43")
    A(f"s_add_u32 s32, s32, s33")
    A(f"s_lshl_b32 s32, s32, 10")
    A(f"s_add_u32 s32, s32, {WS_H}")
    def hload(i):
        if i % 4 == 0 and i: A(f"s_add_u32 s32, s32, 4096")
        A(f"buffer_load_dwordx4 {v(G2_H+4*(i%G2_NH),4)}, {v(vH)}, {s(sWS,4)}, s32 offen offset:{1024*(i%4)} {sc}")
    for i in range(G2_NH): hload(i)
    for i in range(43):
        F = G2_PRE + 8*i if i < G2_P else G2_JIT + 8*(i & 1)
        nxt = []
        if G2_P <= i + 1 < 43:
            if i + 1 == G2_NA and mid: mid()
            nxt = g2_wd_reads(i + 1, G2_JIT + 8*((i+1) & 1), vR)
        issued = min(43, i + G2_NH)
        w = f"s_waitcnt vmcnt({issued - i - 1})"
        if i >= G2_P: w += " lgkmcnt(0)"
        A(w)
        for dt in range(2):
            acc = v(G2_ACC + 16*dt, 16)
            A(f"v_mfma_f32_32x32x16_bf16 {acc}, {v(F+4*dt,4)}, {v(G2_H+4*(i%G2_NH),4)}, {'0' if i == 0 else acc}")
            for _ in range(2):
                if nxt: A(nxt.pop(0))
        if i + G2_NH < 43: hload(i + G2_NH)

def g2_partials(A, sTB, sKQ, T=10):
    A(f"v_and_b32 {v(T)}, 31, {v(vLANE)}")
    A(f"v_mul_u32_u24 {v(T)}, {PROW}, {v(T)}")
    A(f"v_lshrrev_b32 {v(T+1)}, 5, {v(vLANE)}")
    A(f"v_lshlrev_b32 {v(T+1)}, 4, {v(T+1)}")
    A(f"s_lshl_b32 s32, {s(sKQ)}, 1")
    A(f"s_add_u32 s32, s32, {s(sTB)}")
    A(f"s_mul_i32 s32, s32, {32*PROW}")
    A(f"s_add_u32 s32, s32, {L_PART}")
    A(f"v_add3_u32 {v(T)}, {v(T)}, {v(T+1)}, s32")
    A("s_nop 4")
    for dt in range(2):
        for q in range(4): A(f"ds_write_b128 {v(T)}, {v(G2_ACC+16*dt+4*q,4)} offset:{128*dt+32*q}")

FN = 224
def fin_loads(A, sTT, sDT, sc, X, T):
    A(f"s_lshr_b32 s32, {s(sWAVE)}, 1")
    A(f"s_lshl_b32 s33, {s(sTT)}, 2")
    A(f"s_add_u32 s32, s32, s33")
    A(f"s_and_b32 s33, {s(sWAVE)}, 1")
    A(f"s_lshl_b32 s34, {s(sDT)}, 1")
    A(f"s_add_u32 s33, s33, s34")
    A(f"s_lshl_b32 s33, s33, 6")
    A(f"s_lshl_b32 s34, s32, 14")
    A(f"s_add_u32 s33, s33, s34")
    A(f"v_and_b32 {v(T)}, 15, {v(vLANE)}")
    A(f"v_lshlrev_b32 {v(T)}, 10, {v(T)}")
    A(f"v_and_b32 {v(T+1)}, 48, {v(vLANE)}")
    A(f"v_add3_u32 {v(X+5)}, {v(T)}, {v(T+1)}, s33")
    A(f"buffer_load_dwordx4 {v(X,4)}, {v(X+5)}, {s(sX,4)}, 0 offen")
    A(f"v_bfe_u32 {v(T)}, {v(vLANE)}, 3, 1")
    A(f"v_mul_u32_u24 {v(T)}, {UBLK}, {v(T)}")
    A(f"v_and_b32 {v(T+1)}, 7, {v(vLANE)}")
    A(f"v_lshl_add_u32 {v(T)}, {v(T+1)}, 3, {v(T)}")
    A(f"s_mul_i32 s32, s32, {2*UBLK}")
    A(f"s_add_u32 s32, s32, {WS_U + 8192 + 4}")
    A(f"buffer_load_dword {v(X+4)}, {v(T)}, {s(sWS,4)}, s32 offen {sc}")

def s_tile_dma(A, sTT, sDT, sc, part, nparts, T, chan_soff):
    A(f"v_lshrrev_b32 {v(T)}, 3, {v(vLANE)}")
    A(f"v_lshlrev_b32 {v(T)}, 12, {v(T)}")
    A(f"v_and_b32 {v(T+1)}, 7, {v(vLANE)}")
    A(f"v_lshl_add_u32 {v(T)}, {v(T+1)}, 4, {v(T)}")
    A(f"s_lshl_b32 s32, {s(sDT)}, 18")
    A(f"s_lshl_b32 s33, {s(sTT)}, 7")
    A(f"s_add_u32 s32, s32, s33")
    A(f"s_add_u32 s32, s32, {WS_S}")
    per = 8 // nparts
    A(f"s_mul_i32 s33, {s(part)}, {per*32768}")
    A(f"s_add_u32 s32, s32, s33")
    A(f"s_mul_i32 s33, {s(part)}, {per*1024}")
    for i in range(per):
        A(f"s_add_u32 m0, s33, {L_ST + 1024*i}")
        if i: A(f"s_add_u32 s32, s32, 32768")
        else: A("s_nop 0")
        A(f"buffer_load_dwordx4 {v(T)}, {s(sWS,4)}, s32 offen {sc} lds")

def final(A, X, sc_out, T=16):
    P0 = T + 8; P1 = T + 16; SS = T + 24; E = T + 32
    A(f"s_lshr_b32 s32, {s(sWAVE)}, 1")
    A(f"s_and_b32 s33, {s(sWAVE)}, 1")
    A(f"v_and_b32 {v(T)}, 15, {v(vLANE)}")
    A(f"v_mul_u32_u24 {v(T)}, {PROW}, {v(T)}")
    A(f"v_and_b32 {v(T+1)}, 48, {v(vLANE)}")
    A(f"v_lshlrev_b32 {v(T+1)}, 1, {v(T+1)}")
    A(f"s_mul_i32 s34, s32, {16*PROW}")
    A(f"s_lshl_b32 s35, s33, 7")
    A(f"s_add_u32 s34, s34, s35")
    A(f"s_add_u32 s34, s34, {L_PART}")
    A(f"v_add3_u32 {v(T)}, {v(T)}, {v(T+1)}, s34")
    A(f"v_lshlrev_b32 {v(T+1)}, 5, {v(T+1)}")
    A(f"v_bfe_u32 {v(T+2)}, {v(vLANE)}, 2, 2")
    A(f"v_lshl_add_u32 {v(T+1)}, {v(T+2)}, 7, {v(T+1)}")
    A(f"v_and_b32 {v(T+2)}, 3, {v(vLANE)}")
    A(f"v_lshl_add_u32 {v(T+1)}, {v(T+2)}, 3, {v(T+1)}")
    A(f"s_lshl_b32 s34, s33, 12")
    A(f"s_lshl_b32 s35, s32, 5")
    A(f"s_add_u32 s34, s34, s35")
    A(f"s_add_u32 s34, s34, {L_ST}")
    A(f"v_add_u32 {v(T+1)}, s34, {v(T+1)}")
    return_point = len(A.lines)
    def body():
        for k in range(2): A(f"ds_read_b128 {v(P0+4*k,4)}, {v(T)} offset:{16*k}")
        for k in range(2): A(f"ds_read_b128 {v(P1+4*k,4)}, {v(T)} offset:{64*PROW+16*k}")
        for k in range(2): A(f"ds_read_b64_tr_b16 {v(SS+2*k,2)}, {v(T+1)} offset:{512*k}")
        A(f"v_mul_f32 {v(T+2)}, {fl(-LOG2E)}, {v(X+4)}")
        A(f"v_mov_b32 {v(T+4)}, 1.0")
        A("s_waitcnt lgkmcnt(2)")
        for k in range(4): A(f"v_pk_add_f32 {v(P0+2*k,2)}, {v(P0+2*k,2)}, {v(P1+2*k,2)}")
        for k in range(4): A(f"v_pk_mul_f32 {v(E+2*k,2)}, {v(P0+2*k,2)}, {v(T+2,2)} op_sel_hi:[1,0]")
        for k in range(8): A(f"v_exp_f32 {v(E+k)}, {v(E+k)}")
        for k in range(4): A(f"v_pk_mul_f32 {v(P0+2*k,2)}, {v(P0+2*k,2)}, {v(X+4,2)} op_sel_hi:[1,0]")
        for k in range(4): A(f"v_pk_add_f32 {v(E+2*k,2)}, {v(E+2*k,2)}, {v(T+4,2)} op_sel_hi:[1,0]")
        for k in range(8): A(f"v_rcp_f32 {v(E+k)}, {v(E+k)}")
        A("s_waitcnt lgkmcnt(0)")
        for k in range(4):
            A(f"v_lshlrev_b32 {v(P1+2*k)}, 16, {v(SS+k)}")
            A(f"v_and_b32 {v(P1+2*k+1)}, 0xffff0000, {v(SS+k)}")
        for k in range(4): A(f"v_pk_mul_f32 {v(P0+2*k,2)}, {v(P0+2*k,2)}, {v(E+2*k,2)}")
        for k in range(4):
            A(f"v_lshlrev_b32 {v(E+2*k)}, 16, {v(X+k)}")
            A(f"v_and_b32 {v(E+2*k+1)}, 0xffff0000, {v(X+k)}")
        for k in range(4): A(f"v_pk_fma_f32 {v(P0+2*k,2)}, {v(P0+2*k,2)}, {v(P1+2*k,2)}, {v(E+2*k,2)}")
        for k in range(4): A(f"v_cvt_pk_bf16_f32 {v(SS+k)}, {v(P0+2*k)}, {v(P0+2*k+1)}")
        A(f"buffer_store_dwordx4 {v(SS,4)}, {v(X+5)}, {s(sOUT,4)}, 0 offen {sc_out}")
    return body
```

```python
from roles import *
import sys
HDR = open("recurrent_scan__ssm_conv_s4__glu_gated_glu__prompt.s.ref").read().split("; Override launch")[0]
sXCD, sIDX, sRT, sFC, sROT, sB, sD, sTT, sDT, sA, sB2, sKB, sUB, sXB = 48, 49, 50, 51, 52, 53, 54, 55, 56, 57, 58, 59, 60, 61
def mapping(A):
    A(f"s_and_b32 {s(sXCD)}, s2, 7")
    A(f"s_lshr_b32 {s(sIDX)}, s2, 3")
    A(f"s_lshr_b32 s32, {s(sXCD)}, 1")
    A(f"s_and_b32 s33, {s(sXCD)}, 1")
    A(f"s_and_b32 s34, {s(sIDX)}, 3")
    A(f"s_lshl_b32 {s(sROT)}, s34, 1")
    A(f"s_mul_i32 {s(sFC)}, s33, 7")
    A(f"s_lshr_b32 s35, {s(sIDX)}, 2")
    A(f"s_add_u32 {s(sFC)}, {s(sFC)}, s35")
    A(f"s_lshl_b32 s36, s33, 1")
    A(f"s_add_u32 s36, s36, s34")
    A(f"s_cmp_ge_u32 {s(sIDX)}, 28")
    A(f"s_cselect_b32 {s(sFC)}, 14, {s(sFC)}")
    A(f"s_cselect_b32 s34, s36, s34")
    A(f"s_lshl_b32 {s(sRT)}, s32, 2")
    A(f"s_add_u32 {s(sRT)}, {s(sRT)}, s34")
    A(f"s_lshl_b32 {s(sB)}, {s(sXCD)}, 5")
    A(f"s_add_u32 {s(sB)}, {s(sB)}, {s(sIDX)}")
    A(f"s_lshl_b32 {s(sD)}, {s(sXCD)}, 6")
    A(f"s_add_u32 {s(sD)}, {s(sD)}, s35")
    A(f"s_and_b32 s34, {s(sIDX)}, 3")
    A(f"s_lshl_b32 s34, s34, 4")
    A(f"s_add_u32 {s(sD)}, {s(sD)}, s34")
    A(f"s_lshr_b32 s34, {s(sIDX)}, 3")
    A(f"s_lshl_b32 {s(sTT)}, {s(sXCD)}, 2")
    A(f"s_add_u32 {s(sTT)}, {s(sTT)}, s34")
    A(f"s_and_b32 {s(sDT)}, {s(sIDX)}, 7")
    A(f"s_and_b32 {s(sA)}, {s(sWAVE)}, 1")
    A(f"s_bfe_u32 {s(sB2)}, {s(sWAVE)}, 0x10001")

def kernel(name, body, vgpr=256):
    A = Asm(); A.uid = hash(name) % 1000 * 1000
    done = f"L_done_{name}"
    prologue(A, 256, done); mapping(A); body(A, done)
    A.label(done); A("s_endpgm")
    txt = f".globl {name}\n.p2align 8\n.type {name},@function\n{name}:\n" + A.text()
    kd = f""".amdhsa_kernel {name}
  .amdhsa_next_free_vgpr {vgpr}
  .amdhsa_next_free_sgpr 102
  .amdhsa_accum_offset {vgpr}
  .amdhsa_group_segment_fixed_size 0
  .amdhsa_kernarg_size 128
  .amdhsa_user_sgpr_count 2
  .amdhsa_user_sgpr_kernarg_segment_ptr 1
  .amdhsa_system_sgpr_workgroup_id_x 1
.end_amdhsa_kernel
"""
    return txt, kd

def k_ln(A, done):
    ln_loads(A, sB); ln_compute(A, sB, "")
def k_g1(A, done):
    A(f"s_cmp_ge_u32 {s(sIDX)}, 30"); A(f"s_cbranch_scc1 {done}")
    ctl_init(A); A("s_waitcnt lgkmcnt(0)"); A("s_barrier")
    A(f"s_cmp_ge_u32 {s(sWAVE)}, 6"); A(f"s_cbranch_scc1 {done}")
    A(f"s_cmp_eq_u32 {s(sWAVE)}, 4"); A("s_cbranch_scc1 L_ld0")
    A(f"s_cmp_eq_u32 {s(sWAVE)}, 5"); A("s_cbranch_scc1 L_ld1")
    g1_stats_load(A, sRT, sB2, "")
    g1_setup(A, sA, sB2, T=24); g1_main(A, sB2, T=16 + 12)
    A("s_waitcnt vmcnt(0)")
    g1_epilogue(A, sRT, sFC, sA, sB2, "")
    A("s_endpgm")
    A.label("L_ld0"); g1_loader(A, 0, sRT, sFC, sROT); A("s_endpgm")
    A.label("L_ld1"); g1_loader(A, 1, sRT, sFC, sROT)
def k_cv(A, done):
    A(f"s_lshl_b32 s32, {s(sA)}, 3"); A(f"s_add_u32 {s(sD)}, {s(sD)}, s32")
    A(f"s_mul_i32 {s(sKB)}, {s(sA)}, {L_K[1]-L_K[0]}"); A(f"s_add_u32 {s(sKB)}, {s(sKB)}, {L_K[0]}")
    A(f"s_mul_i32 {s(sUB)}, {s(sA)}, {L_U[1]-L_U[0]}"); A(f"s_add_u32 {s(sUB)}, {s(sUB)}, {L_U[0]}")
    A(f"s_lshl_b32 {s(sXB)}, {s(sA)}, 13")
    A(f"s_cmp_eq_u32 {s(sB2)}, 0"); A("s_cbranch_scc1 L_kg")
    u_zero(A, sUB); u_gather(A, sD, sUB, ""); A("s_branch L_cv")
    A.label("L_kg")
    kgen_loads(A, sD); kgen_compute(A, sD, sKB)
    A.label("L_cv")
    A("s_waitcnt vmcnt(0) lgkmcnt(0)"); A("s_barrier")
    conv_main(A, sKB, sUB, sB2)
    conv_finish(A, sD, sB2, sXB, lambda: A("s_barrier"), "")
def k_g2(A, done):
    X = 248
    fin_loads(A, sTT, sDT, "", X, 10)
    A(f"s_cmp_lt_u32 {s(sWAVE)}, 4"); A("s_cbranch_scc1 L_g2g")
    wd_addr(A, 8, 10)
    def batch(lo, hi):
        A(f"s_mul_i32 s40, {s(sB2)}, 43"); A(f"s_add_u32 s40, s40, {s(sA)}"); A(f"s_add_u32 s40, s40, {lo}")
        A(f"s_lshl_b32 s40, s40, 14"); A(f"s_lshl_b32 s41, {s(sDT)}, 7"); A("s_add_u32 s40, s40, s41")
        A(f"s_mul_i32 s41, {s(sB2)}, {G2_NA}"); A(f"s_add_u32 s41, s41, {s(sA)}"); A("s_lshl_b32 s41, s41, 11")
        n = (hi - lo + 1) // 2
        for j in range(n):
            sk = None
            if lo + 2*j + 1 >= hi:
                sk = A.new("L_sk"); A(f"s_cmp_eq_u32 {s(sA)}, 1"); A(f"s_cbranch_scc1 {sk}")
            wd_dma(A, 8, 40, f"s_add_u32 m0, s41, {4096*j}")
            A("s_add_u32 s40, s40, 32768")
            if sk: A.label(sk)
    batch(0, G2_NA)
    A(f"s_and_b32 s42, {s(sWAVE)}, 3")
    s_tile_dma(A, sTT, sDT, "", 42, 4, 12, None)
    A("s_waitcnt vmcnt(0)"); A("s_barrier")
    A("s_barrier")
    batch(G2_NA, 43)
    A("s_waitcnt vmcnt(0)"); A("s_barrier")
    A("s_branch L_g2f")
    A.label("L_g2g")
    g2_setup(A, sB2)
    A("s_waitcnt vmcnt(0)"); A("s_barrier")
    g2_pull(A); A("s_barrier")
    g2_main(A, sTT, sA, sB2, "", mid=lambda: A("s_barrier"))
    g2_partials(A, sA, sB2)
    A.label("L_g2f")
    body = final(A, X, "", T=48)
    A("s_waitcnt lgkmcnt(0)"); A("s_barrier")
    body()

ks = [("ln_kernel", k_ln, 64, 0), ("g1_kernel", k_g1, 512, LDS_TOTAL), ("cv_kernel", k_cv, 256, LDS_TOTAL), ("g2_kernel", k_g2, 512, LDS_TOTAL)]
out = HDR
for n, f_, b, l in ks: out += f"; @launch kernel={n} grid=(256,1,1) block=({b},1,1) lds={l}\n"
out += '.amdgcn_target "amdgcn-amd-amdhsa--gfx950"\n.text\n'
kds = ""
for n, f_, b, l in ks:
    t, kd = kernel(n, f_); out += t; kds += ".p2align 6\n" + kd
out += '.section .rodata,"a"\n' + kds
dst = sys.argv[1] if len(sys.argv) > 1 else "v1.s"
open(dst, "w").write(out)
print("hazards:", check(out))
```

```python
import re
class Asm:
    def __init__(self):
        self.lines = []
        self.uid = 0
    def __call__(self, s):
        for l in s.split("\n"):
            l = l.strip()
            if l: self.lines.append("    " + l if not l.endswith(":") else l)
    def label(self, l): self.lines.append(l + ":")
    def new(self, base):
        self.uid += 1
        return f"{base}_{self.uid}"
    def text(self): return "\n".join(self.lines) + "\n"

def v(a, n=1): return f"v{a}" if n == 1 else f"v[{a}:{a+n-1}]"
def s(a, n=1): return f"s{a}" if n == 1 else f"s[{a}:{a+n-1}]"

_REG = re.compile(r"^-?\|?(v|s|a)(?:(\d+)|\[(\d+):(\d+)\])\|?$")
def regs(tok):
    tok = tok.strip()
    if tok in ("vcc",): return {("s", 106), ("s", 107)}
    if tok == "vcc_lo": return {("s", 106)}
    if tok == "vcc_hi": return {("s", 107)}
    if tok == "m0": return {("s", 124)}
    if tok == "exec": return {("s", 126), ("s", 127)}
    m = _REG.match(tok.replace("abs(", "").replace(")", "").replace("neg(", ""))
    if not m: return set()
    k = m.group(1)
    if m.group(2) is not None: return {(k, int(m.group(2)))}
    return {(k, i) for i in range(int(m.group(3)), int(m.group(4)) + 1)}

TRANS = ("v_exp_f32", "v_log_f32", "v_rcp_f32", "v_rsq_f32", "v_sqrt_f32", "v_sin_f32", "v_cos_f32")
class I:
    def __init__(self, line, idx):
        self.line = line; self.idx = idx
        t = line.split(";")[0].strip()
        p = t.split(None, 1)
        self.op = p[0]
        rest = p[1] if len(p) > 1 else ""
        ops = []; cur = ""; dep = 0
        for ch in rest:
            if ch == "[": dep += 1
            if ch == "]": dep -= 1
            if ch == "," and dep == 0: ops.append(cur.strip()); cur = ""
            else: cur += ch
        if cur.strip(): ops.append(cur.strip())
        self.mods = ""
        if ops:
            q = ops[-1].split(None, 1); ops[-1] = q[0]; self.mods = q[1] if len(q) > 1 else ""
        self.ops = ops
        op = self.op
        base = re.sub(r"_(e32|e64|dpp|sdwa)$", "", op)
        self.base = base
        self.mfma = op.startswith("v_mfma")
        self.valu = op.startswith("v_") and not self.mfma
        self.trans = base in TRANS
        self.dot = op.startswith("v_dot")
        self.dpp = op.endswith("_dpp") or "row_" in self.mods or "quad_perm" in self.mods
        self.perml = op.startswith("v_permlane")
        self.vmem = op.startswith(("buffer_", "global_", "flat_"))
        self.ds = op.startswith("ds_")
        self.salu = op.startswith("s_")
        R = [regs(o) for o in ops]
        self.w = set(); self.r = set(); self.srcC = set(); self.srcAB = set(); self.sdata = set()
        if self.mfma:
            self.w = R[0]; self.srcAB = R[1] | R[2]; self.srcC = R[3]; self.r = self.srcAB | self.srcC
            self.passes = 8 if "32x32x16" in op else 4 if "16x16x32" in op else 16
        elif self.valu:
            nd = 1
            if base in ("v_add_co_u32", "v_sub_co_u32", "v_addc_co_u32", "v_mad_u64_u32", "v_div_scale_f32"): nd = 2
            for x in R[:nd]: self.w |= x
            for x in R[nd:]: self.r |= x
            if self.perml: self.w = R[0] | R[1]; self.r = R[0] | R[1]
            if base in ("v_fmac_f32", "v_dot2c_f32_bf16", "v_writelane_b32", "v_pk_fmac_f16") or (self.dpp and "bound_ctrl" not in self.mods): self.r |= R[0]
            if base.startswith("v_cmpx"): self.w |= regs("exec")
            if base == "v_cndmask_b32" and len(ops) == 3: self.r |= regs("vcc")
        elif self.vmem:
            st = "store" in op or "atomic" in op
            lds = " lds" in (" " + self.mods)
            self.ldsdma = lds or "load_lds" in op
            if op.startswith("buffer_"):
                if lds:
                    for x in R: self.r |= x
                elif st:
                    for x in R: self.r |= x
                    self.sdata = R[0]
                else:
                    self.w = R[0]
                    for x in R[1:]: self.r |= x
            else:
                if st:
                    for x in R: self.r |= x
                    self.sdata = R[1]
                elif self.ldsdma:
                    for x in R: self.r |= x
                else:
                    self.w = R[0]
                    for x in R[1:]: self.r |= x
            self.wide = "x3" in op or "x4" in op
        elif self.ds:
            if "read" in op or "permute" in op or "swizzle" in op or "rtn" in op:
                self.w = R[0]
                for x in R[1:]: self.r |= x
            else:
                for x in R: self.r |= x
        elif self.salu:
            if op.startswith(("s_cmp", "s_cbranch", "s_branch", "s_waitcnt", "s_nop", "s_barrier", "s_sleep", "s_setprio", "s_endpgm", "s_bitcmp")):
                for x in R: self.r |= x
            else:
                if R: self.w = R[0]
                for x in R[1:]: self.r |= x
                if "saveexec" in op: self.w |= regs("exec")
        self.states = 1
        if op == "s_nop": self.states = int(ops[0], 0) + 1

def need(p, c):
    n = 0
    vw = {x for x in p.w if x[0] in "va"}; sw = {x for x in p.w if x[0] == "s"}
    if p.valu:
        if c.mfma and vw & c.r: n = max(n, 3 if p.dot else 2)
        if p.trans and c.valu and not c.trans and vw & c.r: n = max(n, 1)
        if p.trans and (c.vmem or c.ds) and vw & c.r: n = max(n, 1)
        if (c.perml or c.dpp) and vw & c.r: n = max(n, 2)
        if c.base in ("v_readlane_b32", "v_readfirstlane_b32") and vw & c.r: n = max(n, 1)
        if c.valu and sw & c.r:
            n = max(n, 4 if c.base in ("v_readlane_b32", "v_writelane_b32") else 2)
        if c.vmem and sw & c.r: n = max(n, 5)
        if c.salu and sw & c.r and "saveexec" not in c.op: n = max(n, 1)
        if p.dot and (c.valu or c.vmem or c.ds) and vw & (c.r | c.w):
            if c.op == p.op and len(c.ops) >= 3:
                ab = regs(c.ops[1]) | regs(c.ops[2])
                n = max(n, 3 if vw & ab else 0)
            else: n = max(n, 3)
        if regs("exec") & p.w:
            if c.mfma or c.perml or c.base in ("v_readlane_b32", "v_readfirstlane_b32", "v_writelane_b32"): n = max(n, 4)
            if c.dpp: n = max(n, 5)
        if ("op_sel" in p.mods and not p.op.startswith("v_pk") or p.op.endswith("sdwa")) and c.valu and vw & (c.r | c.w): n = max(n, 1)
    if p.mfma:
        P = p.passes
        if c.mfma:
            if vw & c.srcAB: n = max(n, {4: 8, 8: 12, 16: 20}[P])
            if vw & c.srcC:
                if not (p.w == c.srcC and p.passes == c.passes): n = max(n, {4: 6, 8: 10, 16: 18}[P])
            elif vw & c.w: n = max(n, {4: 6, 8: 10, 16: 18}[P])
        elif (c.valu and vw & (c.r | c.w)) or ((c.vmem or c.ds) and vw & (c.r | c.w)): n = max(n, {4: 8, 8: 12, 16: 20}[P])
        if c.valu and p.srcC & c.w: n = max(n, {4: 3, 8: 7, 16: 15}[P])
    if p.salu and ("s", 124) in p.w and c.vmem and getattr(c, "ldsdma", False): n = max(n, 1)
    if p.vmem and p.sdata and p.wide and p.sdata & c.w: n = max(n, 2 if c.valu else 1)
    if p.ds and "write" in p.op and ("b128" in p.op or "b96" in p.op) and False: pass
    return n

def check(text, verbose=True):
    ins = []
    for k, l in enumerate(text.split("\n")):
        t = l.split(";")[0].strip()
        if not t or t.endswith(":") or t.startswith("."):
            continue
        ins.append(I(t, k + 1))
    bad = 0
    for j, c in enumerate(ins):
        dist = 0
        for i in range(j - 1, max(-1, j - 22), -1):
            p = ins[i]
            if p.op in ("s_branch", "s_endpgm", "s_setpc_b64"): break
            n = need(p, c)
            if n > dist:
                bad += 1
                if verbose: print(f"HAZARD need {n} have {dist}: line {p.idx}: {p.line}  ->  line {c.idx}: {c.line}")
            dist += p.states
            if dist >= 21: break
    return bad

import subprocess, tempfile, os
def _sizes(text):
    with tempfile.TemporaryDirectory() as d:
        p = os.path.join(d, "a.s"); o = os.path.join(d, "a.o")
        open(p, "w").write(text)
        r = subprocess.run(["clang", "-x", "assembler", "-target", "amdgcn-amd-amdhsa", "-mcpu=gfx950", "-c", p, "-o", o], capture_output=True, text=True)
        if r.returncode: raise RuntimeError(r.stderr[:3000])
        dis = subprocess.run(["llvm-objdump", "-d", "--mcpu=gfx950", o], capture_output=True, text=True).stdout
    out = []
    for l in dis.split("\n"):
        m = re.search(r"//\s+([0-9A-F]{12}):\s+((?:[0-9A-F]{8}\s*)+)", l)
        if m: out.append((l.strip().split()[0], 4 * len(m.group(2).split())))
    return out
def is_instr(l):
    t = l.split(";")[0].strip()
    return bool(t) and not t.endswith(":") and not t.startswith(".")
NOPROMO = ("v_readfirstlane", "v_permlane", "v_dot2c", "v_nop", "v_accvgpr", "v_swap", "v_fmamk", "v_fmaak", "v_madmk", "v_madak")
def align8(lines, minrun=3):
    hdr = '.amdgcn_target "amdgcn-amd-amdhsa--gfx950"\n.text\n'
    sz = _sizes(hdr + "\n".join(l for l in lines if not l.strip().startswith(".p2align")) + "\n")
    idx = [i for i, l in enumerate(lines) if is_instr(l)]
    assert len(sz) == len(idx), (len(sz), len(idx))
    size = {i: s_ for i, (m, s_) in zip(idx, sz)}; mn = {i: m for i, (m, s_) in zip(idx, sz)}
    res = []; off = 0; cand = None; npromo = nnop = 0
    for i, l in enumerate(lines):
        if l.strip().startswith(".p2align"):
            off = 0; cand = None; res.append(l); continue
        if i not in size:
            res.append(l); continue
        if size[i] >= 8 and off % 8 == 4:
            run = 0
            for j in idx[idx.index(i):]:
                if size[j] >= 8: run += 1
                else: break
                if run >= minrun: break
            if cand is not None:
                t = res[cand].strip().split(None, 1)
                res[cand] = "    " + t[0] + "_e64 " + t[1]; off += 4; npromo += 1
            elif run >= minrun:
                k = len(res)
                res.insert(k, "    s_nop 0"); off += 4; nnop += 1
        if size[i] >= 8: cand = None
        elif mn[i].endswith("_e32") and not mn[i].startswith(NOPROMO) and not l.strip().split()[0].endswith(("_e32", "_e64")):
            cand = len(res)
        res.append(l); off += size[i]
    return res, npromo, nnop
```

```python
from asmlib import *
import struct
def fl(x): return "0x%08x" % struct.unpack("<I", struct.pack("<f", x))[0]
LOG2E = 1.4426950408889634

WS_U  = 0x100000; UBLK = 8320
WS_H  = 0x400000
WS_S  = 0xA00000
WS_SIZE = 0x10000000
WSLOT = 12352; NWS = 5; UPOFF = 6176
XSLOT = 16384; NXS = 3
L_W = 0
L_X = L_W + WSLOT * NWS
L_RINGEND = L_X + XSLOT * NXS
KCS = 4160; KROW = 528
L_K = [L_RINGEND, L_RINGEND + 16896]
L_U = [L_RINGEND + 2 * 16896, L_RINGEND + 2 * 16896 + 4608]
L_SSMEND = L_U[1] + 4608
L_ST = L_SSMEND
L_CTL = L_ST + 8192
L_CS = L_CTL + 256
LDS_TOTAL = 163840
sX, sWG, sWU, sWD, sWS, sOUT = 8, 12, 16, 20, 24, 28
KA = 64
P_X, P_ARE, P_AIM, P_BRE, P_BIM, P_CRE, P_CIM, P_LDT, P_DSK, P_BX, P_WG, P_WU, P_WD, P_OUT, P_DBG, P_WS = [KA + 2 * i for i in range(16)]
sWAVE = 3
vLANE = 1

def prologue(A, nwg=256, done="L_done"):
    A(f"s_load_dwordx16 s[64:79], s[0:1], 0")
    A(f"s_load_dwordx16 s[80:95], s[0:1], 64")
    A(f"s_cmp_ge_u32 s2, {nwg}")
    A(f"s_cbranch_scc1 {done}")
    A(f"v_lshrrev_b32 v2, 6, v0")
    A(f"v_and_b32 {v(vLANE)}, 63, v0")
    A(f"v_readfirstlane_b32 {s(sWAVE)}, v2")
    for srd, sz in ((sX, 0x200000), (sWG, 1409024), (sWU, 1409024), (sWD, 1409024), (sWS, WS_SIZE), (sOUT, 0x200000)):
        A(f"s_mov_b32 {s(srd+2)}, {sz}")
        A(f"s_mov_b32 {s(srd+3)}, 0x20000")
    A("s_waitcnt lgkmcnt(0)")
    for srd, p in ((sX, P_X), (sWG, P_WG), (sWU, P_WU), (sWD, P_WD), (sWS, P_WS), (sOUT, P_OUT)):
        A(f"s_mov_b64 {s(srd,2)}, {s(p,2)}")

def ln_loads(A, sB, X=16, vOff=2, sT=32):
    A(f"v_lshlrev_b32 {v(vOff)}, 4, {v(vLANE)}")
    A(f"s_lshl_b32 {s(sT)}, {s(sB)}, 13")
    A(f"s_add_u32 {s(sT+1)}, {s(sT)}, 4096")
    for r in range(8):
        A(f"buffer_load_dwordx4 {v(X+4*r,4)}, {v(vOff)}, {s(sX,4)}, {s(sT + r//4)} offen offset:{(r%4)*1024}")

def reduce8(A, S):
    A("s_nop 2")
    for i in range(4): A(f"v_permlane32_swap_b32 {v(S+i)}, {v(S+i+4)}")
    for i in range(4): A(f"v_add_f32 {v(S+i)}, {v(S+i)}, {v(S+i+4)}")
    A("s_nop 0")
    for i in range(2): A(f"v_permlane16_swap_b32 {v(S+i)}, {v(S+i+2)}")
    for i in range(2): A(f"v_add_f32 {v(S+i)}, {v(S+i)}, {v(S+i+2)}")
    for k in (8, 4, 2, 1):
        A("s_nop 0")
        for i in range(2): A(f"v_add_f32_dpp {v(S+i)}, {v(S+i)}, {v(S+i)} row_ror:{k} row_mask:0xf bank_mask:0xf")

def ln_compute(A, sB, sc, X=16, D=48, T=112, vOff=2, sM=36, sT=32, extra_vm=0):
    S = T; ONE = T + 8; LO = T + 9; HI = T + 10; MU = T + 12; M = T + 14; Q = X
    A(f"v_mov_b32 {v(ONE)}, 0x3f803f80")
    A(f"v_mov_b32 {v(LO)}, 0x3f80")
    A(f"v_mov_b32 {v(HI)}, 0x3f800000")
    for q in range(4):
        for r in range(8):
            if q == 0: A(f"s_waitcnt vmcnt({7-r+extra_vm})")
            A(f"v_dot2_f32_bf16 {v(S+r)}, {v(X+4*r+q)}, {v(ONE)}, {'0' if q == 0 else v(S+r)}")
    reduce8(A, S)
    for i in range(2): A(f"v_mul_f32 {v(MU+i)}, {fl(1/512)}, {v(S+i)}")
    A(f"v_cvt_pk_bf16_f32 {v(S+2)}, {v(MU)}, {v(MU+1)}")
    A(f"v_lshlrev_b32 {v(M)}, 16, {v(S+2)}")
    A(f"v_and_b32 {v(M+1)}, 0xffff0000, {v(S+2)}")
    for i in range(2): A(f"v_xor_b32 {v(S+4+i)}, 0x80000000, {v(M+i)}")
    A("s_nop 0")
    for r in range(8): A(f"v_readlane_b32 {s(sM+r)}, {v(S+4+(r&1))}, {16*(r>>1)}")
    for i in range(2): A(f"v_sub_f32 {v(MU+i)}, {v(MU+i)}, {v(M+i)}")
    for r in range(8):
        for q in range(4):
            A(f"v_dot2_f32_bf16 {v(D+8*r+2*q)}, {v(X+4*r+q)}, {v(LO)}, {s(sM+r)}")
            A(f"v_dot2_f32_bf16 {v(D+8*r+2*q+1)}, {v(X+4*r+q)}, {v(HI)}, {s(sM+r)}")
    for q in range(4):
        for r in range(8):
            d = v(D+8*r+2*q, 2)
            if q == 0: A(f"v_pk_mul_f32 {v(Q+2*r,2)}, {d}, {d}")
            else: A(f"v_pk_fma_f32 {v(Q+2*r,2)}, {d}, {d}, {v(Q+2*r,2)}")
    for r in range(8): A(f"v_add_f32 {v(S+r)}, {v(Q+2*r)}, {v(Q+2*r+1)}")
    reduce8(A, S)
    for i in range(2): A(f"v_mul_f32 {v(S+i)}, {fl(1/512)}, {v(S+i)}")
    for i in range(2): A(f"v_fma_f32 {v(S+i)}, -{v(MU+i)}, {v(MU+i)}, {v(S+i)}")
    for i in range(2): A(f"v_max_f32 {v(S+i)}, 0, {v(S+i)}")
    def rb2():
        A(f"v_cvt_pk_bf16_f32 {v(S+2)}, {v(S)}, {v(S+1)}")
        A(f"v_lshlrev_b32 {v(S)}, 16, {v(S+2)}")
        A(f"v_and_b32 {v(S+1)}, 0xffff0000, {v(S+2)}")
    rb2()
    for i in range(2): A(f"v_add_f32 {v(S+i)}, {fl(1e-5)}, {v(S+i)}")
    rb2()
    for i in range(2): A(f"v_sqrt_f32 {v(S+i)}, {v(S+i)}")
    A("s_nop 0")
    rb2()
    A(f"v_rcp_f32 {v(S+5)}, {v(S)}")
    A(f"v_rcp_f32 {v(S+7)}, {v(S+1)}")
    A(f"v_mov_b32 {v(S+4)}, {v(M)}")
    A(f"v_mov_b32 {v(S+6)}, {v(M+1)}")
    for r in range(8): A(f"v_readlane_b32 {s(sM+r)}, {v(S+5+2*(r&1))}, {16*(r>>1)}")
    A(f"s_mul_i32 {s(sT)}, {s(sB)}, {UBLK}")
    A(f"s_add_u32 {s(sT)}, {s(sT)}, {WS_U}")
    A(f"s_add_u32 {s(sT+1)}, {s(sT)}, 4096")
    A(f"s_add_u32 {s(sT+2)}, {s(sT)}, 8192")
    for r in range(8):
        sel = "op_sel_hi:[1,0]" if r % 2 == 0 else "op_sel:[0,1] op_sel_hi:[1,1]"
        for q in range(4):
            d = v(D+8*r+2*q, 2)
            A(f"v_pk_mul_f32 {d}, {d}, {s(sM+(r&~1),2)} {sel}")
    for e in range(8):
        for p in range(4): A(f"v_cvt_pk_bf16_f32 {v(X+4*e+p)}, {v(D+16*p+e)}, {v(D+16*p+8+e)}")
        A(f"buffer_store_dwordx4 {v(X+4*e,4)}, {v(vOff)}, {s(sWS,4)}, {s(sT+e//4)} offen offset:{(e%4)*1024} {sc}")
    A(f"s_mov_b32 exec_lo, 0x00010001")
    A(f"s_mov_b32 exec_hi, 0x00010001")
    A(f"buffer_store_dwordx4 {v(S+4,4)}, {v(vLANE)}, {s(sWS,4)}, {s(sT+2)} offen {sc}")
    A(f"s_mov_b64 exec, -1")

CROWS = [[0,1,2,3,4,5,6,7, 512,516,520, 1024,1032, 1536,1544],
         [256,256,258,260,260,260,262,264, 768,772,776, 1280,1288, 1792,1800]]
def mrow(h, reg): return 8 * (reg >> 2) + 4 * h + (reg & 3)

def cmul(A, d, p, z):
    assert d != p and d != z
    A(f"v_pk_mul_f32 {v(d,2)}, {v(p,2)}, {v(z,2)} op_sel:[0,0] op_sel_hi:[0,1]")
    return lambda: A(f"v_pk_fma_f32 {v(d,2)}, {v(p,2)}, {v(z,2)}, {v(d,2)} op_sel:[1,1,0] op_sel_hi:[1,0,1] neg_lo:[0,1,0]")

def cmul2(A, ds, ps, zs):
    fin = [cmul(A, d, p, z) for d, p, z in zip(ds, ps, zs)]
    for f_ in fin: f_()

def kgen_loads(A, sD, P=8, vOff=2, sT=32):
    A(f"s_lshl_b32 {s(sT+2)}, {s(sD)}, 8")
    A(f"v_lshl_add_u32 {v(vOff)}, {v(vLANE)}, 2, {s(sT+2)}")
    for i, p in enumerate((P_ARE, P_AIM, P_BRE, P_BIM, P_CRE, P_CIM)):
        A(f"global_load_dword {v(P+i)}, {v(vOff)}, {s(p,2)}")
    A(f"s_lshr_b32 {s(sT+2)}, {s(sD)}, 1")
    A(f"s_lshl_b32 {s(sT+2)}, {s(sT+2)}, 2")
    A(f"s_load_dword {s(sT)}, {s(P_LDT,2)}, {s(sT+2)}")
    A(f"s_load_dword {s(sT+1)}, {s(P_DSK,2)}, {s(sT+2)}")

def kgen_compute(A, sD, sKB, P=8, sT=32, extra_vm=0, post_y=None):
    DT = 14; vW = 15; vR = 16
    U = 18
    Z1, Z8, ZB, W = 30, 34, 38, 42
    T = 46
    YF = 64
    XW = 128
    XW2 = 164
    XF = 184
    ACC = 200
    PK = 216
    A("s_waitcnt lgkmcnt(0)")
    A(f"s_bitcmp1_b32 {s(sD)}, 0")
    A(f"s_cselect_b32 {s(sT+2)}, 0, 16")
    A(f"s_lshl_b32 {s(sT)}, {s(sT)}, {s(sT+2)}")
    A(f"s_lshl_b32 {s(sT+1)}, {s(sT+1)}, {s(sT+2)}")
    A(f"s_and_b32 {s(sT)}, {s(sT)}, 0xffff0000")
    A(f"s_and_b32 {s(sT+1)}, {s(sT+1)}, 0xffff0000")
    hi = struct.unpack("<f", struct.pack("<f", LOG2E))[0]; lo = LOG2E - hi
    A(f"v_mov_b32 {v(T)}, {fl(hi)}")
    A(f"v_mul_f32 {v(T+1)}, {s(sT)}, {v(T)}")
    A(f"v_fma_f32 {v(T+2)}, {s(sT)}, {v(T)}, -{v(T+1)}")
    A(f"v_mov_b32 {v(T+3)}, {fl(lo)}")
    A(f"v_fma_f32 {v(T+2)}, {s(sT)}, {v(T+3)}, {v(T+2)}")
    A(f"v_exp_f32 {v(T+1)}, {v(T+1)}")
    A(f"v_mul_f32 {v(T+2)}, {fl(0.6931471805599453)}, {v(T+2)}")
    A(f"v_fma_f32 {v(T+1)}, {v(T+1)}, {v(T+2)}, {v(T+1)}")
    A(f"v_cvt_pk_bf16_f32 {v(T+1)}, {v(T+1)}, {v(T+1)}")
    A(f"v_and_b32 {v(DT)}, 0xffff0000, {v(T+1)}")
    A(f"v_lshl_add_u32 {v(vW)}, {v(vLANE)}, 3, {s(sKB)}")
    A(f"v_and_b32 {v(T)}, 31, {v(vLANE)}")
    A(f"v_mul_u32_u24 {v(T)}, {KROW}, {v(T)}")
    A(f"v_lshrrev_b32 {v(T+1)}, 5, {v(vLANE)}")
    A(f"v_lshlrev_b32 {v(T+1)}, 4, {v(T+1)}")
    A(f"v_add3_u32 {v(vR)}, {v(T)}, {v(T+1)}, {s(sKB)}")
    A(f"v_mov_b32 {v(PK)}, 0x3f80")
    A(f"v_mov_b32 {v(PK+1)}, 0x3f80")
    A(f"ds_write_b64 {v(vW)}, {v(PK,2)}")
    A(f"s_waitcnt vmcnt({extra_vm})")
    for i in range(6):
        A(f"v_lshlrev_b32 {v(U+2*i)}, 16, {v(P+i)}")
        A(f"v_and_b32 {v(U+2*i+1)}, 0xffff0000, {v(P+i)}")
    for u in range(2):
        A(f"v_mul_f32 {v(U+u)}, {v(DT)}, {v(U+u)}")
        A(f"v_mul_f32 {v(U+2+u)}, {v(DT)}, {v(U+2+u)}")
    for u in range(2):
        A(f"v_mul_f32 {v(U+u)}, {fl(LOG2E)}, {v(U+u)}")
        A(f"v_mul_f32 {v(U+2+u)}, {fl(0.15915494309189535)}, {v(U+2+u)}")
    def anchor(Z, e):
        for u in range(2):
            t = T + 4 * u
            A(f"v_mul_f32 {v(t)}, {fl(e)}, {v(U+u)}")
            A(f"v_mul_f32 {v(t+1)}, {fl(e)}, {v(U+2+u)}")
            A(f"v_exp_f32 {v(t)}, {v(t)}")
            A(f"v_rndne_f32 {v(t+2)}, {v(t+1)}")
            A(f"v_sub_f32 {v(t+1)}, {v(t+1)}, {v(t+2)}")
            A(f"v_cos_f32 {v(t+2)}, {v(t+1)}")
            A(f"v_sin_f32 {v(t+3)}, {v(t+1)}")
        A("s_nop 0")
        for u in range(2):
            t = T + 4 * u
            A(f"v_pk_mul_f32 {v(Z+2*u,2)}, {v(t+2,2)}, {v(t,2)} op_sel_hi:[1,0]")
    anchor(Z8, 8.0)
    pk = [0]
    def emit_row(rows, src, neg):
        b = PK + 2 * (pk[0] % 4); pk[0] += 1
        for u in range(2):
            A(f"v_cvt_pk_bf16_f32 {v(b+u)}, {v(src+2*u)}, {'-' if neg else ''}{v(src+2*u+1)}")
        for r in rows: A(f"ds_write_b64 {v(vW)}, {v(b,2)} offset:{r*KROW}")
    pk[0] = 1
    emit_row([1], Z8, False)
    cur = Z8
    Ya, Yb = T + 8, T + 12
    for j in range(2, 32):
        nxt = Ya if j % 2 == 0 else Yb
        cmul2(A, [nxt, nxt+2], [cur, cur+2], [Z8, Z8+2])
        emit_row([j], nxt, False)
        cur = nxt
    for k in range(16): A(f"ds_read_b128 {v(YF+4*k,4)}, {v(vR)} offset:{32*k}")
    if post_y: post_y()
    anchor(Z1, 1.0)
    anchor(ZB, 256.0)
    for u in range(2):
        A(f"v_mul_f32 {v(T+2*u)}, {v(DT)}, {v(U+4+u)}")
        A(f"v_mul_f32 {v(T+2*u+1)}, {v(DT)}, {v(U+6+u)}")
        A(f"v_mov_b32 {v(T+4+2*u)}, {v(U+8+u)}")
        A(f"v_mov_b32 {v(T+5+2*u)}, {v(U+10+u)}")
    x = lambda i: XW + 4 * i
    cmul2(A, [x(0), x(0)+2], [T+4, T+6], [T, T+2])
    where = {}
    for h in range(2):
        for reg, c in enumerate(CROWS[h]): where.setdefault(c, []).append(mrow(h, reg))
    emit_row(where[0], x(0), True)
    for i in range(1, 8):
        cmul2(A, [x(i), x(i)+2], [x(i-1), x(i-1)+2], [Z1, Z1+2])
        emit_row(where[i], x(i), True)
    cmul2(A, [x(8), x(8)+2], [x(0), x(0)+2], [Z8, Z8+2])
    loc = {i: x(i) for i in (0, 2, 4, 6, 8)}
    alt = {0: XW2, 2: XW2+4, 4: XW2+8, 6: XW2+12, 8: XW2+16}
    for q in range(1, 8):
        offs = (0,2,4,6,8) if q == 1 else (0,4,8) if q < 4 else (0,8)
        for o in offs:
            cmul2(A, [alt[o], alt[o]+2], [loc[o], loc[o]+2], [ZB, ZB+2])
            loc[o], alt[o] = alt[o], loc[o]
            emit_row(where[256*q+o], loc[o], True)
    for k in range(4): A(f"ds_read_b128 {v(XF+4*k,4)}, {v(vR)} offset:{32*k}")
    for k in range(16):
        A(f"s_waitcnt lgkmcnt({min(3, 15-k)})")
        c = "0" if k == 0 else v(ACC, 16)
        A(f"v_mfma_f32_32x32x16_bf16 {v(ACC,16)}, {v(XF+4*(k%4),4)}, {v(YF+4*k,4)}, {c}")
        if k + 4 < 16: A(f"ds_read_b128 {v(XF+4*(k%4),4)}, {v(vR)} offset:{32*(k+4)}")
    A(f"v_and_b32 {v(T)}, 31, {v(vLANE)}")
    A(f"v_lshlrev_b32 {v(T)}, 4, {v(T)}")
    A(f"v_lshrrev_b32 {v(T+1)}, 5, {v(vLANE)}")
    A(f"v_lshlrev_b32 {v(T+1)}, 9, {v(T+1)}")
    A(f"v_add_u32 {v(T)}, {v(T)}, {v(T+1)}")
    A(f"v_sub_u32 {v(T)}, {4080-3072}, {v(T)}")
    A(f"v_add_u32 {v(T)}, {s(sKB)}, {v(T)}")
    A(f"v_and_b32 {v(T+1)}, 1, {v(vLANE)}")
    A(f"v_cmp_eq_u32 vcc, 1, {v(T+1)}")
    A(f"v_mov_b32 {v(T+2)}, 0")
    A(f"v_writelane_b32 {v(T+2)}, {s(sT+1)}, 0")
    for i in range(4): A(f"v_mov_b32 {v(T+12+i)}, 0")
    A(f"v_add_f32 {v(ACC)}, {v(ACC)}, {v(T+2)}")
    C = YF
    for p in range(4): A(f"v_cvt_pk_bf16_f32 {v(C+p)}, {v(ACC+7-2*p)}, {v(ACC+6-2*p)}")
    A(f"ds_write_b128 {v(T)}, {v(C,4)} offset:3072")
    for p, (a_, b_) in enumerate(((10,10),(9,9),(9,8),(8,8))): A(f"v_cvt_pk_bf16_f32 {v(C+4+p)}, {v(ACC+a_)}, {v(ACC+b_)}")
    A(f"ds_write_b128 {v(T)}, {v(C+4,4)} offset:2048")
    for qq, lo_ in ((2, 11), (3, 13)):
        c = C + 4 * qq
        A(f"v_cndmask_b32 {v(T+3)}, {v(ACC+lo_)}, {v(ACC+lo_+1)}, vcc")
        A(f"v_cvt_pk_bf16_f32 {v(c)}, {v(ACC+lo_+1)}, {v(ACC+lo_+1)}")
        A(f"v_cvt_pk_bf16_f32 {v(c+1)}, {v(ACC+lo_+1)}, {v(T+3)}")
        A(f"v_cvt_pk_bf16_f32 {v(c+2)}, {v(ACC+lo_)}, {v(ACC+lo_)}")
        A(f"v_cvt_pk_bf16_f32 {v(c+3)}, {v(ACC+lo_)}, {v(ACC+lo_)}")
        A(f"ds_write_b128 {v(T)}, {v(c,4)} offset:{1024*(3-qq)}")
    A(f"v_lshrrev_b32 {v(T+4)}, 2, {v(vLANE)}")
    A(f"v_mul_u32_u24 {v(T+4)}, {KCS}, {v(T+4)}")
    A(f"v_and_b32 {v(T+5)}, 3, {v(vLANE)}")
    A(f"v_lshlrev_b32 {v(T+5)}, 4, {v(T+5)}")
    A(f"v_add3_u32 {v(T+4)}, {v(T+4)}, {v(T+5)}, {s(sKB)}")
    A(f"s_mov_b64 exec, 0xffff")
    A(f"ds_write_b128 {v(T+4)}, {v(T+12,4)} offset:4096")
    A(f"s_mov_b64 exec, -1")
    A(f"v_lshl_add_u32 {v(T)}, {v(vLANE)}, 4, {s(sKB)}")
    Rr = YF + 16
    for it in range(4):
        A(f"ds_read_b128 {v(Rr+8*it,4)}, {v(T)} offset:{1024*it}")
        A(f"ds_read_b64 {v(Rr+8*it+4,2)}, {v(T)} offset:{1024*it+16}")
    for it in range(4):
        R = Rr + 8 * it; O = XW + 12 * it
        A(f"s_waitcnt lgkmcnt({min(15, 6 - 2*it + 3*it)})")
        for k in range(4): A(f"v_alignbit_b32 {v(O+k)}, {v(R+k+1)}, {v(R+k)}, 16")
        A(f"ds_write_b128 {v(T)}, {v(O,4)} offset:{KCS+1024*it}")
        for k in range(4): A(f"v_mov_b32 {v(O+4+k)}, {v(R+k+1)}")
        A(f"ds_write_b128 {v(T)}, {v(O+4,4)} offset:{2*KCS+1024*it}")
        for k in range(4): A(f"v_alignbit_b32 {v(O+8+k)}, {v(R+k+2)}, {v(R+k+1)}, 16")
        A(f"ds_write_b128 {v(T)}, {v(O+8,4)} offset:{3*KCS+1024*it}")

def u_zero(A, sUB, T=46):
    for i in range(4): A(f"v_mov_b32 {v(T+i)}, 0")
    A(f"v_lshl_add_u32 {v(T+4)}, {v(vLANE)}, 4, {s(sUB)}")
    A(f"s_mov_b64 exec, 0xffffffff")
    A(f"ds_write_b128 {v(T+4)}, {v(T,4)}")
    A(f"s_mov_b64 exec, -1")

def u_gather(A, sD, sUB, sc, vT=46, sT=32):
    A(f"v_mul_u32_u24 {v(vT)}, {UBLK}, {v(vLANE)}")
    A(f"s_and_b32 {s(sT)}, {s(sD)}, 7")
    A(f"s_lshl_b32 {s(sT)}, {s(sT)}, 10")
    A(f"s_lshr_b32 {s(sT+1)}, {s(sD)}, 3")
    A(f"s_lshl_b32 {s(sT+1)}, {s(sT+1)}, 4")
    A(f"s_add_u32 {s(sT)}, {s(sT)}, {s(sT+1)}")
    A(f"s_add_u32 {s(sT)}, {s(sT)}, {WS_U}")
    for i in range(4):
        A(f"s_add_u32 m0, {s(sUB)}, {512+1024*i}")
        if i: A(f"s_add_u32 {s(sT)}, {s(sT)}, {64*UBLK}")
        else: A("s_nop 0")
        A(f"buffer_load_dwordx4 {v(vT)}, {s(sWS,4)}, {s(sT)} offen {sc} lds")

CV_ACC = 32; CV_F = 64
def conv_main(A, sKB, sUB, sNH, filler=None, vA=8, vB=9, T=10):
    A(f"v_and_b32 {v(T)}, 3, {v(vLANE)}")
    A(f"v_sub_u32 {v(T)}, 3, {v(T)}")
    A(f"v_mul_u32_u24 {v(T)}, {KCS}, {v(T)}")
    A(f"v_bfe_u32 {v(T+1)}, {v(vLANE)}, 2, 2")
    A(f"v_lshlrev_b32 {v(T+1)}, 3, {v(T+1)}")
    A(f"v_sub_u32 {v(T)}, {v(T)}, {v(T+1)}")
    A(f"v_and_b32 {v(T+2)}, 48, {v(vLANE)}")
    A(f"s_lshl_b32 s32, {s(sNH)}, 8")
    A(f"s_sub_u32 s33, {s(sKB)}, s32")
    A(f"s_add_u32 s33, s33, {24+256}")
    A(f"v_add3_u32 {v(vA)}, {v(T)}, {v(T+2)}, s33")
    A(f"v_and_b32 {v(T)}, 15, {v(vLANE)}")
    A(f"v_lshlrev_b32 {v(T)}, 5, {v(T)}")
    A(f"s_sub_u32 s33, {s(sUB)}, s32")
    A(f"s_add_u32 s33, s33, {480-192}")
    A(f"v_add3_u32 {v(vB)}, {v(T)}, {v(T+2)}, s33")
    def reads(i):
        F = CV_F + 64 * (i & 1); L = []
        order = [("B", 0), ("A", 0)]
        for k in range(1, 8): order += [("B", k), ("A", k)]
        for kind, k in order:
            if kind == "A":
                o = 64 * (59 - i - 8 * k)
                L.append(f"ds_read_b64 {v(F+4*k,2)}, {v(vA)} offset:{o}")
                L.append(f"ds_read_b64 {v(F+4*k+2,2)}, {v(vA)} offset:{o+8}")
            else:
                L.append(f"ds_read_b128 {v(F+32+4*k,4)}, {v(vB)} offset:{512*k+64*(3-i)}")
        return L
    for l in reads(0): A(l)
    first = set()
    nm = 0
    for i in range(4):
        F = CV_F + 64 * (i & 1)
        nxt = reads(i + 1) if i < 3 else []
        pairs = sorted([(a, b) for a in range(8) for b in range(8) if a + b <= 7], key=lambda p: (max(p), p[0] + p[1]))
        if i > 0: A("s_waitcnt lgkmcnt(0)")
        lastmax = -1
        for n, (a, b) in enumerate(pairs):
            if i == 0 and max(a, b) > lastmax and lastmax < 4:
                lastmax = max(a, b)
                A(f"s_waitcnt lgkmcnt({0 if lastmax == 4 else min(15, 3*(7-lastmax))})")
            c = a + b
            acc = v(CV_ACC + 4 * c, 4)
            src = acc if c in first else "0"
            first.add(c)
            A(f"v_mfma_f32_16x16x32_bf16 {acc}, {v(F+4*a,4)}, {v(F+32+4*b,4)}, {src}")
            nm += 1
            if nxt and (i > 0 or lastmax == 4):
                A(nxt.pop(0))
                if i == 0 and nxt: A(nxt.pop(0))
            if filler: filler(nm)
        assert not nxt

def conv_finish(A, sD, sNH, sXB, sync, sc, T=10, sT=32):
    A(f"v_lshl_add_u32 {v(T)}, {v(vLANE)}, 4, {s(sXB)}")
    A(f"s_lshl_b32 {s(sT)}, {s(sNH)}, 12")
    A(f"v_add_u32 {v(T+1)}, {s(sT)}, {v(T)}")
    A(f"s_xor_b32 {s(sT)}, {s(sT)}, 4096")
    A(f"v_add_u32 {v(T)}, {s(sT)}, {v(T)}")
    l1 = A.new("L_cf"); l2 = A.new("L_cf")
    A(f"s_cmp_eq_u32 {s(sNH)}, 0")
    A("s_nop 4")
    A(f"s_cbranch_scc1 {l1}")
    for k in range(4): A(f"ds_write_b128 {v(T+1)}, {v(CV_ACC+4*k,4)} offset:{1024*k}")
    A("s_nop 1")
    for k in range(16): A(f"v_mov_b32 {v(CV_F+16+k)}, {v(CV_ACC+16+k)}")
    A(f"s_branch {l2}")
    A.label(l1)
    for k in range(4): A(f"ds_write_b128 {v(T+1)}, {v(CV_ACC+16+4*k,4)} offset:{1024*k}")
    for k in range(16): A(f"v_mov_b32 {v(CV_F+16+k)}, {v(CV_ACC+k)}")
    A.label(l2)
    A("s_waitcnt lgkmcnt(0)")
    sync()
    for k in range(4): A(f"ds_read_b128 {v(CV_F+4*k,4)}, {v(T)} offset:{1024*k}")
    A(f"v_and_b32 {v(T+2)}, 15, {v(vLANE)}")
    A(f"v_lshlrev_b32 {v(T+2)}, 5, {v(T+2)}")
    A(f"v_bfe_u32 {v(T+3)}, {v(vLANE)}, 4, 1")
    A(f"v_lshlrev_b32 {v(T+3)}, 9, {v(T+3)}")
    A(f"v_lshrrev_b32 {v(T+4)}, 5, {v(vLANE)}")
    A(f"v_lshlrev_b32 {v(T+4)}, 4, {v(T+4)}")
    A(f"v_add3_u32 {v(T+2)}, {v(T+2)}, {v(T+3)}, {v(T+4)}")
    A(f"s_lshl_b32 {s(sT)}, {s(sD)}, 12")
    A(f"s_lshl_b32 {s(sT+1)}, {s(sNH)}, 11")
    A(f"s_add_u32 {s(sT)}, {s(sT)}, {s(sT+1)}")
    A(f"s_add_u32 {s(sT)}, {s(sT)}, {WS_S}")
    A("s_waitcnt lgkmcnt(0)")
    for k in range(8): A(f"v_pk_add_f32 {v(CV_F+2*k,2)}, {v(CV_F+2*k,2)}, {v(CV_F+16+2*k,2)}")
    O = CV_F + 32
    for k in range(8): A(f"v_cvt_pk_bf16_f32 {v(O+k)}, {v(CV_F+2*k)}, {v(CV_F+2*k+1)}")
    A("s_nop 1")
    for pr in range(2):
        A(f"v_permlane16_swap_b32 {v(O+4*pr)}, {v(O+4*pr+2)}")
        A(f"v_permlane16_swap_b32 {v(O+4*pr+1)}, {v(O+4*pr+3)}")
    for pr in range(2):
        A(f"buffer_store_dwordx4 {v(O+4*pr,4)}, {v(T+2)}, {s(sWS,4)}, {s(sT)} offen offset:{1024*pr} {sc}")

C_FULL = L_CTL
C_FREE = L_CTL + 16
L_JUNK = L_CTL + 256
def sig_addr(A, vD, sAddr):
    A(f"v_lshlrev_b32 {v(vD)}, 2, {v(vLANE)}")
    A(f"v_add_u32 {v(vD)}, {L_JUNK}, {v(vD)}")
    A(f"v_writelane_b32 {v(vD)}, {sAddr}, 0")
def poll_addr(A, vD, base, n):
    A(f"v_and_b32 {v(vD)}, {n-1}, {v(vLANE)}")
    A(f"v_lshlrev_b32 {v(vD)}, 2, {v(vD)}")
    A(f"v_add_u32 {v(vD)}, {base}, {v(vD)}")
def lds_spin(A, vAddr, vT, n):
    lp = A.new("L_sp")
    A.label(lp)
    A(f"ds_read_b32 {v(vT)}, {v(vAddr)}")
    A("s_waitcnt lgkmcnt(0)")
    A(f"v_cmp_gt_u32 vcc, {n}, {v(vT)}")
    A(f"s_cbranch_vccnz {lp}")
def ctl_init(A, T=4):
    A(f"v_lshlrev_b32 {v(T)}, 2, {v(vLANE)}")
    A(f"v_add_u32 {v(T)}, {L_CTL}, {v(T)}")
    A(f"v_mov_b32 {v(T+1)}, 0")
    A(f"ds_write_b32 {v(T)}, {v(T+1)}")
NSTAGE = 16
L_CSX = L_ST

def lds_signal(A, vAddr, vTmp, val, off):
    A(f"v_mov_b32 {v(vTmp)}, {val}")
    A(f"ds_write_b32 {v(vAddr)}, {v(vTmp)} offset:{off}")

def g1_loader(A, which, sRT, sFC, sROT, D=13, Vw=8, Vx=12, vZ=16, T=18, sT=40, pre=None, post=None):
    srdW = sWG if which == 0 else sWU
    A(f"s_mov_b32 {s(sT)}, 2752")
    A(f"s_mov_b32 {s(sT+1)}, 0x15555556")
    for j in range(3):
        A(f"v_add_u32 {v(T)}, {64*j}, {v(vLANE)}")
        A(f"v_mul_hi_u32 {v(T+1)}, {v(T)}, {s(sT+1)}")
        A(f"v_mul_u32_u24 {v(T+2)}, 12, {v(T+1)}")
        A(f"v_sub_u32 {v(T+2)}, {v(T)}, {v(T+2)}")
        A(f"v_mul_u32_u24 {v(T+1)}, {s(sT)}, {v(T+1)}")
        A(f"v_lshl_add_u32 {v(Vw+j)}, {v(T+2)}, 4, {v(T+1)}")
        if j: A(f"v_subrev_u32 {v(Vw+j)}, {1024*j}, {v(Vw+j)}")
    A(f"v_lshrrev_b32 {v(T)}, 3, {v(vLANE)}")
    A(f"v_lshlrev_b32 {v(T)}, 10, {v(T)}")
    A(f"v_lshrrev_b32 {v(T+1)}, 4, {v(vLANE)}")
    A(f"v_and_b32 {v(T+2)}, 7, {v(vLANE)}")
    A(f"v_xor_b32 {v(T+1)}, {v(T+1)}, {v(T+2)}")
    A(f"v_lshl_add_u32 {v(Vx)}, {v(T+1)}, 4, {v(T)}")
    A(f"v_xor_b32 {v(Vx+1)}, 64, {v(Vx)}")
    A(f"v_add_u32 {v(Vx+2)}, {2*7168}, {v(Vx)}")
    A(f"v_add_u32 {v(Vx+3)}, {3*7168}, {v(Vx+1)}")
    A(f"v_add_u32 {v(Vx+1)}, {7168}, {v(Vx+1)}")
    A(f"s_mov_b32 {s(sT)}, {C_FULL + 4*which}")
    sig_addr(A, vZ, s(sT))
    poll_addr(A, vZ+1, C_FREE, 4)
    sXB, sWB, sC, sXo, sWo = sT+2, sT+3, sT+4, sT+5, sT+6
    A(f"s_lshl_b32 {s(sXB)}, {s(sRT)}, 17")
    if which: A(f"s_add_u32 {s(sXB)}, {s(sXB)}, 65536")
    A(f"s_mul_i32 {s(sWB)}, {s(sFC)}, 192")
    A(f"s_mov_b32 {s(sC)}, {s(sROT)}")
    npre = (pre() or 0) if pre else 0
    ops = []
    for st in range(NSTAGE):
        if st % 2 == 0:
            for i in range(8): ops.append((st, "x", i))
        for i in range(6): ops.append((st, "w", i))
    last_of = {}
    for n, (st, k, i) in enumerate(ops): last_of[st] = n
    signaled = 0
    for n, (st, k, i) in enumerate(ops):
        firstop = n == 0 or ops[n-1][0] != st
        if firstop and st % 2 == 0:
            A(f"s_lshl_b32 {s(sXo)}, {s(sC)}, 7")
            A(f"s_add_u32 {s(sXo)}, {s(sXo)}, {s(sXB)}")
            A(f"s_mul_i32 {s(sWo)}, {s(sC)}, {64*2752}")
            A(f"s_add_u32 {s(sWo)}, {s(sWo)}, {s(sWB)}")
            A(f"s_add_u32 {s(sC)}, {s(sC)}, 1")
            A(f"s_and_b32 {s(sC)}, {s(sC)}, 7")
        if firstop and st >= NWS:
            lds_spin(A, vZ+1, T, st-NWS+1)
        if n >= D:
            A(f"s_waitcnt vmcnt({D-1})")
            done = n - D
            if done == last_of[signaled]:
                signaled += 1
                lds_signal(A, vZ, T, signaled, 0)
        if k == "x":
            if i % 4 == 0:
                A(f"s_mov_b32 m0, {L_X + ((st//2) % NXS) * XSLOT + (8*which + i) * 1024}")
                if i: A(f"s_add_u32 {s(sXo)}, {s(sXo)}, 32768")
                else: A("s_nop 0")
            A(f"buffer_load_dwordx4 {v(Vx + i%4)}, {s(sX,4)}, {s(sXo)} offen offset:{1024*(i%4)} lds")
        else:
            if i % 3 == 0:
                A(f"s_mov_b32 m0, {L_W + (st % NWS) * WSLOT + which * UPOFF + (i//3) * 3072}")
                if i or st % 2: A(f"s_add_u32 {s(sWo)}, {s(sWo)}, {16*2752}")
                else: A("s_nop 0")
            A(f"buffer_load_dwordx4 {v(Vw + i%3)}, {s(srdW,4)}, {s(sWo)} offen offset:{1024*(i%3)} lds")
    npost = (post() or 0) if post else 0
    while signaled < NSTAGE:
        A(f"s_waitcnt vmcnt({len(ops) - 1 - last_of[signaled] + npost})")
        signaled += 1
        lds_signal(A, vZ, T, signaled, 0)

G_ACC = 64
G_CS = 160
G_SEL = 172
G_F = 176
def g1_setup(A, sMH, sNH, vW=8, vXs=9, vC=13, T=16):
    A(f"v_bfe_u32 {v(T)}, {v(vLANE)}, 4, 1")
    A(f"v_mul_u32_u24 {v(T)}, {UPOFF}, {v(T)}")
    A(f"v_lshrrev_b32 {v(T+1)}, 5, {v(vLANE)}")
    A(f"v_bfe_u32 {v(T+2)}, {v(vLANE)}, 2, 2")
    A(f"v_lshl_add_u32 {v(T+2)}, {v(T+1)}, 3, {v(T+2)}")
    A(f"v_mul_u32_u24 {v(T+2)}, 192, {v(T+2)}")
    A(f"v_and_b32 {v(T+3)}, 3, {v(vLANE)}")
    A(f"v_lshl_add_u32 {v(T+2)}, {v(T+3)}, 3, {v(T+2)}")
    A(f"s_mul_i32 s32, {s(sMH)}, 96")
    A(f"v_add3_u32 {v(vW)}, {v(T)}, {v(T+2)}, s32")
    A(f"v_and_b32 {v(T)}, 31, {v(vLANE)}")
    A(f"v_bfe_u32 {v(T+2)}, {v(vLANE)}, 1, 3")
    A(f"v_xor_b32 {v(T+2)}, {v(T+2)}, {v(T+1)}")
    A(f"v_lshlrev_b32 {v(T+2)}, 4, {v(T+2)}")
    A(f"v_lshl_add_u32 {v(T)}, {v(T)}, 7, {v(T+2)}")
    A(f"s_lshl_b32 s32, {s(sNH)}, 13")
    A(f"s_add_u32 s32, s32, {L_X}")
    for k in range(4):
        A(f"v_xor_b32 {v(T+3)}, {32*k}, {v(T)}")
        A(f"v_add_u32 {v(vXs+k)}, s32, {v(T+3)}")
    poll_addr(A, vC, C_FULL, 2)
    A(f"s_lshl_b32 s32, {s(sWAVE)}, 2")
    A(f"s_add_u32 s32, s32, {C_FREE}")
    sig_addr(A, vC+1, "s32")
    A(f"v_lshrrev_b32 {v(T)}, 2, {v(vLANE)}")
    A(f"v_lshrrev_b32 {v(T+1)}, 4, {v(vLANE)}")
    A(f"v_xor_b32 {v(T)}, {v(T)}, {v(T+1)}")
    A(f"v_and_b32 {v(T)}, 1, {v(T)}")
    A(f"v_cmp_eq_u32 vcc, 0, {v(T)}")
    A(f"v_mov_b32 {v(T+1)}, 0x3f803f80")
    A("s_nop 0")
    for k in range(4): A(f"v_cndmask_b32 {v(G_SEL+k)}, 0, {v(T+1)}, vcc")

def g1_main(A, sNH, vW=8, vXs=9, vC=13, T=16):
    def reads(ks):
        st, i = ks // 2, ks % 2
        F = G_F + 20 * (ks & 1); L = []
        wo = L_W + (st % NWS) * WSLOT + i * 3072
        xo = ((ks // 4) % NXS) * XSLOT
        L.append(f"ds_read_b128 {v(F+12,4)}, {v(vXs + ks%4)} offset:{xo}")
        for mt in range(3):
            for h in range(2): L.append(f"ds_read_b64_tr_b16 {v(F+4*mt+2*h,2)}, {v(vW)} offset:{wo + h*768 + mt*32}")
            if mt == 0: L.append(f"ds_read_b128 {v(F+16,4)}, {v(vXs + ks%4)} offset:{xo+4096}")
        return L
    def wait_full(n, pre_read):
        ok = A.new("L_gk")
        if pre_read:
            A(f"v_cmp_gt_u32 vcc, {n}, {v(T)}")
            A(f"s_cbranch_vccz {ok}")
        lds_spin(A, vC, T, n)
        A.label(ok)
    for k in range(12): A(f"v_mov_b32 {v(G_CS+k)}, 0")
    wait_full(1, False)
    for l in reads(0): A(l)
    for ks in range(32):
        F = G_F + 20 * (ks & 1)
        A("s_waitcnt lgkmcnt(0)")
        if ks % 2 == 1:
            lds_signal(A, vC+1, T+2, ks // 2 + 1, 0)
            if ks < 31: wait_full(ks // 2 + 2, True)
        nxt = reads(ks + 1) if ks < 31 else []
        if ks % 2 == 0 and ks < 30: nxt.append(f"ds_read_b32 {v(T)}, {v(vC)}")
        for mt in range(3):
            for nt in range(2):
                acc = v(G_ACC + 16*(2*mt+nt), 16)
                A(f"v_mfma_f32_32x32x16_bf16 {acc}, {v(F+4*mt,4)}, {v(F+12+4*nt,4)}, {'0' if ks == 0 else acc}")
                for _ in range(2):
                    if nxt: A(nxt.pop(0))
        assert not nxt
        if ks == 30:
            A(f"s_mul_i32 s32, {s(sWAVE)}, 768")
            A(f"s_add_u32 s32, s32, {L_CSX}")
            A(f"v_lshl_add_u32 {v(T+4)}, {v(vLANE)}, 2, s32")
            for mt in range(3): A(f"ds_write_b32 {v(T+4)}, {v(G_CS+4*mt)} offset:{256*mt}")
        sk = None
        if ks < 30:
            sk = A.new("L_cs")
            A(f"s_cmp_lg_u32 {s(sNH)}, {ks & 1}")
            A(f"s_cbranch_scc1 {sk}")
        for mt in range(3):
            A(f"v_mfma_f32_16x16x32_bf16 {v(G_CS+4*mt,4)}, {v(G_SEL,4)}, {v(F+4*mt,4)}, {v(G_CS+4*mt,4)}")
        if sk: A.label(sk)

def g1_stats_load(A, sRT, sNH, sc, ST=20, T=24):
    A(f"v_bfe_u32 {v(T)}, {v(vLANE)}, 3, 2")
    A(f"v_mul_u32_u24 {v(T)}, {UBLK}, {v(T)}")
    A(f"v_and_b32 {v(T+1)}, 7, {v(vLANE)}")
    A(f"v_lshl_add_u32 {v(T)}, {v(T+1)}, 3, {v(T)}")
    A(f"s_lshl_b32 s32, {s(sRT)}, 1")
    A(f"s_add_u32 s32, s32, {s(sNH)}")
    A(f"s_mul_i32 s32, s32, {8*UBLK}")
    A(f"s_add_u32 s32, s32, {WS_U + 8192}")
    A(f"s_add_u32 s33, s32, {4*UBLK}")
    for nt in range(2): A(f"buffer_load_dwordx2 {v(ST+2*nt,2)}, {v(T)}, {s(sWS,4)}, s{32+nt} offen {sc}")

def g1_epilogue(A, sRT, sFC, sMH, sNH, sc, ST=20, vC=13, T=24):
    A(f"s_xor_b32 s32, {s(sWAVE)}, 2")
    A(f"s_lshl_b32 s33, s32, 2")
    A(f"s_add_u32 s33, s33, {C_FREE}")
    A(f"v_mov_b32 {v(T)}, s33")
    A(f"s_mul_i32 s32, s32, 768")
    A(f"s_add_u32 s32, s32, {L_CSX}")
    A(f"v_lshl_add_u32 {v(T+1)}, {v(vLANE)}, 2, s32")
    lp = A.new("L_pw")
    A.label(lp)
    A(f"ds_read_b32 {v(T+2)}, {v(T)}")
    for mt in range(3): A(f"ds_read_b32 {v(T+4+mt)}, {v(T+1)} offset:{256*mt}")
    A("s_waitcnt lgkmcnt(0)")
    A(f"v_cmp_gt_u32 vcc, 16, {v(T+2)}")
    A(f"s_cbranch_vccnz {lp}")
    BF = G_F; AF = G_F + 8
    A(f"v_cmp_gt_u32 vcc, 32, {v(vLANE)}")
    A("s_nop 0")
    for nt in range(2):
        A(f"v_xor_b32 {v(T+8)}, 0x80000000, {v(ST+2*nt)}")
        A(f"v_cndmask_b32 {v(T+8)}, 0, {v(T+8)}, vcc")
        A(f"v_lshrrev_b32 {v(BF+4*nt+1)}, 16, {v(T+8)}")
        A(f"v_or_b32 {v(BF+4*nt)}, {v(T+8)}, {v(BF+4*nt+1)}")
        A(f"v_mov_b32 {v(BF+4*nt+2)}, 0")
        A(f"v_mov_b32 {v(BF+4*nt+3)}, 0")
        A(f"v_mul_f32 {v(ST+2*nt)}, {fl(-LOG2E)}, {v(ST+2*nt+1)}")
    for mt in range(3):
        c = T + 4 + mt; a = AF + 4 * mt
        A(f"v_add_f32 {v(c)}, {v(c)}, {v(G_CS+4*mt)}")
        A(f"v_and_b32 {v(T+8)}, 0xffff0000, {v(c)}")
        A(f"v_sub_f32 {v(c)}, {v(c)}, {v(T+8)}")
        A(f"v_and_b32 {v(T+9)}, 0xffff0000, {v(c)}")
        A(f"v_sub_f32 {v(c)}, {v(c)}, {v(T+9)}")
        A(f"v_lshrrev_b32 {v(T+8)}, 16, {v(T+8)}")
        A(f"v_or_b32 {v(a)}, {v(T+8)}, {v(T+9)}")
        A(f"v_lshrrev_b32 {v(a+1)}, 16, {v(c)}")
        A(f"v_mov_b32 {v(a+2)}, 0")
        A(f"v_mov_b32 {v(a+3)}, 0")
    A("s_nop 1")
    for mt in range(3):
        for nt in range(2):
            acc = v(G_ACC + 16*(2*mt+nt), 16)
            A(f"v_mfma_f32_32x32x16_bf16 {acc}, {v(AF+4*mt,4)}, {v(BF+4*nt,4)}, {acc}")
    A(f"v_lshlrev_b32 {v(T)}, 4, {v(vLANE)}")
    A(f"s_lshl_b32 s32, {s(sRT)}, 2")
    A(f"s_lshl_b32 s33, {s(sNH)}, 1")
    A(f"s_add_u32 s32, s32, s33")
    A(f"s_mul_i32 s32, s32, 86")
    A(f"s_mul_i32 s33, {s(sFC)}, 6")
    A(f"s_mul_i32 s34, {s(sMH)}, 3")
    A(f"s_add_u32 s33, s33, s34")
    A(f"s_add_u32 s32, s32, s33")
    A(f"s_lshl_b32 s32, s32, 10")
    A(f"s_add_u32 s34, s32, {WS_H}")
    A(f"s_add_u32 s35, s34, {86*1024}")
    A(f"v_mov_b32 {v(T+2)}, 1.0")
    end = A.new("L_e1")
    for mt in range(3):
        A(f"s_cmp_ge_u32 s33, {86-mt}")
        A(f"s_cbranch_scc1 {end}")
        for nt in range(2):
            a = G_ACC + 16*(2*mt+nt); O = T + 4 + 4 * nt
            for k in range(4): A(f"v_pk_mul_f32 {v(a+2*k,2)}, {v(a+2*k,2)}, {v(ST+2*nt,2)} op_sel_hi:[1,0]")
            for k in range(8): A(f"v_exp_f32 {v(a+k)}, {v(a+k)}")
            for k in range(4): A(f"v_pk_add_f32 {v(a+2*k,2)}, {v(a+2*k,2)}, {v(T+2,2)} op_sel_hi:[1,0]")
            for k in range(8): A(f"v_rcp_f32 {v(a+k)}, {v(a+k)}")
            for k in range(4): A(f"v_pk_mul_f32 {v(a+2*k,2)}, {v(a+2*k,2)}, {v(a+8+2*k,2)}")
            for k in range(4): A(f"v_cvt_pk_bf16_f32 {v(a+8+k)}, {v(a+2*k)}, {v(a+2*k+1)}")
            A(f"buffer_store_dwordx4 {v(a+8,4)}, {v(T)}, {s(sWS,4)}, s{34+nt} offen offset:{1024*mt} {sc}")
    A.label(end)

G2_P = 16
G2_NA = 27
G2_ACC = 16
G2_PRE = 48
G2_JIT = 176
G2_H = 192; G2_NH = 14
def g2_slot(kq, i):
    j = i if i < G2_NA else i - G2_NA
    return (kq * G2_NA + j) * 2048
L_PART = L_RINGEND; PROW = 272

def wd_addr(A, vA, T):
    A(f"v_lshrrev_b32 {v(T)}, 3, {v(vLANE)}")
    A(f"v_lshlrev_b32 {v(T)}, 10, {v(T)}")
    A(f"v_lshrrev_b32 {v(T+1)}, 2, {v(vLANE)}")
    A(f"v_and_b32 {v(T+1)}, 4, {v(T+1)}")
    A(f"v_and_b32 {v(T+2)}, 7, {v(vLANE)}")
    A(f"v_xor_b32 {v(T+1)}, {v(T+1)}, {v(T+2)}")
    A(f"v_lshl_add_u32 {v(vA)}, {v(T+1)}, 4, {v(T)}")
    A(f"v_add_u32 {v(vA+1)}, 7168, {v(vA)}")

def wd_dma(A, vA, sSoff, ldsexpr):
    A(ldsexpr)
    A("s_nop 0")
    A(f"buffer_load_dwordx4 {v(vA)}, {s(sWD,4)}, {s(sSoff)} offen lds")
    A(f"buffer_load_dwordx4 {v(vA+1)}, {s(sWD,4)}, {s(sSoff)} offen offset:1024 lds")

def g2_setup(A, sKQ, vR=8, T=10):
    A(f"v_bfe_u32 {v(T)}, {v(vLANE)}, 2, 2")
    A(f"v_lshrrev_b32 {v(T+1)}, 5, {v(vLANE)}")
    A(f"v_lshl_add_u32 {v(T+1)}, {v(T+1)}, 2, {v(T)}")
    A(f"v_lshlrev_b32 {v(T+1)}, 7, {v(T+1)}")
    A(f"v_lshrrev_b32 {v(T)}, 1, {v(T)}")
    A(f"v_lshlrev_b32 {v(T)}, 6, {v(T)}")
    A(f"v_bfe_u32 {v(T+2)}, {v(vLANE)}, 4, 1")
    A(f"v_lshlrev_b32 {v(T+2)}, 5, {v(T+2)}")
    A(f"v_and_b32 {v(T+3)}, 3, {v(vLANE)}")
    A(f"v_lshl_add_u32 {v(T+2)}, {v(T+3)}, 3, {v(T+2)}")
    A(f"v_add3_u32 {v(T)}, {v(T)}, {v(T+1)}, {v(T+2)}")
    A(f"s_mul_i32 s32, {s(sKQ)}, {G2_NA*2048}")
    A(f"v_add_u32 {v(vR)}, s32, {v(T)}")
    A(f"v_xor_b32 {v(vR+1)}, 64, {v(vR)}")

def g2_wd_reads(i, F, vR=8):
    o = g2_slot(0, i); L = []
    for dt in range(2):
        for h in range(2): L.append(f"ds_read_b64_tr_b16 {v(F+4*dt+2*h,2)}, {v(vR+dt)} offset:{o + 1024*h}")
    return L

def g2_pull(A, vR=8):
    for i in range(G2_P):
        for l in g2_wd_reads(i, G2_PRE + 8*i, vR): A(l)
    A("s_waitcnt lgkmcnt(0)")

def g2_main(A, sTT, sTB, sKQ, sc, mid=None, vR=8, vH=10, extra_vm=0):
    A(f"v_lshlrev_b32 {v(vH)}, 4, {v(vLANE)}")
    A(f"s_lshl_b32 s32, {s(sTT)}, 1")
    A(f"s_add_u32 s32, s32, {s(sTB)}")
    A(f"s_mul_i32 s32, s32, 86")
    A(f"s_mul_i32 s33, {s(sKQ)}, 43")
    A(f"s_add_u32 s32, s32, s33")
    A(f"s_lshl_b32 s32, s32, 10")
    A(f"s_add_u32 s32, s32, {WS_H}")
    def hload(i):
        if i % 4 == 0 and i: A(f"s_add_u32 s32, s32, 4096")
        A(f"buffer_load_dwordx4 {v(G2_H+4*(i%G2_NH),4)}, {v(vH)}, {s(sWS,4)}, s32 offen offset:{1024*(i%4)} {sc}")
    for i in range(G2_NH): hload(i)
    for i in range(43):
        F = G2_PRE + 8*i if i < G2_P else G2_JIT + 8*(i & 1)
        nxt = []
        if G2_P <= i + 1 < 43:
            if i + 1 == G2_NA and mid: mid()
            nxt = g2_wd_reads(i + 1, G2_JIT + 8*((i+1) & 1), vR)
        issued = min(43, i + G2_NH)
        w = f"s_waitcnt vmcnt({issued - i - 1})"
        if i >= G2_P: w += " lgkmcnt(0)"
        A(w)
        for dt in range(2):
            acc = v(G2_ACC + 16*dt, 16)
            A(f"v_mfma_f32_32x32x16_bf16 {acc}, {v(F+4*dt,4)}, {v(G2_H+4*(i%G2_NH),4)}, {'0' if i == 0 else acc}")
            for _ in range(2):
                if nxt: A(nxt.pop(0))
        if i + G2_NH < 43: hload(i + G2_NH)

def g2_partials(A, sTB, sKQ, T=10):
    A(f"v_and_b32 {v(T)}, 31, {v(vLANE)}")
    A(f"v_mul_u32_u24 {v(T)}, {PROW}, {v(T)}")
    A(f"v_lshrrev_b32 {v(T+1)}, 5, {v(vLANE)}")
    A(f"v_lshlrev_b32 {v(T+1)}, 4, {v(T+1)}")
    A(f"s_lshl_b32 s32, {s(sKQ)}, 1")
    A(f"s_add_u32 s32, s32, {s(sTB)}")
    A(f"s_mul_i32 s32, s32, {32*PROW}")
    A(f"s_add_u32 s32, s32, {L_PART}")
    A(f"v_add3_u32 {v(T)}, {v(T)}, {v(T+1)}, s32")
    A("s_nop 4")
    for dt in range(2):
        for q in range(4): A(f"ds_write_b128 {v(T)}, {v(G2_ACC+16*dt+4*q,4)} offset:{128*dt+32*q}")

FN = 224
def fin_loads(A, sTT, sDT, sc, X, T):
    A(f"s_lshr_b32 s32, {s(sWAVE)}, 1")
    A(f"s_lshl_b32 s33, {s(sTT)}, 2")
    A(f"s_add_u32 s32, s32, s33")
    A(f"s_and_b32 s33, {s(sWAVE)}, 1")
    A(f"s_lshl_b32 s34, {s(sDT)}, 1")
    A(f"s_add_u32 s33, s33, s34")
    A(f"s_lshl_b32 s33, s33, 6")
    A(f"s_lshl_b32 s34, s32, 14")
    A(f"s_add_u32 s33, s33, s34")
    A(f"v_and_b32 {v(T)}, 15, {v(vLANE)}")
    A(f"v_lshlrev_b32 {v(T)}, 10, {v(T)}")
    A(f"v_and_b32 {v(T+1)}, 48, {v(vLANE)}")
    A(f"v_add3_u32 {v(X+5)}, {v(T)}, {v(T+1)}, s33")
    A(f"buffer_load_dwordx4 {v(X,4)}, {v(X+5)}, {s(sX,4)}, 0 offen")
    A(f"v_bfe_u32 {v(T)}, {v(vLANE)}, 3, 1")
    A(f"v_mul_u32_u24 {v(T)}, {UBLK}, {v(T)}")
    A(f"v_and_b32 {v(T+1)}, 7, {v(vLANE)}")
    A(f"v_lshl_add_u32 {v(T)}, {v(T+1)}, 3, {v(T)}")
    A(f"s_mul_i32 s32, s32, {2*UBLK}")
    A(f"s_add_u32 s32, s32, {WS_U + 8192 + 4}")
    A(f"buffer_load_dword {v(X+4)}, {v(T)}, {s(sWS,4)}, s32 offen {sc}")

def s_tile_dma(A, sTT, sDT, sc, part, nparts, T, chan_soff):
    A(f"v_lshrrev_b32 {v(T)}, 3, {v(vLANE)}")
    A(f"v_lshlrev_b32 {v(T)}, 12, {v(T)}")
    A(f"v_and_b32 {v(T+1)}, 7, {v(vLANE)}")
    A(f"v_lshl_add_u32 {v(T)}, {v(T+1)}, 4, {v(T)}")
    A(f"s_lshl_b32 s32, {s(sDT)}, 18")
    A(f"s_lshl_b32 s33, {s(sTT)}, 7")
    A(f"s_add_u32 s32, s32, s33")
    A(f"s_add_u32 s32, s32, {WS_S}")
    per = 8 // nparts
    A(f"s_mul_i32 s33, {s(part)}, {per*32768}")
    A(f"s_add_u32 s32, s32, s33")
    A(f"s_mul_i32 s33, {s(part)}, {per*1024}")
    for i in range(per):
        A(f"s_add_u32 m0, s33, {L_ST + 1024*i}")
        if i: A(f"s_add_u32 s32, s32, 32768")
        else: A("s_nop 0")
        A(f"buffer_load_dwordx4 {v(T)}, {s(sWS,4)}, s32 offen {sc} lds")

def final(A, X, sc_out, T=16):
    P0 = T + 8; P1 = T + 16; SS = T + 24; E = T + 32
    A(f"s_lshr_b32 s32, {s(sWAVE)}, 1")
    A(f"s_and_b32 s33, {s(sWAVE)}, 1")
    A(f"v_and_b32 {v(T)}, 15, {v(vLANE)}")
    A(f"v_mul_u32_u24 {v(T)}, {PROW}, {v(T)}")
    A(f"v_and_b32 {v(T+1)}, 48, {v(vLANE)}")
    A(f"v_lshlrev_b32 {v(T+1)}, 1, {v(T+1)}")
    A(f"s_mul_i32 s34, s32, {16*PROW}")
    A(f"s_lshl_b32 s35, s33, 7")
    A(f"s_add_u32 s34, s34, s35")
    A(f"s_add_u32 s34, s34, {L_PART}")
    A(f"v_add3_u32 {v(T)}, {v(T)}, {v(T+1)}, s34")
    A(f"v_lshlrev_b32 {v(T+1)}, 5, {v(T+1)}")
    A(f"v_bfe_u32 {v(T+2)}, {v(vLANE)}, 2, 2")
    A(f"v_lshl_add_u32 {v(T+1)}, {v(T+2)}, 7, {v(T+1)}")
    A(f"v_and_b32 {v(T+2)}, 3, {v(vLANE)}")
    A(f"v_lshl_add_u32 {v(T+1)}, {v(T+2)}, 3, {v(T+1)}")
    A(f"s_lshl_b32 s34, s33, 12")
    A(f"s_lshl_b32 s35, s32, 5")
    A(f"s_add_u32 s34, s34, s35")
    A(f"s_add_u32 s34, s34, {L_ST}")
    A(f"v_add_u32 {v(T+1)}, s34, {v(T+1)}")
    return_point = len(A.lines)
    def body():
        for k in range(2): A(f"ds_read_b128 {v(P0+4*k,4)}, {v(T)} offset:{16*k}")
        for k in range(2): A(f"ds_read_b128 {v(P1+4*k,4)}, {v(T)} offset:{64*PROW+16*k}")
        for k in range(2): A(f"ds_read_b64_tr_b16 {v(SS+2*k,2)}, {v(T+1)} offset:{512*k}")
        A(f"v_mul_f32 {v(T+2)}, {fl(-LOG2E)}, {v(X+4)}")
        A(f"v_mov_b32 {v(T+4)}, 1.0")
        A("s_waitcnt lgkmcnt(2)")
        for k in range(4): A(f"v_pk_add_f32 {v(P0+2*k,2)}, {v(P0+2*k,2)}, {v(P1+2*k,2)}")
        for k in range(4): A(f"v_pk_mul_f32 {v(E+2*k,2)}, {v(P0+2*k,2)}, {v(T+2,2)} op_sel_hi:[1,0]")
        for k in range(8): A(f"v_exp_f32 {v(E+k)}, {v(E+k)}")
        for k in range(4): A(f"v_pk_mul_f32 {v(P0+2*k,2)}, {v(P0+2*k,2)}, {v(X+4,2)} op_sel_hi:[1,0]")
        for k in range(4): A(f"v_pk_add_f32 {v(E+2*k,2)}, {v(E+2*k,2)}, {v(T+4,2)} op_sel_hi:[1,0]")
        for k in range(8): A(f"v_rcp_f32 {v(E+k)}, {v(E+k)}")
        A("s_waitcnt lgkmcnt(0)")
        for k in range(4):
            A(f"v_lshlrev_b32 {v(P1+2*k)}, 16, {v(SS+k)}")
            A(f"v_and_b32 {v(P1+2*k+1)}, 0xffff0000, {v(SS+k)}")
        for k in range(4): A(f"v_pk_mul_f32 {v(P0+2*k,2)}, {v(P0+2*k,2)}, {v(E+2*k,2)}")
        for k in range(4):
            A(f"v_lshlrev_b32 {v(E+2*k)}, 16, {v(X+k)}")
            A(f"v_and_b32 {v(E+2*k+1)}, 0xffff0000, {v(X+k)}")
        for k in range(4): A(f"v_pk_fma_f32 {v(P0+2*k,2)}, {v(P0+2*k,2)}, {v(P1+2*k,2)}, {v(E+2*k,2)}")
        for k in range(4): A(f"v_cvt_pk_bf16_f32 {v(SS+k)}, {v(P0+2*k)}, {v(P0+2*k+1)}")
        A(f"buffer_store_dwordx4 {v(SS,4)}, {v(X+5)}, {s(sOUT,4)}, 0 offen {sc_out}")
    return body

WS_STAMP = 0x1000000
class Stamp:
    on = False
def stamp(A, k):
    if not Stamp.on: return
    A("s_memtime s[96:97]"); A("s_memrealtime s[98:99]"); A("s_waitcnt lgkmcnt(0)")
    A(f"v_writelane_b32 v255, s96, {k}"); A(f"v_writelane_b32 v255, s98, {32+k}")
def stamp_flush(A, kidx):
    if not Stamp.on: return
    A(f"s_lshl_b32 s96, s2, 3"); A(f"s_add_u32 s96, s96, {s(sWAVE)}"); A(f"s_lshl_b32 s96, s96, 8")
    A(f"s_add_u32 s96, s96, {WS_STAMP + kidx*0x80000}")
    A(f"v_lshlrev_b32 v254, 2, {v(vLANE)}")
    A(f"buffer_store_dword v255, v254, {s(sWS,4)}, s96 offen")
    A("s_waitcnt vmcnt(0)")
```

```python
from roles import *
import roles, sys
KNAME = "recurrent_scan__ssm_conv_s4__glu_gated_glu__prompt_kernel"
HDR = open("recurrent_scan__ssm_conv_s4__glu_gated_glu__prompt.s.ref").read().split("; Override launch")[0]
OPT = dict(D=13, NPF=20, UWAIT=13, ROT=1, SCOUT="", ALIGN=1)
for a in sys.argv[2:]:
    if "=" in a:
        k, x = a.split("="); OPT[k] = x if k == "SCOUT" else int(x)
Stamp.on = "--stamp" in sys.argv
SC = "sc1"
sV = 4
sXCD, sIDX, sRT, sFC, sROT, sB, sD, sTT, sDT, sA, sB2, sKB, sUB = range(48, 61)
FL_LN = 0x1000; FL_H = 0x4000; FL_S = 0x14000
C_HP = L_CTL + 32; C_KRDY = L_CTL + 48; C_URDY = L_CTL + 56; C_SRDY = L_CTL + 60
L_STAT = L_ST + 4096
SPIN_MAX = 40000
A = Asm(); SLOW = Asm(); SLOW.uid = 100000

def mapping():
    A(f"s_and_b32 {s(sXCD)}, s2, 7")
    A(f"s_lshr_b32 {s(sIDX)}, s2, 3")
    A(f"s_lshr_b32 s32, {s(sXCD)}, 1")
    A(f"s_and_b32 s33, {s(sXCD)}, 1")
    A(f"s_and_b32 s34, {s(sIDX)}, 3")
    A(f"s_lshl_b32 {s(sD)}, s34, 4")
    A(f"s_mul_i32 {s(sROT)}, s34, {2*OPT['ROT']}")
    A(f"s_mul_i32 {s(sFC)}, s33, 7")
    A(f"s_lshr_b32 s35, {s(sIDX)}, 2")
    A(f"s_add_u32 {s(sFC)}, {s(sFC)}, s35")
    A(f"s_lshl_b32 s36, s33, 1")
    A(f"s_add_u32 s36, s36, s34")
    A(f"s_cmp_ge_u32 {s(sIDX)}, 28")
    A(f"s_cselect_b32 {s(sFC)}, 14, {s(sFC)}")
    A(f"s_cselect_b32 s34, s36, s34")
    A(f"s_and_b32 s34, s34, 3")
    A(f"s_lshl_b32 {s(sRT)}, s32, 2")
    A(f"s_add_u32 {s(sRT)}, {s(sRT)}, s34")
    A(f"s_lshl_b32 {s(sB)}, {s(sXCD)}, 5")
    A(f"s_add_u32 {s(sB)}, {s(sB)}, {s(sIDX)}")
    A(f"s_and_b32 {s(sA)}, {s(sWAVE)}, 1")
    A(f"s_bfe_u32 {s(sB2)}, {s(sWAVE)}, 0x10001")
    A(f"s_lshl_b32 s32, {s(sXCD)}, 6")
    A(f"s_add_u32 {s(sD)}, {s(sD)}, s32")
    A(f"s_add_u32 {s(sD)}, {s(sD)}, s35")
    A(f"s_lshl_b32 s32, {s(sA)}, 3")
    A(f"s_add_u32 {s(sD)}, {s(sD)}, s32")
    A(f"s_lshr_b32 s34, {s(sIDX)}, 3")
    A(f"s_lshl_b32 {s(sTT)}, {s(sXCD)}, 2")
    A(f"s_add_u32 {s(sTT)}, {s(sTT)}, s34")
    A(f"s_and_b32 {s(sDT)}, {s(sIDX)}, 7")
    A(f"s_mul_i32 {s(sKB)}, {s(sA)}, {L_K[1]-L_K[0]}")
    A(f"s_add_u32 {s(sKB)}, {s(sKB)}, {L_K[0]}")
    A(f"s_mul_i32 {s(sUB)}, {s(sA)}, {L_U[1]-L_U[0]}")
    A(f"s_add_u32 {s(sUB)}, {s(sUB)}, {L_U[0]}")
    for srd, sz in ((sX, 0x200000), (sWG, 1409024), (sWD, 1409024), (sWS, WS_SIZE), (sOUT, 0x200000)):
        A(f"s_mov_b32 {s(srd+2)}, {sz}")
        A(f"s_mov_b32 {s(srd+3)}, 0x20000")
def bases():
    A("s_waitcnt lgkmcnt(0)")
    A(f"s_load_dwordx2 s[6:7], {s(P_WS,2)}, 0")
    A(f"s_cmp_eq_u32 {s(sA)}, 0")
    A(f"s_cselect_b64 {s(sWG,2)}, {s(P_WG,2)}, {s(P_WU,2)}")
    for srd, p in ((sX, P_X), (sWD, P_WD), (sWS, P_WS), (sOUT, P_OUT)): A(f"s_mov_b64 {s(srd,2)}, {s(p,2)}")
def barrier0():
    A("s_waitcnt lgkmcnt(0)")
    A(f"s_add_u32 {s(sV)}, s6, 0x7f4a7c15")
    A(f"s_addc_u32 {s(sV+1)}, s7, 0x9e3779b9")
    A("s_barrier")

def spin(vAddr, vT, n, pre=False):
    sl = SLOW.new("L_sl"); ok = A.new("L_ok")
    if not pre:
        A(f"ds_read_b32 {v(vT)}, {v(vAddr)}")
        A("s_waitcnt lgkmcnt(0)")
    A(f"v_cmp_gt_u32 vcc, {n}, {v(vT)}")
    A(f"s_cbranch_vccnz {sl}")
    A.label(ok)
    SLOW.label(sl)
    SLOW("s_sleep 1")
    SLOW(f"ds_read_b32 {v(vT)}, {v(vAddr)}")
    SLOW("s_waitcnt lgkmcnt(0)")
    SLOW(f"v_cmp_gt_u32 vcc, {n}, {v(vT)}")
    SLOW(f"s_cbranch_vccnz {sl}")
    SLOW(f"s_branch {ok}")
def sig(vAddr, vT, val): lds_signal(A, vAddr, vT, val, 0)

def gflag_store(sOff, T):
    A(f"v_mov_b32 {v(T)}, {s(sV)}")
    A(f"v_mov_b32 {v(T+1)}, {s(sV+1)}")
    A(f"v_mov_b32 {v(T+2)}, 0")
    A("s_mov_b64 exec, 1")
    A(f"buffer_store_dwordx2 {v(T,2)}, {v(T+2)}, {s(sWS,4)}, {s(sOff)} offen {SC}")
    A("s_mov_b64 exec, -1")
def gpoll(vAddr, sOff, nins, step, T, after_first=None):
    lp = A.new("L_gp"); ok = A.new("L_go")
    A("s_mov_b32 s46, 0")
    A.label(lp)
    for i in range(nins): A(f"buffer_load_dwordx2 {v(T+2*i,2)}, {v(vAddr)}, {s(sWS,4)}, {s(sOff)} offen offset:{i*step} {SC}") if i*step < 4096 else (
        A(f"s_add_u32 s47, {s(sOff)}, {i*step}"), A(f"buffer_load_dwordx2 {v(T+2*i,2)}, {v(vAddr)}, {s(sWS,4)}, s47 offen {SC}"))
    A("s_waitcnt vmcnt(0)")
    if after_first: after_first()
    for i in range(nins):
        A(f"v_cmp_ne_u64 {'vcc' if i == 0 else 's[44:45]'}, {s(sV,2)}, {v(T+2*i,2)}")
        if i: A("s_nop 0"); A("s_or_b64 vcc, vcc, s[44:45]")
    A("s_add_u32 s46, s46, 1")
    A("s_cmp_eq_u64 vcc, 0")
    A(f"s_cbranch_scc1 {ok}")
    A("s_sleep 1")
    A(f"s_cmp_lt_u32 s46, {SPIN_MAX}")
    A(f"s_cbranch_scc1 {lp}")
    A.label(ok)

def loader():
    D = OPT["D"]; Vw = 8; Vx = 12; vZ = 16; T = 18; sT = 36
    sXB, sWB, sC, sXo, sWo, sLW, sLX = range(sT+2, sT+9)
    A(f"s_mov_b32 {s(sT)}, 2752")
    A(f"s_mov_b32 {s(sT+1)}, 0x15555556")
    for j in range(3):
        A(f"v_add_u32 {v(T)}, {64*j}, {v(vLANE)}")
        A(f"v_mul_hi_u32 {v(T+1)}, {v(T)}, {s(sT+1)}")
        A(f"v_mul_u32_u24 {v(T+2)}, 12, {v(T+1)}")
        A(f"v_sub_u32 {v(T+2)}, {v(T)}, {v(T+2)}")
        A(f"v_mul_u32_u24 {v(T+1)}, {s(sT)}, {v(T+1)}")
        A(f"v_lshl_add_u32 {v(Vw+j)}, {v(T+2)}, 4, {v(T+1)}")
        if j: A(f"v_subrev_u32 {v(Vw+j)}, {1024*j}, {v(Vw+j)}")
    A(f"v_lshrrev_b32 {v(T)}, 3, {v(vLANE)}")
    A(f"v_lshlrev_b32 {v(T)}, 10, {v(T)}")
    A(f"v_lshrrev_b32 {v(T+1)}, 4, {v(vLANE)}")
    A(f"v_and_b32 {v(T+2)}, 7, {v(vLANE)}")
    A(f"v_xor_b32 {v(T+1)}, {v(T+1)}, {v(T+2)}")
    A(f"v_lshl_add_u32 {v(Vx)}, {v(T+1)}, 4, {v(T)}")
    A(f"v_xor_b32 {v(Vx+1)}, 64, {v(Vx)}")
    A(f"v_add_u32 {v(Vx+2)}, {2*7168}, {v(Vx)}")
    A(f"v_add_u32 {v(Vx+3)}, {3*7168}, {v(Vx+1)}")
    A(f"v_add_u32 {v(Vx+1)}, {7168}, {v(Vx+1)}")
    A(f"s_lshl_b32 {s(sT)}, {s(sA)}, 2")
    A(f"s_add_u32 {s(sT)}, {s(sT)}, {C_FULL}")
    sig_addr(A, vZ, s(sT))
    poll_addr(A, vZ+1, C_FREE, 4)
    A(f"s_lshl_b32 {s(sXB)}, {s(sRT)}, 17")
    A(f"s_lshl_b32 {s(sT)}, {s(sA)}, 16")
    A(f"s_add_u32 {s(sXB)}, {s(sXB)}, {s(sT)}")
    A(f"s_mul_i32 {s(sWB)}, {s(sFC)}, 192")
    A(f"s_mov_b32 {s(sC)}, {s(sROT)}")
    A(f"s_mul_i32 {s(sLW)}, {s(sA)}, {UPOFF}")
    A(f"s_lshl_b32 {s(sLX)}, {s(sA)}, 13")
    bases()
    stamp(A, 1)
    A(f"s_cmp_ge_u32 {s(sIDX)}, 30")
    A("s_cbranch_scc1 L_spare_ld")
    ops = []
    for st in range(NSTAGE):
        if st % 2 == 0:
            for i in range(8): ops.append((st, "x", i))
        for i in range(6): ops.append((st, "w", i))
    last_of = {}
    for n, (st, k, i) in enumerate(ops): last_of[st] = n
    signaled = 0
    for n, (st, k, i) in enumerate(ops):
        firstop = n == 0 or ops[n-1][0] != st
        if firstop and st % 2 == 0:
            A(f"s_lshl_b32 {s(sXo)}, {s(sC)}, 7")
            A(f"s_add_u32 {s(sXo)}, {s(sXo)}, {s(sXB)}")
            A(f"s_mul_i32 {s(sWo)}, {s(sC)}, {64*2752}")
            A(f"s_add_u32 {s(sWo)}, {s(sWo)}, {s(sWB)}")
            A(f"s_add_u32 {s(sC)}, {s(sC)}, 1")
            A(f"s_and_b32 {s(sC)}, {s(sC)}, 7")
        if n == D: barrier0()
        if firstop and st >= NWS: spin(vZ+1, T, st-NWS+1)
        if n >= D:
            A(f"s_waitcnt vmcnt({D-1})")
            if n - D == last_of[signaled]:
                signaled += 1; sig(vZ, T+1, signaled)
                if signaled in (1, 4, 8, 12): stamp(A, 2 + signaled // 4)
        if k == "x":
            if i % 4 == 0:
                A(f"s_add_u32 m0, {s(sLX)}, {L_X + ((st//2) % NXS) * XSLOT + i * 1024}")
                if i: A(f"s_add_u32 {s(sXo)}, {s(sXo)}, 32768")
                else: A("s_nop 0")
            A(f"buffer_load_dwordx4 {v(Vx + i%4)}, {s(sX,4)}, {s(sXo)} offen offset:{1024*(i%4)} lds")
        else:
            if i % 3 == 0:
                A(f"s_add_u32 m0, {s(sLW)}, {L_W + (st % NWS) * WSLOT + (i//3) * 3072}")
                if i or st % 2: A(f"s_add_u32 {s(sWo)}, {s(sWo)}, {16*2752}")
                else: A("s_nop 0")
            A(f"buffer_load_dwordx4 {v(Vw + i%3)}, {s(sWG,4)}, {s(sWo)} offen offset:{1024*(i%3)} lds")
    while signaled < NSTAGE:
        A(f"s_waitcnt vmcnt({len(ops) - 1 - last_of[signaled]})")
        signaled += 1; sig(vZ, T+1, signaled)
    stamp(A, 6)
    S = SLOW
    S.label("L_spare_ld")
    S("s_waitcnt lgkmcnt(0)")
    S(f"s_add_u32 {s(sV)}, s6, 0x7f4a7c15"); S(f"s_addc_u32 {s(sV+1)}, s7, 0x9e3779b9"); S("s_barrier")
    lds_signal(S, vZ, T+1, NSTAGE, 0)
    S(f"v_lshlrev_b32 {v(T)}, 7, {v(vLANE)}")
    S(f"s_and_b32 s40, {s(sIDX)}, 1"); S("s_lshl_b32 s40, s40, 1"); S(f"s_add_u32 s40, s40, {s(sA)}")
    S(f"s_mul_i32 s40, s40, {43*8192}")
    S(f"s_mul_i32 s41, {s(sXCD)}, {5*8192}")
    S("s_mov_b32 s42, 0")
    S.label("L_pf")
    S("s_add_u32 s43, s40, s41")
    S(f"buffer_load_dword {v(T+2)}, {v(T)}, {s(sWD,4)}, s43 offen")
    S("s_add_u32 s41, s41, 8192"); S(f"s_cmp_ge_u32 s41, {43*8192}"); S("s_cselect_b32 s41, 0, s41")
    S("s_waitcnt vmcnt(1)")
    S("s_add_u32 s42, s42, 1"); S(f"s_cmp_lt_u32 s42, {OPT['NPF']}"); S("s_cbranch_scc1 L_pf")
    S("s_waitcnt vmcnt(0)")
    S("s_branch L_conv")

def h_common():
    A.label("L_conv")
    vS = 4; vP = 5; T = 12; vWD = 6
    A(f"s_and_b32 s32, {s(sWAVE)}, 3"); A("s_lshl_b32 s32, s32, 2"); A(f"s_add_u32 s32, s32, {C_HP}")
    sig_addr(A, vS, "s32")
    wd_addr(A, vWD, T)
    A(f"v_add_u32 {v(vWD+1)}, 14336, {v(vWD)}")
    A(f"s_mul_i32 s40, {s(sB2)}, {43*16384}"); A(f"s_lshl_b32 s41, {s(sDT)}, 7"); A("s_add_u32 s40, s40, s41")
    A(f"s_lshl_b32 s41, {s(sA)}, 13"); A("s_add_u32 s40, s40, s41")
    A(f"s_mul_i32 s41, {s(sB2)}, {G2_NA*2048}"); A(f"s_lshl_b32 s42, {s(sA)}, 10"); A("s_add_u32 s41, s41, s42")
    A(f"s_lshl_b32 s32, {s(sA)}, 2"); A(f"s_add_u32 s32, s32, {C_KRDY}")
    A(f"v_mov_b32 {v(vP)}, {C_URDY}"); A(f"v_writelane_b32 {v(vP)}, s32, 0")
    spin(vP, T, 1)
    stamp(A, 8)
    poll_addr(A, vP, C_FREE, 4)
    st = dict(i=0)
    def filler(nm):
        if nm == 36:
            A("s_waitcnt lgkmcnt(0)")
            spin(vP, T, NSTAGE)
        if nm >= 36 and nm % 4 == 0 and st["i"] < G2_NA:
            i = st["i"]; st["i"] += 1
            if i % 2 == 0:
                A(f"s_add_u32 m0, s41, {2048*i}")
                if i: A("s_add_u32 s40, s40, 32768")
                else: A("s_nop 0")
            A(f"buffer_load_dwordx4 {v(vWD + i%2)}, {s(sWD,4)}, s40 offen offset:{2048*(i%2)} lds")
    conv_main(A, sKB, sUB, sB2, filler=filler)
    assert st["i"] == G2_NA
    stamp(A, 9)
    A(f"s_and_b32 s32, {s(sWAVE)}, 3"); A("s_xor_b32 s32, s32, 2"); A("s_lshl_b32 s32, s32, 2"); A(f"s_add_u32 s32, s32, {C_HP}")
    A(f"v_mov_b32 {v(vP)}, s32")
    A("s_waitcnt vmcnt(0)")
    sig(vS, T+8, 1)
    stamp(A, 10)
    spin(vP, T+8, 1)
    def sync2():
        sig(vS, T+8, 2); spin(vP, T+8, 2)
    conv_finish(A, sD, sB2, sKB, sync2, SC)
    sig(vS, T+8, 3)
    fin_loads(A, sTT, sDT, SC, 248, 20)
    A(f"s_lshr_b32 s32, {s(sD)}, 6"); A("s_lshl_b32 s32, s32, 1"); A(f"s_add_u32 s32, s32, {s(sB2)}"); A("s_lshl_b32 s32, s32, 6")
    A(f"s_and_b32 s33, {s(sD)}, 63"); A("s_add_u32 s32, s32, s33"); A("s_lshl_b32 s32, s32, 5"); A(f"s_add_u32 s36, s32, {FL_S}")
    A("s_waitcnt vmcnt(0)")
    stamp(A, 11)
    gflag_store(36, 20)
    A(f"s_lshr_b32 s32, {s(sTT)}, 4"); A(f"s_lshl_b32 s33, {s(sDT)}, 1"); A("s_add_u32 s32, s32, s33"); A("s_lshl_b32 s32, s32, 2")
    A(f"s_and_b32 s42, {s(sWAVE)}, 3"); A("s_add_u32 s32, s32, s42"); A("s_lshl_b32 s32, s32, 9"); A(f"s_add_u32 s36, s32, {FL_S}")
    A(f"v_and_b32 {v(24)}, 15, {v(vLANE)}"); A(f"v_lshlrev_b32 {v(24)}, 5, {v(24)}")
    poll_addr(A, vP, C_FREE, 4)
    gpoll(24, 36, 1, 0, 26)
    stamp(A, 12)
    spin(vP, T, 17)
    s_tile_dma(A, sTT, sDT, SC, 42, 4, 12, None)
    A.label("L_final")
    body = final(A, 248, OPT["SCOUT"], T=48)
    A("s_waitcnt vmcnt(0) lgkmcnt(0)"); stamp(A, 20); A("s_barrier"); stamp(A, 21)
    body()
    stamp(A, 22)
    if Stamp.on: A("s_waitcnt vmcnt(0)"); stamp(A, 23); stamp_flush(A, 0)
    A.label("L_done")
    A("s_endpgm")

def kg():
    bases()
    stamp(A, 1)
    A(f"s_cmp_eq_u32 {s(sA)}, 1"); A("s_cbranch_scc1 L_kg1")
    ln_loads(A, sB)
    kgen_loads(A, sD, vOff=3, sT=44)
    barrier0()
    ln_compute(A, sB, SC, extra_vm=6)
    stamp(A, 2)
    A("s_branch L_kg2")
    A.label("L_kg1")
    kgen_loads(A, sD, vOff=3, sT=44)
    barrier0()
    A("s_waitcnt vmcnt(0)")
    A.label("L_kg2")
    u_zero(A, sUB)
    def post_y():
        sk = A.new("L_nf")
        A(f"s_cmp_eq_u32 {s(sA)}, 1"); A(f"s_cbranch_scc1 {sk}")
        A(f"s_lshl_b32 s32, {s(sB)}, 5"); A(f"s_add_u32 s32, s32, {FL_LN}")
        A("s_waitcnt vmcnt(0)")
        stamp(A, 3)
        gflag_store(32, 4)
        A.label(sk)
    kgen_compute(A, sD, sKB, sT=44, extra_vm=9, post_y=post_y)
    A(f"s_lshl_b32 s32, {s(sA)}, 2"); A(f"s_add_u32 s32, s32, {C_KRDY}")
    sig_addr(A, 4, "s32")
    A("s_waitcnt lgkmcnt(0)")
    sig(4, 5, 1)
    stamp(A, 4)
    A(f"s_cmp_eq_u32 {s(sA)}, 0"); A("s_cbranch_scc1 L_conv")
    A(f"v_lshlrev_b32 v8, 5, {v(vLANE)}")
    A(f"s_mov_b32 s36, {FL_LN}")
    gpoll(8, 36, 4, 2048, 10)
    stamp(A, 5)
    A(f"v_lshrrev_b32 v8, 2, {v(vLANE)}"); A(f"v_mul_u32_u24 v8, {UBLK}, v8")
    A(f"v_and_b32 v9, 3, {v(vLANE)}"); A("v_lshl_add_u32 v8, v9, 4, v8")
    A(f"s_mul_i32 s32, {s(sRT)}, {16*UBLK}"); A(f"s_add_u32 s32, s32, {WS_U+8192}")
    A(f"s_mov_b32 m0, {L_STAT}"); A("s_nop 0")
    A(f"buffer_load_dwordx4 v8, {s(sWS,4)}, s32 offen {SC} lds")
    sk = A.new("L_ne")
    A("s_cmp_lg_u32 s2, 0"); A(f"s_cbranch_scc1 {sk}")
    A("s_mov_b32 s33, 0"); gflag_store(33, 10)
    A.label(sk)
    A(f"s_mov_b32 s33, {C_SRDY}"); sig_addr(A, 4, "s33")
    poll_addr(A, 6, C_FULL, 2)
    A("s_waitcnt vmcnt(0)")
    sig(4, 5, 1)
    stamp(A, 6)
    spin(6, 5, OPT["UWAIT"])
    A(f"s_sub_u32 s36, {s(sD)}, 8"); A(f"s_mov_b32 s37, {L_U[0]}")
    u_gather(A, 36, 37, SC, vT=8)
    u_gather(A, sD, sUB, SC, vT=8)
    A(f"s_mov_b32 s33, {C_URDY}"); sig_addr(A, 4, "s33")
    A("s_waitcnt vmcnt(0)")
    sig(4, 5, 1)
    stamp(A, 7)
    A("s_branch L_conv")

def gwave():
    vW = 4
    vXs = 10
    vC = 14
    T = 24; ST = 20
    sMH, sNH = sA, sB2
    ctl_init(A, T)
    A(f"v_bfe_u32 {v(T)}, {v(vLANE)}, 4, 1")
    A(f"v_mul_u32_u24 {v(T)}, {UPOFF}, {v(T)}")
    A(f"v_lshrrev_b32 {v(T+1)}, 5, {v(vLANE)}")
    A(f"v_bfe_u32 {v(T+2)}, {v(vLANE)}, 2, 2")
    A(f"v_lshl_add_u32 {v(T+2)}, {v(T+1)}, 3, {v(T+2)}")
    A(f"v_mul_u32_u24 {v(T+2)}, 192, {v(T+2)}")
    A(f"v_and_b32 {v(T+3)}, 3, {v(vLANE)}")
    A(f"v_lshl_add_u32 {v(T+2)}, {v(T+3)}, 3, {v(T+2)}")
    A(f"s_mul_i32 s32, {s(sMH)}, 96")
    A(f"v_add3_u32 {v(T+4)}, {v(T)}, {v(T+2)}, s32")
    A(f"s_lshl_b32 s33, {s(sNH)}, 5"); A("s_xor_b32 s34, s33, 32"); A("s_mov_b32 s35, 64")
    A(f"s_mul_i32 s36, {s(sNH)}, 3072"); A("s_sub_u32 s37, 3072, s36")
    for sl in range(3):
        for i in range(2):
            A(f"s_add_u32 s38, s{33+sl}, s{36+i}")
            A(f"v_add_u32 {v(vW+2*sl+i)}, s38, {v(T+4)}")
    A(f"v_and_b32 {v(T)}, 31, {v(vLANE)}")
    A(f"v_bfe_u32 {v(T+2)}, {v(vLANE)}, 1, 3")
    A(f"v_xor_b32 {v(T+2)}, {v(T+2)}, {v(T+1)}")
    A(f"v_lshlrev_b32 {v(T+2)}, 4, {v(T+2)}")
    A(f"v_lshl_add_u32 {v(T)}, {v(T)}, 7, {v(T+2)}")
    A(f"v_xor_b32 {v(T)}, s33, {v(T)}")
    A(f"s_lshl_b32 s32, {s(sNH)}, 13"); A(f"s_add_u32 s32, s32, {L_X}")
    for k in range(4):
        A(f"v_xor_b32 {v(T+3)}, {32*k}, {v(T)}")
        A(f"v_add_u32 {v(vXs+k)}, s32, {v(T+3)}")
    poll_addr(A, vC, C_FULL, 2)
    A(f"s_lshl_b32 s32, {s(sWAVE)}, 2"); A(f"s_add_u32 s32, s32, {C_FREE}")
    sig_addr(A, vC+1, "s32")
    A(f"v_lshrrev_b32 {v(T)}, 2, {v(vLANE)}")
    A(f"v_lshrrev_b32 {v(T+1)}, 4, {v(vLANE)}")
    A(f"v_xor_b32 {v(T)}, {v(T)}, {v(T+1)}")
    A(f"v_and_b32 {v(T)}, 1, {v(T)}")
    A(f"v_cmp_eq_u32 vcc, 0, {v(T)}")
    A(f"v_mov_b32 {v(T+1)}, 0x3f803f80")
    A("s_nop 0")
    for k in range(4): A(f"v_cndmask_b32 {v(G_SEL+k)}, 0, {v(T+1)}, vcc")
    for k in range(12): A(f"v_mov_b32 {v(G_CS+k)}, 0")
    A(f"s_lshl_b32 s32, {s(sWAVE)}, 9"); A(f"s_add_u32 s32, s32, {L_CSX}")
    A(f"v_lshl_add_u32 v16, {v(vLANE)}, 2, s32")
    A(f"v_xor_b32 v17, 1024, v16") if (L_CSX % 2048 == 0) else (
        A(f"s_xor_b32 s33, {s(sWAVE)}, 2"), A("s_lshl_b32 s33, s33, 9"), A(f"s_add_u32 s33, s33, {L_CSX}"), A(f"v_lshl_add_u32 v17, {v(vLANE)}, 2, s33"))
    A(f"s_xor_b32 s33, {s(sWAVE)}, 2"); A("s_lshl_b32 s33, s33, 2"); A(f"s_add_u32 s33, s33, {C_FREE}")
    A(f"v_mov_b32 v18, s33")
    A(f"v_and_b32 {v(T)}, 31, {v(vLANE)}")
    A(f"s_lshl_b32 s33, {s(sNH)}, 9"); A(f"s_add_u32 s33, s33, {L_STAT}")
    A(f"v_lshl_add_u32 v19, {v(T)}, 3, s33")
    bases()
    barrier0()
    stamp(A, 1)
    A(f"s_cmp_ge_u32 {s(sIDX)}, 30"); A("s_cbranch_scc1 L_spare_g")
    SLOW.label("L_spare_g"); lds_signal(SLOW, vC+1, T, NSTAGE, 0); SLOW("s_branch L_g2")
    TT = 28
    def reads(ks):
        st, i = ks // 2, ks % 2
        F = G_F + 20 * (ks & 1); L = []
        wo = L_W + (st % NWS) * WSLOT
        xo = ((ks // 4) % NXS) * XSLOT
        L.append(f"ds_read_b128 {v(F+12,4)}, {v(vXs + ks%4)} offset:{xo}")
        for sl in range(3):
            for h in range(2): L.append(f"ds_read_b64_tr_b16 {v(F+4*sl+2*h,2)}, {v(vW+2*sl+i)} offset:{wo + h*768}")
            if sl == 0: L.append(f"ds_read_b128 {v(F+16,4)}, {v(vXs + ks%4)} offset:{xo+4096}")
        return L
    spin(vC, TT, 1)
    stamp(A, 2)
    for l in reads(0): A(l)
    for ks in range(32):
        F = G_F + 20 * (ks & 1)
        A("s_waitcnt lgkmcnt(0)")
        if ks % 2 == 1:
            sig(vC+1, TT+2, ks // 2 + 1)
            if ks < 31: spin(vC, TT, ks // 2 + 2, pre=True)
        nxt = reads(ks + 1) if ks < 31 else []
        if ks % 2 == 0 and ks < 30: nxt.append(f"ds_read_b32 {v(TT)}, {v(vC)}")
        if ks == 30:
            nxt += [f"ds_write_b32 v16, {v(G_CS)}", f"ds_write_b32 v16, {v(G_CS+8)} offset:256"]
        for sl in range(3):
            for nt in range(2):
                acc = v(G_ACC + 16*(2*sl+nt), 16)
                A(f"v_mfma_f32_32x32x16_bf16 {acc}, {v(F+4*sl,4)}, {v(F+12+4*nt,4)}, {'0' if ks == 0 else acc}")
                for _ in range(2):
                    if nxt: A(nxt.pop(0))
        assert not nxt
        for sl in ((0, 1, 2) if ks >= 30 else (0, 2) if ks % 2 == 0 else (0,)):
            A(f"v_mfma_f32_16x16x32_bf16 {v(G_CS+4*sl,4)}, {v(G_SEL,4)}, {v(F+4*sl,4)}, {v(G_CS+4*sl,4)}")
        if ks in (7, 15, 23): stamp(A, 3 + ks // 8)
    stamp(A, 6)
    A(f"v_mov_b32 {v(T+10)}, {C_SRDY}")
    spin(18, T, NSTAGE)
    spin(T+10, T, 1)
    A(f"ds_read_b32 {v(T+5)}, v17")
    A(f"ds_read_b32 {v(T+6)}, v17 offset:256")
    for nt in range(2): A(f"ds_read_b64 {v(ST+2*nt,2)}, v19 offset:{256*nt}")
    BF = G_F; AF = G_F + 8
    A(f"v_cmp_gt_u32 vcc, 32, {v(vLANE)}")
    for k in (2, 3, 6, 7): A(f"v_mov_b32 {v(BF+k)}, 0")
    for sl in range(3):
        A(f"v_mov_b32 {v(AF+4*sl+2)}, 0"); A(f"v_mov_b32 {v(AF+4*sl+3)}, 0")
    A(f"v_mov_b32 {v(T+4)}, 0")
    A("s_waitcnt lgkmcnt(0)")
    for nt in range(2):
        A(f"v_xor_b32 {v(T+8)}, 0x80000000, {v(ST+2*nt)}")
        A(f"v_cndmask_b32 {v(T+8)}, 0, {v(T+8)}, vcc")
        A(f"v_lshrrev_b32 {v(BF+4*nt+1)}, 16, {v(T+8)}")
        A(f"v_or_b32 {v(BF+4*nt)}, {v(T+8)}, {v(BF+4*nt+1)}")
    for sl in range(3):
        c = T + 4 + sl; a = AF + 4 * sl
        A(f"v_add_f32 {v(c)}, {v(c)}, {v(G_CS+4*sl)}")
        A(f"v_and_b32 {v(T+8)}, 0xffff0000, {v(c)}")
        A(f"v_sub_f32 {v(c)}, {v(c)}, {v(T+8)}")
        A(f"v_and_b32 {v(T+9)}, 0xffff0000, {v(c)}")
        A(f"v_sub_f32 {v(c)}, {v(c)}, {v(T+9)}")
        A(f"v_lshrrev_b32 {v(T+8)}, 16, {v(T+8)}")
        A(f"v_or_b32 {v(a)}, {v(T+8)}, {v(T+9)}")
        A(f"v_lshrrev_b32 {v(a+1)}, 16, {v(c)}")
        A("s_nop 1")
        for nt in range(2):
            acc = v(G_ACC + 16*(2*sl+nt), 16)
            A(f"v_mfma_f32_32x32x16_bf16 {acc}, {v(a,4)}, {v(BF+4*nt,4)}, {acc}")
    for nt in range(2): A(f"v_mul_f32 {v(ST+2*nt)}, {fl(-LOG2E)}, {v(ST+2*nt+1)}")
    A(f"v_lshlrev_b32 {v(T)}, 4, {v(vLANE)}")
    A(f"s_lshl_b32 s32, {s(sNH)}, 10")
    A(f"v_add_u32 {v(T+1)}, s32, {v(T)}")
    A(f"v_xor_b32 {v(T+4)}, 1024, {v(T+1)}")
    A(f"s_lshl_b32 s32, {s(sRT)}, 2"); A(f"s_lshl_b32 s33, {s(sNH)}, 1"); A("s_add_u32 s32, s32, s33"); A("s_mul_i32 s32, s32, 86")
    A(f"s_lshl_b32 s36, {s(sFC)}, 1"); A(f"s_add_u32 s36, s36, {s(sMH)}")
    A("s_mul_i32 s33, s36, 3"); A("s_add_u32 s32, s32, s33"); A("s_lshl_b32 s32, s32, 10")
    A(f"s_add_u32 s34, s32, {WS_H}"); A(f"s_add_u32 s35, s34, {86*1024}")
    A(f"v_mov_b32 {v(T+2)}, 1.0")
    stamp(A, 7)
    for sl in range(3):
        if sl != 1:
            A(f"s_cmp_ge_u32 s33, {85 if sl == 0 else 84}"); A("s_cbranch_scc1 L_e1end")
        va, off = ((T+1, 0), (T+4, 0), (T, 2048))[sl]
        for nt in range(2):
            a = G_ACC + 16*(2*sl+nt)
            for k in range(4): A(f"v_pk_mul_f32 {v(a+2*k,2)}, {v(a+2*k,2)}, {v(ST+2*nt,2)} op_sel_hi:[1,0]")
            for k in range(8): A(f"v_exp_f32 {v(a+k)}, {v(a+k)}")
            for k in range(4): A(f"v_pk_add_f32 {v(a+2*k,2)}, {v(a+2*k,2)}, {v(T+2,2)} op_sel_hi:[1,0]")
            for k in range(8): A(f"v_rcp_f32 {v(a+k)}, {v(a+k)}")
            for k in range(4): A(f"v_pk_mul_f32 {v(a+2*k,2)}, {v(a+2*k,2)}, {v(a+8+2*k,2)}")
            for k in range(4): A(f"v_cvt_pk_bf16_f32 {v(a+8+k)}, {v(a+2*k)}, {v(a+2*k+1)}")
            A(f"buffer_store_dwordx4 {v(a+8,4)}, {v(va)}, {s(sWS,4)}, s{34+nt} offen offset:{off} {SC}")
    A.label("L_e1end")
    stamp(A, 8)
    A(f"s_lshl_b32 s32, {s(sRT)}, 1"); A(f"s_add_u32 s32, s32, {s(sNH)}"); A("s_lshl_b32 s32, s32, 5"); A("s_add_u32 s32, s32, s36")
    A("s_lshl_b32 s32, s32, 6"); A(f"s_add_u32 s36, s32, {FL_H}")
    A("s_waitcnt vmcnt(0)")
    stamp(A, 9)
    gflag_store(36, T)
    A.label("L_g2")
    sTB, sKQ = sA, sB2
    vS = 15
    g2_setup(A, sKQ, vR=8, T=10)
    A(f"s_lshl_b32 s32, {s(sKQ)}, 3"); A(f"s_add_u32 s32, s32, {C_HP}")
    A(f"v_and_b32 v4, 1, {v(vLANE)}"); A("v_lshl_add_u32 v4, v4, 2, s32")
    A(f"s_xor_b32 s32, {s(sWAVE)}, 1"); A("s_lshl_b32 s32, s32, 2"); A(f"s_add_u32 s32, s32, {C_FREE}")
    A("v_mov_b32 v5, s32")
    wd_addr(A, 6, 10)
    A(f"v_add_u32 v7, 14336, v6")
    A(f"s_mul_i32 s40, {s(sKQ)}, {43*16384}"); A(f"s_lshl_b32 s41, {s(sDT)}, 7"); A("s_add_u32 s40, s40, s41")
    A(f"s_lshl_b32 s41, {s(sTB)}, 13"); A("s_add_u32 s40, s40, s41"); A(f"s_add_u32 s40, s40, {G2_NA*16384}")
    A(f"s_mul_i32 s41, {s(sKQ)}, {G2_NA*2048}"); A(f"s_lshl_b32 s42, {s(sTB)}, 10"); A("s_add_u32 s41, s41, s42")
    spin(4, 10, 1)
    stamp(A, 10)
    g2_pull(A)
    sig(vS, 10, 17)
    fin_loads(A, sTT, sDT, SC, 248, 10)
    spin(5, 10, 17)
    for i in range(43 - G2_NA):
        if i % 2 == 0:
            A(f"s_add_u32 m0, s41, {2048*i}")
            if i: A("s_add_u32 s40, s40, 32768")
            else: A("s_nop 0")
        A(f"buffer_load_dwordx4 {v(6 + i%2)}, {s(sWD,4)}, s40 offen offset:{2048*(i%2)} lds")
    stamp(A, 11)
    A(f"v_min_u32 v11, 14, {v(vLANE)}"); A("v_lshlrev_b32 v11, 6, v11")
    A(f"s_lshl_b32 s32, {s(sTT)}, 5"); A(f"s_mul_i32 s33, {s(sKQ)}, 14"); A("s_add_u32 s32, s32, s33"); A("s_lshl_b32 s32, s32, 6")
    A(f"s_add_u32 s36, s32, {FL_H}")
    gpoll(11, 36, 1, 0, 12, after_first=lambda: sig(vS, 10, 18))
    stamp(A, 12)
    def mid():
        A("s_waitcnt lgkmcnt(0)"); spin(5, 11, 18)
    g2_main(A, sTT, sTB, sKQ, SC, mid=mid)
    stamp(A, 13)
    poll_addr(A, 4, C_HP, 4)
    spin(4, 11, 3)
    g2_partials(A, sTB, sKQ)
    A("s_branch L_final")

if Stamp.on: A("v_mov_b32 v255, 0"); stamp(A, 0)
A("s_load_dwordx16 s[64:79], s[0:1], 0")
A("s_load_dwordx16 s[80:95], s[0:1], 64")
A("v_lshrrev_b32 v2, 6, v0")
A(f"v_and_b32 {v(vLANE)}, 63, v0")
A(f"v_readfirstlane_b32 {s(sWAVE)}, v2")
A("s_cmp_ge_u32 s2, 256"); A("s_cbranch_scc1 L_done")
A(f"s_cmp_lt_u32 {s(sWAVE)}, 4"); A("s_cbranch_scc1 L_g")
A(f"s_cmp_ge_u32 {s(sWAVE)}, 6"); A("s_cbranch_scc1 L_kg")
mapping(); loader(); h_common()
A(".p2align 6"); A.label("L_kg"); mapping(); kg()
A(".p2align 6"); A.label("L_g"); mapping(); gwave()
lines = A.lines + ["    .p2align 6"] + SLOW.lines
if OPT["ALIGN"]:
    lines, npm, nn = align8(lines); print("align: promoted", npm, "nops", nn)
body = "\n".join(lines) + "\n"
out = HDR + f"; @launch grid=(256,1,1) block=(512,1,1) lds={LDS_TOTAL}\n"
out += f'.amdgcn_target "amdgcn-amd-amdhsa--gfx950"\n.text\n.globl {KNAME}\n.p2align 8\n.type {KNAME},@function\n{KNAME}:\n' + body
out += f""".section .rodata,"a"
.p2align 6
.amdhsa_kernel {KNAME}
  .amdhsa_next_free_vgpr 256
  .amdhsa_next_free_sgpr 102
  .amdhsa_accum_offset 256
  .amdhsa_group_segment_fixed_size 0
  .amdhsa_kernarg_size 128
  .amdhsa_user_sgpr_count 2
  .amdhsa_user_sgpr_kernarg_segment_ptr 1
  .amdhsa_system_sgpr_workgroup_id_x 1
.end_amdhsa_kernel
"""
open(sys.argv[1], "w").write(out)
print("hazards:", check(body))
```

```python
import sys, re
K = "recurrent_scan__ssm_conv_s4__glu_gated_glu__prompt_kernel"
MULT = 4
def mk(srcf, dst, w, k, mode):
    src = open(srcf).read()
    main = f"; @launch kernel={K} grid=(256,1,1) block=(512,1,1) lds=163840\n"
    pr = "; @launch kernel=probe_kernel grid=(1,1,1) block=(256,1,1) lds=64\n"
    red = {"max": "ds_max_u32", "avg": "ds_add_u32", "min": "ds_min_u32"}[mode]
    code = f""".globl probe_kernel
.p2align 8
.type probe_kernel,@function
probe_kernel:
    s_cmp_lg_u32 s2, 0
    s_cbranch_scc1 P_done
    s_load_dwordx2 s[8:9], s[0:1], 120
    s_memrealtime s[20:21]
    s_mov_b32 s10, 0x10000000
    s_mov_b32 s11, 0x20000
    v_lshlrev_b32 v1, 11, v0
    v_mov_b32 v4, 0
    v_mov_b32 v5, -1
    v_mov_b32 v6, {-1 if mode == 'min' else 0}
    ds_write_b32 v4, v5
    ds_write_b32 v4, v6 offset:4
    s_mov_b32 s12, 0x1000000
    s_waitcnt lgkmcnt(0)
    buffer_load_dword v2, v1, s[8:11], s12 offen offset:128
    buffer_load_dword v3, v1, s[8:11], s12 offen offset:{w*256 + 128 + 4*k}
    s_barrier
    s_waitcnt vmcnt(0)
    ds_min_u32 v4, v2
    s_waitcnt lgkmcnt(0)
    s_barrier
    ds_read_b32 v5, v4
    s_waitcnt lgkmcnt(0)
    v_cmp_ne_u32 vcc, 0, v3
    v_sub_u32 v3, v3, v5
    s_and_saveexec_b64 s[14:15], vcc
    {red} v4, v3 offset:4
    s_mov_b64 exec, s[14:15]
    s_waitcnt lgkmcnt(0)
    s_barrier
    ds_read_b32 v5, v4 offset:4
    s_waitcnt lgkmcnt(0)
    v_readfirstlane_b32 s16, v5
    s_nop 3
    s_mul_i32 s16, s16, {MULT if k >= 0 else 0}
    s_lshr_b32 s16, s16, {8 if mode == 'avg' else 0}
    s_min_u32 s16, s16, 40000
    s_add_u32 s16, s16, 400
P_spin:
    s_memrealtime s[22:23]
    s_waitcnt lgkmcnt(0)
    s_sub_u32 s17, s22, s20
    s_cmp_lt_u32 s17, s16
    s_cbranch_scc1 P_spin
P_done:
    s_endpgm
"""
    kd = """.p2align 6
.amdhsa_kernel probe_kernel
  .amdhsa_next_free_vgpr 32
  .amdhsa_next_free_sgpr 102
  .amdhsa_accum_offset 32
  .amdhsa_group_segment_fixed_size 0
  .amdhsa_kernarg_size 128
  .amdhsa_user_sgpr_count 2
  .amdhsa_user_sgpr_kernarg_segment_ptr 1
  .amdhsa_system_sgpr_workgroup_id_x 1
.end_amdhsa_kernel
"""
    s = re.sub(r"; @launch grid.*\n", main + pr, src)
    s = s.replace('.section .rodata,"a"', code + '.section .rodata,"a"\n' + kd, 1)
    open(dst, "w").write(s)
if __name__ == "__main__":
    src = sys.argv[1]
    for i, spec in enumerate(sys.argv[2:]):
        w, k, mode = spec.split(",")
        mk(src, f"p{i}.s", int(w), int(k), mode)
```

```python
from roles import *
import roles
def kg_prep(A, sD, sT, T, P, U, DT, nparam):
    A("s_waitcnt lgkmcnt(0)")
    A(f"s_bitcmp1_b32 {s(sD)}, 0")
    A(f"s_cselect_b32 {s(sT+2)}, 0, 16")
    A(f"s_lshl_b32 {s(sT)}, {s(sT)}, {s(sT+2)}")
    A(f"s_lshl_b32 {s(sT+1)}, {s(sT+1)}, {s(sT+2)}")
    A(f"s_and_b32 {s(sT)}, {s(sT)}, 0xffff0000")
    A(f"s_and_b32 {s(sT+1)}, {s(sT+1)}, 0xffff0000")
    hi = struct.unpack("<f", struct.pack("<f", LOG2E))[0]; lo = LOG2E - hi
    A(f"v_mov_b32 {v(T)}, {fl(hi)}")
    A(f"v_mul_f32 {v(T+1)}, {s(sT)}, {v(T)}")
    A(f"v_fma_f32 {v(T+2)}, {s(sT)}, {v(T)}, -{v(T+1)}")
    A(f"v_mov_b32 {v(T+3)}, {fl(lo)}")
    A(f"v_fma_f32 {v(T+2)}, {s(sT)}, {v(T+3)}, {v(T+2)}")
    A(f"v_exp_f32 {v(T+1)}, {v(T+1)}")
    A(f"v_mul_f32 {v(T+2)}, {fl(0.6931471805599453)}, {v(T+2)}")
    A(f"v_fma_f32 {v(T+1)}, {v(T+1)}, {v(T+2)}, {v(T+1)}")
    A(f"v_cvt_pk_bf16_f32 {v(T+1)}, {v(T+1)}, {v(T+1)}")
    A(f"v_and_b32 {v(DT)}, 0xffff0000, {v(T+1)}")
    for i in range(2):
        A(f"v_lshlrev_b32 {v(U+2*i)}, 16, {v(P+i)}")
        A(f"v_and_b32 {v(U+2*i+1)}, 0xffff0000, {v(P+i)}")
    for k in range(4): A(f"v_mul_f32 {v(U+k)}, {v(DT)}, {v(U+k)}")
    for u in range(2):
        A(f"v_mul_f32 {v(U+u)}, {fl(LOG2E)}, {v(U+u)}")
        A(f"v_mul_f32 {v(U+2+u)}, {fl(0.15915494309189535)}, {v(U+2+u)}")

def kg_loads(A, sD, n, P=8, vOff=3, sT=44):
    A(f"s_lshl_b32 {s(sT+2)}, {s(sD)}, 8")
    A(f"v_lshl_add_u32 {v(vOff)}, {v(vLANE)}, 2, {s(sT+2)}")
    for i, p in enumerate((P_ARE, P_AIM, P_BRE, P_BIM, P_CRE, P_CIM)[:n]):
        A(f"global_load_dword {v(P+i)}, {v(vOff)}, {s(p,2)}")
    A(f"s_lshr_b32 {s(sT+2)}, {s(sD)}, 1")
    A(f"s_lshl_b32 {s(sT+2)}, {s(sT+2)}, 2")
    A(f"s_load_dword {s(sT)}, {s(P_LDT,2)}, {s(sT+2)}")
    A(f"s_load_dword {s(sT+1)}, {s(P_DSK,2)}, {s(sT+2)}")

def anchors(A, lst, U, T):
    it = [(Z + 2*u, e, u, T + 4*(2*k+u)) for k, (Z, e) in enumerate(lst) for u in range(2)]
    for z, e, u, t in it:
        A(f"v_mul_f32 {v(t)}, {fl(e)}, {v(U+u)}")
        A(f"v_mul_f32 {v(t+1)}, {fl(e)}, {v(U+2+u)}")
    for z, e, u, t in it:
        A(f"v_rndne_f32 {v(t+2)}, {v(t+1)}")
        A(f"v_exp_f32 {v(t)}, {v(t)}")
    for z, e, u, t in it: A(f"v_sub_f32 {v(t+1)}, {v(t+1)}, {v(t+2)}")
    for z, e, u, t in it:
        A(f"v_cos_f32 {v(t+2)}, {v(t+1)}")
        A(f"v_sin_f32 {v(t+3)}, {v(t+1)}")
    A("s_nop 0")
    for z, e, u, t in it:
        A(f"v_mul_f32 {v(z)}, {v(t+2)}, {v(t)}")
        A(f"v_mul_f32 {v(z+1)}, {v(t+3)}, {v(t)}")

class Rows:
    def __init__(self, A, vW, PK, neg): self.A, self.vW, self.PK, self.neg, self.n = A, vW, PK, neg, 0
    def emit(self, items):
        A = self.A; out = []
        for rows, src in items:
            b = self.PK + 2 * (self.n % 8); self.n += 1
            for u in range(2): A(f"v_cvt_pk_bf16_f32 {v(b+u)}, {v(src+2*u)}, {'-' if self.neg else ''}{v(src+2*u+1)}")
            out += [(r, b) for r in rows]
        for r, b in out: A(f"ds_write_b64 {v(self.vW)}, {v(b,2)} offset:{r*KROW}")

def pairs(x): return [x, x + 2]

def kg_x(A, sD, sXS, sT=44, P=8):
    DT = 14; vW = 15; U = 16; Z1, Z2, Z8, ZB = 28, 32, 36, 40; T = 44; PK = 72; XW = 88; XW2 = 124
    A(f"v_lshl_add_u32 {v(vW)}, {v(vLANE)}, 3, {s(sXS)}")
    kg_prep(A, sD, sT, T, P, U, DT, 6)
    anchors(A, [(Z1, 1.0), (Z8, 8.0), (ZB, 256.0)], U, T)
    A("s_waitcnt vmcnt(0)")
    for u in range(2):
        sh = (lambda d, p: f"v_lshlrev_b32 {v(d)}, 16, {v(p)}") if u == 0 else (lambda d, p: f"v_and_b32 {v(d)}, 0xffff0000, {v(p)}")
        for i in range(2): A(sh(T+2*u+i, P+2+i))
        for i in range(2): A(sh(T+4+2*u+i, P+4+i))
    for k in range(4): A(f"v_mul_f32 {v(T+k)}, {v(DT)}, {v(T+k)}")
    x = lambda i: XW + 4 * i
    where = {}
    for h in range(2):
        for reg, c in enumerate(CROWS[h]): where.setdefault(c, []).append(mrow(h, reg))
    R = Rows(A, vW, PK, True)
    cmul2(A, pairs(x(0)) + pairs(Z2), pairs(T+4) + pairs(Z1), pairs(T) + pairs(Z1))
    cmul2(A, pairs(x(1)) + pairs(x(2)) + pairs(x(8)), pairs(x(0)) * 3, pairs(Z1) + pairs(Z2) + pairs(Z8))
    R.emit([(where[0], x(0))])
    loc = {i: x(i) for i in (0, 2, 4, 6, 8)}
    alt = {0: XW2, 2: XW2+4, 4: XW2+8, 6: XW2+12, 8: XW2+16}
    alt2 = {0: XW2+20, 8: XW2+24}
    def stepq(q, offs):
        ds, ps = [], []
        for o in offs:
            ds += pairs(alt[o]); ps += pairs(loc[o])
            new = alt[o]
            alt[o] = alt2.pop(o) if o in alt2 else loc[o]
            loc[o] = new
        return ds, ps, pairs(ZB) * len(offs), [(where[256*q+o], loc[o]) for o in offs]
    pend = [(where[1], x(1)), (where[2], x(2))]
    plan = [([(3,1),(4,2)], 1, (0, 8)), ([(5,3),(6,4)], 2, (0, 8)), ([(7,5)], 3, (0, 8))]
    for small, q, offs in plan:
        ds, ps, zs, em = stepq(q, offs)
        for d, p in small: ds += pairs(x(d)); ps += pairs(x(p)); zs += pairs(Z2)
        cmul2(A, ds, ps, zs)
        R.emit(pend); pend = em + [(where[d], x(d)) for d, p in small]
    rest = [[(4,(0,8)), (1,(2,4))], [(5,(0,8)), (1,(6,)), (2,(4,))], [(6,(0,8)), (3,(4,))], [(7,(0,8))]]
    for grp in rest:
        ds, ps, zs, em = [], [], [], []
        for q, offs in grp:
            a, b, c, e = stepq(q, offs); ds += a; ps += b; zs += c; em += e
        cmul2(A, ds, ps, zs)
        R.emit(pend); pend = em
    R.emit(pend)
    A("s_waitcnt lgkmcnt(0)")

def kg_y(A, sD, sKB, sXS, wait_x, x_done, sT=44, P=8):
    DT = 14; vW = 15; vR = 16; vRX = 17; U = 18; Z8, Z16 = 24, 28; T = 32; PK = 48
    YF = 64; XW = 128; XF = 184; ACC = 200; Y = 216
    A(f"v_lshl_add_u32 {v(vW)}, {v(vLANE)}, 3, {s(sKB)}")
    A(f"v_and_b32 {v(T)}, 31, {v(vLANE)}")
    A(f"v_mul_u32_u24 {v(T)}, {KROW}, {v(T)}")
    A(f"v_lshrrev_b32 {v(T+1)}, 5, {v(vLANE)}")
    A(f"v_lshlrev_b32 {v(T+1)}, 4, {v(T+1)}")
    A(f"v_add3_u32 {v(vR)}, {v(T)}, {v(T+1)}, {s(sKB)}")
    A(f"v_add3_u32 {v(vRX)}, {v(T)}, {v(T+1)}, {s(sXS)}")
    A(f"v_mov_b32 {v(XF)}, 0x3f80"); A(f"v_mov_b32 {v(XF+1)}, 0x3f80")
    A(f"ds_write_b64 {v(vW)}, {v(XF,2)}")
    kg_prep(A, sD, sT, T, P, U, DT, 2)
    anchors(A, [(Z8, 8.0), (Z16, 16.0)], U, T)
    R = Rows(A, vW, PK, False)
    cur = [Z8, Z16]; pend = [([1], Z8), ([2], Z16)]
    for j in range(3, 32, 2):
        k = ((j - 3) // 2) & 1
        n = 2 if j + 1 < 32 else 1
        nxt = [Y + 8*k, Y + 8*k + 4][:n]
        cmul2(A, sum([pairs(d) for d in nxt], []), sum([pairs(c) for c in cur[:n]], []), pairs(Z16) * n)
        R.emit(pend); pend = [([j + i], nxt[i]) for i in range(n)]
        cur = nxt
    R.emit(pend)
    for k in range(16): A(f"ds_read_b128 {v(YF+4*k,4)}, {v(vR)} offset:{32*k}")
    A(f"v_and_b32 {v(T)}, 31, {v(vLANE)}")
    A(f"v_lshlrev_b32 {v(T)}, 4, {v(T)}")
    A(f"v_lshrrev_b32 {v(T+1)}, 5, {v(vLANE)}")
    A(f"v_lshlrev_b32 {v(T+1)}, 9, {v(T+1)}")
    A(f"v_add_u32 {v(T)}, {v(T)}, {v(T+1)}")
    A(f"v_sub_u32 {v(T)}, {4080-3072}, {v(T)}")
    A(f"v_add_u32 {v(T)}, {s(sKB)}, {v(T)}")
    A(f"v_mov_b32 {v(T+2)}, 0")
    A(f"v_writelane_b32 {v(T+2)}, {s(sT+1)}, 0")
    for i in range(4): A(f"v_mov_b32 {v(T+12+i)}, 0")
    A(f"v_lshrrev_b32 {v(T+4)}, 2, {v(vLANE)}")
    A(f"v_mul_u32_u24 {v(T+4)}, {KCS}, {v(T+4)}")
    A(f"v_and_b32 {v(T+5)}, 3, {v(vLANE)}")
    A(f"v_lshlrev_b32 {v(T+5)}, 4, {v(T+5)}")
    A(f"v_add3_u32 {v(T+4)}, {v(T+4)}, {v(T+5)}, {s(sKB)}")
    A(f"v_lshl_add_u32 {v(T+6)}, {v(vLANE)}, 4, {s(sKB)}")
    wait_x()
    XB = XW
    def xr(k): return XW + 4*k if k < 14 else XF + 4*(k-14)
    for k in range(16): A(f"ds_read_b128 {v(xr(k),4)}, {v(vRX)} offset:{32*k}")
    for k in range(16):
        if k % 2 == 0: A(f"s_waitcnt lgkmcnt({14-k})")
        A(f"v_mfma_f32_32x32x16_bf16 {v(ACC,16)}, {v(xr(k),4)}, {v(YF+4*k,4)}, {'0' if k == 0 else v(ACC,16)}")
    x_done()
    A(f"v_and_b32 {v(T+1)}, 1, {v(vLANE)}")
    A(f"v_cmp_eq_u32 vcc, 1, {v(T+1)}")
    A(f"s_mov_b64 exec, 0xffff")
    A(f"ds_write_b128 {v(T+4)}, {v(T+12,4)} offset:4096")
    A(f"s_mov_b64 exec, -1")
    A("s_nop 4")
    A(f"v_add_f32 {v(ACC)}, {v(ACC)}, {v(T+2)}")
    C = YF
    for p in range(4): A(f"v_cvt_pk_bf16_f32 {v(C+p)}, {v(ACC+7-2*p)}, {v(ACC+6-2*p)}")
    A(f"ds_write_b128 {v(T)}, {v(C,4)} offset:3072")
    for p, (a_, b_) in enumerate(((10,10),(9,9),(9,8),(8,8))): A(f"v_cvt_pk_bf16_f32 {v(C+4+p)}, {v(ACC+a_)}, {v(ACC+b_)}")
    A(f"ds_write_b128 {v(T)}, {v(C+4,4)} offset:2048")
    for qq, lo_ in ((2, 11), (3, 13)):
        c = C + 4 * qq
        A(f"v_cndmask_b32 {v(T+3)}, {v(ACC+lo_)}, {v(ACC+lo_+1)}, vcc")
        A(f"v_cvt_pk_bf16_f32 {v(c)}, {v(ACC+lo_+1)}, {v(ACC+lo_+1)}")
        A(f"v_cvt_pk_bf16_f32 {v(c+1)}, {v(ACC+lo_+1)}, {v(T+3)}")
        A(f"v_cvt_pk_bf16_f32 {v(c+2)}, {v(ACC+lo_)}, {v(ACC+lo_)}")
        A(f"v_cvt_pk_bf16_f32 {v(c+3)}, {v(ACC+lo_)}, {v(ACC+lo_)}")
        A(f"ds_write_b128 {v(T)}, {v(c,4)} offset:{1024*(3-qq)}")
    Rr = YF + 16; vC = T + 6
    for it in range(4):
        A(f"ds_read_b128 {v(Rr+8*it,4)}, {v(vC)} offset:{1024*it}")
        A(f"ds_read_b64 {v(Rr+8*it+4,2)}, {v(vC)} offset:{1024*it+16}")
    for it in range(4):
        R_ = Rr + 8 * it; O = XW + 12 * it
        A(f"s_waitcnt lgkmcnt({6 + it})")
        for k in range(4): A(f"v_alignbit_b32 {v(O+k)}, {v(R_+k+1)}, {v(R_+k)}, 16")
        A(f"ds_write_b128 {v(vC)}, {v(O,4)} offset:{KCS+1024*it}")
        for k in range(4): A(f"v_mov_b32 {v(O+4+k)}, {v(R_+k+1)}")
        A(f"ds_write_b128 {v(vC)}, {v(O+4,4)} offset:{2*KCS+1024*it}")
        for k in range(4): A(f"v_alignbit_b32 {v(O+8+k)}, {v(R_+k+2)}, {v(R_+k+1)}, 16")
        A(f"ds_write_b128 {v(vC)}, {v(O+8,4)} offset:{3*KCS+1024*it}")
    A("s_waitcnt lgkmcnt(0)")
```

```python
from asmlib import *
import struct
def fl(x): return "0x%08x" % struct.unpack("<I", struct.pack("<f", x))[0]
LOG2E = 1.4426950408889634

WS_U  = 0x100000; UBLK = 8320
WS_H  = 0x400000
WS_S  = 0xA00000
WS_SIZE = 0x10000000
WSLOT = 12352; NWS = 5; UPOFF = 6176
XSLOT = 16384; NXS = 3
L_W = 0
L_X = L_W + WSLOT * NWS
L_RINGEND = L_X + XSLOT * NXS
KCS = 4160; KROW = 528
L_K = [L_RINGEND, L_RINGEND + 16896]
L_U = [L_RINGEND + 2 * 16896, L_RINGEND + 2 * 16896 + 4608]
L_SSMEND = L_U[1] + 4608
L_ST = L_SSMEND
L_CTL = L_ST + 8192
L_CS = L_CTL + 256
LDS_TOTAL = 163840
sX, sWG, sWU, sWD, sWS, sOUT = 8, 12, 16, 20, 24, 28
KA = 64
P_X, P_ARE, P_AIM, P_BRE, P_BIM, P_CRE, P_CIM, P_LDT, P_DSK, P_BX, P_WG, P_WU, P_WD, P_OUT, P_DBG, P_WS = [KA + 2 * i for i in range(16)]
sWAVE = 3
vLANE = 1

def prologue(A, nwg=256, done="L_done"):
    A(f"s_load_dwordx16 s[64:79], s[0:1], 0")
    A(f"s_load_dwordx16 s[80:95], s[0:1], 64")
    A(f"s_cmp_ge_u32 s2, {nwg}")
    A(f"s_cbranch_scc1 {done}")
    A(f"v_lshrrev_b32 v2, 6, v0")
    A(f"v_and_b32 {v(vLANE)}, 63, v0")
    A(f"v_readfirstlane_b32 {s(sWAVE)}, v2")
    for srd, sz in ((sX, 0x200000), (sWG, 1409024), (sWU, 1409024), (sWD, 1409024), (sWS, WS_SIZE), (sOUT, 0x200000)):
        A(f"s_mov_b32 {s(srd+2)}, {sz}")
        A(f"s_mov_b32 {s(srd+3)}, 0x20000")
    A("s_waitcnt lgkmcnt(0)")
    for srd, p in ((sX, P_X), (sWG, P_WG), (sWU, P_WU), (sWD, P_WD), (sWS, P_WS), (sOUT, P_OUT)):
        A(f"s_mov_b64 {s(srd,2)}, {s(p,2)}")

def ln_loads(A, sB, X=16, vOff=2, sT=32):
    A(f"v_lshlrev_b32 {v(vOff)}, 4, {v(vLANE)}")
    A(f"s_lshl_b32 {s(sT)}, {s(sB)}, 13")
    A(f"s_add_u32 {s(sT+1)}, {s(sT)}, 4096")
    for r in range(8):
        A(f"buffer_load_dwordx4 {v(X+4*r,4)}, {v(vOff)}, {s(sX,4)}, {s(sT + r//4)} offen offset:{(r%4)*1024}")

def reduce8(A, S):
    A("s_nop 2")
    for i in range(4): A(f"v_permlane32_swap_b32 {v(S+i)}, {v(S+i+4)}")
    for i in range(4): A(f"v_add_f32 {v(S+i)}, {v(S+i)}, {v(S+i+4)}")
    A("s_nop 0")
    for i in range(2): A(f"v_permlane16_swap_b32 {v(S+i)}, {v(S+i+2)}")
    for i in range(2): A(f"v_add_f32 {v(S+i)}, {v(S+i)}, {v(S+i+2)}")
    for k in (8, 4, 2, 1):
        A("s_nop 0")
        for i in range(2): A(f"v_add_f32_dpp {v(S+i)}, {v(S+i)}, {v(S+i)} row_ror:{k} row_mask:0xf bank_mask:0xf")

def ln_compute(A, sB, sc, X=16, D=48, T=112, vOff=2, sM=36, sT=32, extra_vm=0):
    S = T; ONE = T + 8; LO = T + 9; HI = T + 10; MU = T + 12; M = T + 14; Q = X
    A(f"v_mov_b32 {v(ONE)}, 0x3f803f80")
    A(f"v_mov_b32 {v(LO)}, 0x3f80")
    A(f"v_mov_b32 {v(HI)}, 0x3f800000")
    for q in range(4):
        for r in range(8):
            if q == 0: A(f"s_waitcnt vmcnt({7-r+extra_vm})")
            A(f"v_dot2_f32_bf16 {v(S+r)}, {v(X+4*r+q)}, {v(ONE)}, {'0' if q == 0 else v(S+r)}")
    reduce8(A, S)
    for i in range(2): A(f"v_mul_f32 {v(MU+i)}, {fl(1/512)}, {v(S+i)}")
    A(f"v_cvt_pk_bf16_f32 {v(S+2)}, {v(MU)}, {v(MU+1)}")
    A(f"v_lshlrev_b32 {v(M)}, 16, {v(S+2)}")
    A(f"v_and_b32 {v(M+1)}, 0xffff0000, {v(S+2)}")
    for i in range(2): A(f"v_xor_b32 {v(S+4+i)}, 0x80000000, {v(M+i)}")
    A("s_nop 0")
    for r in range(8): A(f"v_readlane_b32 {s(sM+r)}, {v(S+4+(r&1))}, {16*(r>>1)}")
    for i in range(2): A(f"v_sub_f32 {v(MU+i)}, {v(MU+i)}, {v(M+i)}")
    for r in range(8):
        for q in range(4):
            A(f"v_dot2_f32_bf16 {v(D+8*r+2*q)}, {v(X+4*r+q)}, {v(LO)}, {s(sM+r)}")
            A(f"v_dot2_f32_bf16 {v(D+8*r+2*q+1)}, {v(X+4*r+q)}, {v(HI)}, {s(sM+r)}")
    for q in range(4):
        for r in range(8):
            d = v(D+8*r+2*q, 2)
            if q == 0: A(f"v_pk_mul_f32 {v(Q+2*r,2)}, {d}, {d}")
            else: A(f"v_pk_fma_f32 {v(Q+2*r,2)}, {d}, {d}, {v(Q+2*r,2)}")
    for r in range(8): A(f"v_add_f32 {v(S+r)}, {v(Q+2*r)}, {v(Q+2*r+1)}")
    reduce8(A, S)
    for i in range(2): A(f"v_mul_f32 {v(S+i)}, {fl(1/512)}, {v(S+i)}")
    for i in range(2): A(f"v_fma_f32 {v(S+i)}, -{v(MU+i)}, {v(MU+i)}, {v(S+i)}")
    for i in range(2): A(f"v_max_f32 {v(S+i)}, 0, {v(S+i)}")
    def rb2():
        A(f"v_cvt_pk_bf16_f32 {v(S+2)}, {v(S)}, {v(S+1)}")
        A(f"v_lshlrev_b32 {v(S)}, 16, {v(S+2)}")
        A(f"v_and_b32 {v(S+1)}, 0xffff0000, {v(S+2)}")
    rb2()
    for i in range(2): A(f"v_add_f32 {v(S+i)}, {fl(1e-5)}, {v(S+i)}")
    rb2()
    for i in range(2): A(f"v_sqrt_f32 {v(S+i)}, {v(S+i)}")
    A("s_nop 0")
    rb2()
    A(f"v_rcp_f32 {v(S+5)}, {v(S)}")
    A(f"v_rcp_f32 {v(S+7)}, {v(S+1)}")
    A(f"v_mov_b32 {v(S+4)}, {v(M)}")
    A(f"v_mov_b32 {v(S+6)}, {v(M+1)}")
    for r in range(8): A(f"v_readlane_b32 {s(sM+r)}, {v(S+5+2*(r&1))}, {16*(r>>1)}")
    A(f"s_mul_i32 {s(sT)}, {s(sB)}, {UBLK}")
    A(f"s_add_u32 {s(sT)}, {s(sT)}, {WS_U}")
    A(f"s_add_u32 {s(sT+1)}, {s(sT)}, 4096")
    A(f"s_add_u32 {s(sT+2)}, {s(sT)}, 8192")
    for r in range(8):
        sel = "op_sel_hi:[1,0]" if r % 2 == 0 else "op_sel:[0,1] op_sel_hi:[1,1]"
        for q in range(4):
            d = v(D+8*r+2*q, 2)
            A(f"v_pk_mul_f32 {d}, {d}, {s(sM+(r&~1),2)} {sel}")
    for e in range(8):
        for p in range(4): A(f"v_cvt_pk_bf16_f32 {v(X+4*e+p)}, {v(D+16*p+e)}, {v(D+16*p+8+e)}")
        A(f"buffer_store_dwordx4 {v(X+4*e,4)}, {v(vOff)}, {s(sWS,4)}, {s(sT+e//4)} offen offset:{(e%4)*1024} {sc}")
    A(f"v_lshlrev_b32 {v(S)}, 6, {v(vLANE)}")
    for k in range(4): A(f"ds_bpermute_b32 {v(S+4+k)}, {v(S)}, {v(S+4+k)}")
    A("s_waitcnt lgkmcnt(0)")
    A(f"s_mov_b64 exec, 15")
    A(f"buffer_store_dwordx4 {v(S+4,4)}, {v(vOff)}, {s(sWS,4)}, {s(sT+2)} offen {sc}")
    A(f"s_mov_b64 exec, -1")

CROWS = [[0,1,2,3,4,5,6,7, 512,516,520, 1024,1032, 1536,1544],
         [256,256,258,260,260,260,262,264, 768,772,776, 1280,1288, 1792,1800]]
def mrow(h, reg): return 8 * (reg >> 2) + 4 * h + (reg & 3)

PLAIN = [True]
def cmul2(A, ds, ps, zs):
    for d, p, z in zip(ds, ps, zs): assert d != p and d != z
    if PLAIN[0]:
        for d, p, z in zip(ds, ps, zs):
            A(f"v_mul_f32 {v(d)}, {v(p)}, {v(z)}")
            A(f"v_mul_f32 {v(d+1)}, {v(p)}, {v(z+1)}")
        for d, p, z in zip(ds, ps, zs):
            A(f"v_fma_f32 {v(d)}, -{v(p+1)}, {v(z+1)}, {v(d)}")
            A(f"v_fmac_f32 {v(d+1)}, {v(p+1)}, {v(z)}")
    else:
        for d, p, z in zip(ds, ps, zs): A(f"v_pk_mul_f32 {v(d,2)}, {v(p,2)}, {v(z,2)} op_sel:[0,0] op_sel_hi:[0,1]")
        for d, p, z in zip(ds, ps, zs): A(f"v_pk_fma_f32 {v(d,2)}, {v(p,2)}, {v(z,2)}, {v(d,2)} op_sel:[1,1,0] op_sel_hi:[1,0,1] neg_lo:[0,1,0]")

def kgen_loads(A, sD, P=8, vOff=2, sT=32):
    A(f"s_lshl_b32 {s(sT+2)}, {s(sD)}, 8")
    A(f"v_lshl_add_u32 {v(vOff)}, {v(vLANE)}, 2, {s(sT+2)}")
    for i, p in enumerate((P_ARE, P_AIM, P_BRE, P_BIM, P_CRE, P_CIM)):
        A(f"global_load_dword {v(P+i)}, {v(vOff)}, {s(p,2)}")
    A(f"s_lshr_b32 {s(sT+2)}, {s(sD)}, 1")
    A(f"s_lshl_b32 {s(sT+2)}, {s(sT+2)}, 2")
    A(f"s_load_dword {s(sT)}, {s(P_LDT,2)}, {s(sT+2)}")
    A(f"s_load_dword {s(sT+1)}, {s(P_DSK,2)}, {s(sT+2)}")

def kgen_compute(A, sD, sKB, P=8, sT=32, extra_vm=0, post_y=None):
    DT = 14; vW = 15; vR = 16
    U = 18
    Z1, Z8, ZB, W = 30, 34, 38, 42
    T = 46
    YF = 64
    XW = 128
    XW2 = 164
    XF = 184
    ACC = 200
    PK = 216
    A("s_waitcnt lgkmcnt(0)")
    A(f"s_bitcmp1_b32 {s(sD)}, 0")
    A(f"s_cselect_b32 {s(sT+2)}, 0, 16")
    A(f"s_lshl_b32 {s(sT)}, {s(sT)}, {s(sT+2)}")
    A(f"s_lshl_b32 {s(sT+1)}, {s(sT+1)}, {s(sT+2)}")
    A(f"s_and_b32 {s(sT)}, {s(sT)}, 0xffff0000")
    A(f"s_and_b32 {s(sT+1)}, {s(sT+1)}, 0xffff0000")
    hi = struct.unpack("<f", struct.pack("<f", LOG2E))[0]; lo = LOG2E - hi
    A(f"v_mov_b32 {v(T)}, {fl(hi)}")
    A(f"v_mul_f32 {v(T+1)}, {s(sT)}, {v(T)}")
    A(f"v_fma_f32 {v(T+2)}, {s(sT)}, {v(T)}, -{v(T+1)}")
    A(f"v_mov_b32 {v(T+3)}, {fl(lo)}")
    A(f"v_fma_f32 {v(T+2)}, {s(sT)}, {v(T+3)}, {v(T+2)}")
    A(f"v_exp_f32 {v(T+1)}, {v(T+1)}")
    A(f"v_mul_f32 {v(T+2)}, {fl(0.6931471805599453)}, {v(T+2)}")
    A(f"v_fma_f32 {v(T+1)}, {v(T+1)}, {v(T+2)}, {v(T+1)}")
    A(f"v_cvt_pk_bf16_f32 {v(T+1)}, {v(T+1)}, {v(T+1)}")
    A(f"v_and_b32 {v(DT)}, 0xffff0000, {v(T+1)}")
    A(f"v_lshl_add_u32 {v(vW)}, {v(vLANE)}, 3, {s(sKB)}")
    A(f"v_and_b32 {v(T)}, 31, {v(vLANE)}")
    A(f"v_mul_u32_u24 {v(T)}, {KROW}, {v(T)}")
    A(f"v_lshrrev_b32 {v(T+1)}, 5, {v(vLANE)}")
    A(f"v_lshlrev_b32 {v(T+1)}, 4, {v(T+1)}")
    A(f"v_add3_u32 {v(vR)}, {v(T)}, {v(T+1)}, {s(sKB)}")
    A(f"v_mov_b32 {v(PK)}, 0x3f80")
    A(f"v_mov_b32 {v(PK+1)}, 0x3f80")
    A(f"ds_write_b64 {v(vW)}, {v(PK,2)}")
    A(f"s_waitcnt vmcnt({extra_vm})")
    for i in range(6):
        A(f"v_lshlrev_b32 {v(U+2*i)}, 16, {v(P+i)}")
        A(f"v_and_b32 {v(U+2*i+1)}, 0xffff0000, {v(P+i)}")
    for u in range(2):
        A(f"v_mul_f32 {v(U+u)}, {v(DT)}, {v(U+u)}")
        A(f"v_mul_f32 {v(U+2+u)}, {v(DT)}, {v(U+2+u)}")
    for u in range(2):
        A(f"v_mul_f32 {v(U+u)}, {fl(LOG2E)}, {v(U+u)}")
        A(f"v_mul_f32 {v(U+2+u)}, {fl(0.15915494309189535)}, {v(U+2+u)}")
    def anchor(Z, e):
        for u in range(2):
            t = T + 4 * u
            A(f"v_mul_f32 {v(t)}, {fl(e)}, {v(U+u)}")
            A(f"v_mul_f32 {v(t+1)}, {fl(e)}, {v(U+2+u)}")
            A(f"v_exp_f32 {v(t)}, {v(t)}")
            A(f"v_rndne_f32 {v(t+2)}, {v(t+1)}")
            A(f"v_sub_f32 {v(t+1)}, {v(t+1)}, {v(t+2)}")
            A(f"v_cos_f32 {v(t+2)}, {v(t+1)}")
            A(f"v_sin_f32 {v(t+3)}, {v(t+1)}")
        A("s_nop 0")
        for u in range(2):
            t = T + 4 * u
            A(f"v_mul_f32 {v(Z+2*u)}, {v(t+2)}, {v(t)}")
            A(f"v_mul_f32 {v(Z+2*u+1)}, {v(t+3)}, {v(t)}")
    anchor(Z8, 8.0)
    pk = [0]
    def emit_row(rows, src, neg):
        b = PK + 2 * (pk[0] % 4); pk[0] += 1
        for u in range(2):
            A(f"v_cvt_pk_bf16_f32 {v(b+u)}, {v(src+2*u)}, {'-' if neg else ''}{v(src+2*u+1)}")
        for r in rows: A(f"ds_write_b64 {v(vW)}, {v(b,2)} offset:{r*KROW}")
    pk[0] = 1
    emit_row([1], Z8, False)
    cur = Z8
    Ya, Yb = T + 8, T + 12
    for j in range(2, 32):
        nxt = Ya if j % 2 == 0 else Yb
        cmul2(A, [nxt, nxt+2], [cur, cur+2], [Z8, Z8+2])
        emit_row([j], nxt, False)
        cur = nxt
    for k in range(16): A(f"ds_read_b128 {v(YF+4*k,4)}, {v(vR)} offset:{32*k}")
    if post_y: post_y()
    anchor(Z1, 1.0)
    anchor(ZB, 256.0)
    for u in range(2):
        A(f"v_mul_f32 {v(T+2*u)}, {v(DT)}, {v(U+4+u)}")
        A(f"v_mul_f32 {v(T+2*u+1)}, {v(DT)}, {v(U+6+u)}")
        A(f"v_mov_b32 {v(T+4+2*u)}, {v(U+8+u)}")
        A(f"v_mov_b32 {v(T+5+2*u)}, {v(U+10+u)}")
    x = lambda i: XW + 4 * i
    cmul2(A, [x(0), x(0)+2], [T+4, T+6], [T, T+2])
    where = {}
    for h in range(2):
        for reg, c in enumerate(CROWS[h]): where.setdefault(c, []).append(mrow(h, reg))
    emit_row(where[0], x(0), True)
    for i in range(1, 8):
        cmul2(A, [x(i), x(i)+2], [x(i-1), x(i-1)+2], [Z1, Z1+2])
        emit_row(where[i], x(i), True)
    cmul2(A, [x(8), x(8)+2], [x(0), x(0)+2], [Z8, Z8+2])
    loc = {i: x(i) for i in (0, 2, 4, 6, 8)}
    alt = {0: XW2, 2: XW2+4, 4: XW2+8, 6: XW2+12, 8: XW2+16}
    for q in range(1, 8):
        offs = (0,2,4,6,8) if q == 1 else (0,4,8) if q < 4 else (0,8)
        for o in offs:
            cmul2(A, [alt[o], alt[o]+2], [loc[o], loc[o]+2], [ZB, ZB+2])
            loc[o], alt[o] = alt[o], loc[o]
            emit_row(where[256*q+o], loc[o], True)
    for k in range(4): A(f"ds_read_b128 {v(XF+4*k,4)}, {v(vR)} offset:{32*k}")
    for k in range(16):
        A(f"s_waitcnt lgkmcnt({min(3, 15-k)})")
        c = "0" if k == 0 else v(ACC, 16)
        A(f"v_mfma_f32_32x32x16_bf16 {v(ACC,16)}, {v(XF+4*(k%4),4)}, {v(YF+4*k,4)}, {c}")
        if k + 4 < 16: A(f"ds_read_b128 {v(XF+4*(k%4),4)}, {v(vR)} offset:{32*(k+4)}")
    A(f"v_and_b32 {v(T)}, 31, {v(vLANE)}")
    A(f"v_lshlrev_b32 {v(T)}, 4, {v(T)}")
    A(f"v_lshrrev_b32 {v(T+1)}, 5, {v(vLANE)}")
    A(f"v_lshlrev_b32 {v(T+1)}, 9, {v(T+1)}")
    A(f"v_add_u32 {v(T)}, {v(T)}, {v(T+1)}")
    A(f"v_sub_u32 {v(T)}, {4080-3072}, {v(T)}")
    A(f"v_add_u32 {v(T)}, {s(sKB)}, {v(T)}")
    A(f"v_and_b32 {v(T+1)}, 1, {v(vLANE)}")
    A(f"v_cmp_eq_u32 vcc, 1, {v(T+1)}")
    A(f"v_mov_b32 {v(T+2)}, 0")
    A(f"v_writelane_b32 {v(T+2)}, {s(sT+1)}, 0")
    for i in range(4): A(f"v_mov_b32 {v(T+12+i)}, 0")
    A(f"v_add_f32 {v(ACC)}, {v(ACC)}, {v(T+2)}")
    C = YF
    for p in range(4): A(f"v_cvt_pk_bf16_f32 {v(C+p)}, {v(ACC+7-2*p)}, {v(ACC+6-2*p)}")
    A(f"ds_write_b128 {v(T)}, {v(C,4)} offset:3072")
    for p, (a_, b_) in enumerate(((10,10),(9,9),(9,8),(8,8))): A(f"v_cvt_pk_bf16_f32 {v(C+4+p)}, {v(ACC+a_)}, {v(ACC+b_)}")
    A(f"ds_write_b128 {v(T)}, {v(C+4,4)} offset:2048")
    for qq, lo_ in ((2, 11), (3, 13)):
        c = C + 4 * qq
        A(f"v_cndmask_b32 {v(T+3)}, {v(ACC+lo_)}, {v(ACC+lo_+1)}, vcc")
        A(f"v_cvt_pk_bf16_f32 {v(c)}, {v(ACC+lo_+1)}, {v(ACC+lo_+1)}")
        A(f"v_cvt_pk_bf16_f32 {v(c+1)}, {v(ACC+lo_+1)}, {v(T+3)}")
        A(f"v_cvt_pk_bf16_f32 {v(c+2)}, {v(ACC+lo_)}, {v(ACC+lo_)}")
        A(f"v_cvt_pk_bf16_f32 {v(c+3)}, {v(ACC+lo_)}, {v(ACC+lo_)}")
        A(f"ds_write_b128 {v(T)}, {v(c,4)} offset:{1024*(3-qq)}")
    A(f"v_lshrrev_b32 {v(T+4)}, 2, {v(vLANE)}")
    A(f"v_mul_u32_u24 {v(T+4)}, {KCS}, {v(T+4)}")
    A(f"v_and_b32 {v(T+5)}, 3, {v(vLANE)}")
    A(f"v_lshlrev_b32 {v(T+5)}, 4, {v(T+5)}")
    A(f"v_add3_u32 {v(T+4)}, {v(T+4)}, {v(T+5)}, {s(sKB)}")
    A(f"s_mov_b64 exec, 0xffff")
    A(f"ds_write_b128 {v(T+4)}, {v(T+12,4)} offset:4096")
    A(f"s_mov_b64 exec, -1")
    A(f"v_lshl_add_u32 {v(T)}, {v(vLANE)}, 4, {s(sKB)}")
    Rr = YF + 16
    for it in range(4):
        A(f"ds_read_b128 {v(Rr+8*it,4)}, {v(T)} offset:{1024*it}")
        A(f"ds_read_b64 {v(Rr+8*it+4,2)}, {v(T)} offset:{1024*it+16}")
    for it in range(4):
        R = Rr + 8 * it; O = XW + 12 * it
        A(f"s_waitcnt lgkmcnt({min(15, 6 - 2*it + 3*it)})")
        for k in range(4): A(f"v_alignbit_b32 {v(O+k)}, {v(R+k+1)}, {v(R+k)}, 16")
        A(f"ds_write_b128 {v(T)}, {v(O,4)} offset:{KCS+1024*it}")
        for k in range(4): A(f"v_mov_b32 {v(O+4+k)}, {v(R+k+1)}")
        A(f"ds_write_b128 {v(T)}, {v(O+4,4)} offset:{2*KCS+1024*it}")
        for k in range(4): A(f"v_alignbit_b32 {v(O+8+k)}, {v(R+k+2)}, {v(R+k+1)}, 16")
        A(f"ds_write_b128 {v(T)}, {v(O+8,4)} offset:{3*KCS+1024*it}")

def u_zero(A, sUB, T=46):
    for i in range(4): A(f"v_mov_b32 {v(T+i)}, 0")
    A(f"v_lshl_add_u32 {v(T+4)}, {v(vLANE)}, 4, {s(sUB)}")
    A(f"s_mov_b64 exec, 0xffffffff")
    A(f"ds_write_b128 {v(T+4)}, {v(T,4)}")
    A(f"s_mov_b64 exec, -1")

def u_gather(A, sD, sUB, sc, vT=46, sT=32):
    A(f"v_mul_u32_u24 {v(vT)}, {UBLK}, {v(vLANE)}")
    A(f"s_and_b32 {s(sT)}, {s(sD)}, 7")
    A(f"s_lshl_b32 {s(sT)}, {s(sT)}, 10")
    A(f"s_lshr_b32 {s(sT+1)}, {s(sD)}, 3")
    A(f"s_lshl_b32 {s(sT+1)}, {s(sT+1)}, 4")
    A(f"s_add_u32 {s(sT)}, {s(sT)}, {s(sT+1)}")
    A(f"s_add_u32 {s(sT)}, {s(sT)}, {WS_U}")
    for i in range(4):
        A(f"s_add_u32 m0, {s(sUB)}, {512+1024*i}")
        if i: A(f"s_add_u32 {s(sT)}, {s(sT)}, {64*UBLK}")
        else: A("s_nop 0")
        A(f"buffer_load_dwordx4 {v(vT)}, {s(sWS,4)}, {s(sT)} offen {sc} lds")

CV_ACC = 32; CV_F = 64
def conv_main(A, sKB, sUB, sNH, filler=None, vA=8, vB=9, T=10, il=False):
    A(f"v_and_b32 {v(T)}, 3, {v(vLANE)}")
    A(f"v_sub_u32 {v(T)}, 3, {v(T)}")
    A(f"v_mul_u32_u24 {v(T)}, {KCS}, {v(T)}")
    A(f"v_bfe_u32 {v(T+1)}, {v(vLANE)}, 2, 2")
    A(f"v_lshlrev_b32 {v(T+1)}, 3, {v(T+1)}")
    A(f"v_sub_u32 {v(T)}, {v(T)}, {v(T+1)}")
    A(f"v_and_b32 {v(T+2)}, 48, {v(vLANE)}")
    A(f"s_lshl_b32 s32, {s(sNH)}, 8")
    A(f"s_sub_u32 s33, {s(sKB)}, s32")
    A(f"s_add_u32 s33, s33, {24+256}")
    A(f"v_add3_u32 {v(vA)}, {v(T)}, {v(T+2)}, s33")
    A(f"v_and_b32 {v(T)}, 15, {v(vLANE)}")
    A(f"v_lshlrev_b32 {v(T)}, 5, {v(T)}")
    m_ = 2 if il else 1
    if il:
        A(f"v_add_u32 {v(T)}, {v(T)}, {v(T+2)}")
        A("s_lshl_b32 s32, s32, 1")
    A(f"s_sub_u32 s33, {s(sUB)}, s32")
    A(f"s_add_u32 s33, s33, {m_*(480-192)}")
    if il: A(f"v_lshl_add_u32 {v(vB)}, {v(T)}, 1, s33")
    else: A(f"v_add3_u32 {v(vB)}, {v(T)}, {v(T+2)}, s33")
    def reads(i):
        F = CV_F + 64 * (i & 1); L = []
        order = [("B", 0), ("A", 0)]
        for k in range(1, 8): order += [("B", k), ("A", k)]
        for kind, k in order:
            if kind == "A":
                o = 64 * (59 - i - 8 * k)
                L.append(f"ds_read_b64 {v(F+4*k,2)}, {v(vA)} offset:{o}")
                L.append(f"ds_read_b64 {v(F+4*k+2,2)}, {v(vA)} offset:{o+8}")
            else:
                L.append(f"ds_read_b128 {v(F+32+4*k,4)}, {v(vB)} offset:{m_*(512*k+64*(3-i))}")
        return L
    for l in reads(0): A(l)
    first = set()
    nm = 0
    for i in range(4):
        F = CV_F + 64 * (i & 1)
        nxt = reads(i + 1) if i < 3 else []
        pairs = sorted([(a, b) for a in range(8) for b in range(8) if a + b <= 7], key=lambda p: (max(p), p[0] + p[1]))
        if i > 0: A("s_waitcnt lgkmcnt(0)")
        lastmax = -1
        for n, (a, b) in enumerate(pairs):
            if i == 0 and max(a, b) > lastmax and lastmax < 4:
                lastmax = max(a, b)
                A(f"s_waitcnt lgkmcnt({0 if lastmax == 4 else min(15, 3*(7-lastmax))})")
            c = a + b
            acc = v(CV_ACC + 4 * c, 4)
            src = acc if c in first else "0"
            first.add(c)
            A(f"v_mfma_f32_16x16x32_bf16 {acc}, {v(F+4*a,4)}, {v(F+32+4*b,4)}, {src}")
            nm += 1
            if nxt and (i > 0 or lastmax == 4):
                A(nxt.pop(0))
                if i == 0 and nxt: A(nxt.pop(0))
            if filler: filler(nm)
        assert not nxt

def conv_finish(A, sD, sNH, sXB, sync, sc, T=10, sT=32, clean=False):
    A(f"v_lshl_add_u32 {v(T)}, {v(vLANE)}, 4, {s(sXB)}")
    A(f"s_lshl_b32 {s(sT)}, {s(sNH)}, 12")
    A(f"v_add_u32 {v(T+1)}, {s(sT)}, {v(T)}")
    A(f"s_xor_b32 {s(sT)}, {s(sT)}, 4096")
    A(f"v_add_u32 {v(T)}, {s(sT)}, {v(T)}")
    l1 = A.new("L_cf"); l2 = A.new("L_cf")
    A(f"s_cmp_eq_u32 {s(sNH)}, 0")
    A("s_nop 4")
    A(f"s_cbranch_scc1 {l1}")
    for k in range(4): A(f"ds_write_b128 {v(T+1)}, {v(CV_ACC+4*k,4)} offset:{1024*k}")
    A("s_nop 1")
    for k in range(16): A(f"v_mov_b32 {v(CV_F+16+k)}, {v(CV_ACC+16+k)}")
    A(f"s_branch {l2}")
    A.label(l1)
    for k in range(4): A(f"ds_write_b128 {v(T+1)}, {v(CV_ACC+16+4*k,4)} offset:{1024*k}")
    for k in range(16): A(f"v_mov_b32 {v(CV_F+16+k)}, {v(CV_ACC+k)}")
    A.label(l2)
    A("s_waitcnt lgkmcnt(0)")
    sync()
    for k in range(4): A(f"ds_read_b128 {v(CV_F+4*k,4)}, {v(T)} offset:{1024*k}")
    A(f"v_and_b32 {v(T+2)}, 15, {v(vLANE)}")
    A(f"v_lshlrev_b32 {v(T+2)}, 5, {v(T+2)}")
    A(f"v_bfe_u32 {v(T+3)}, {v(vLANE)}, 4, 1")
    A(f"v_lshlrev_b32 {v(T+3)}, 9, {v(T+3)}")
    A(f"v_lshrrev_b32 {v(T+4)}, 5, {v(vLANE)}")
    A(f"v_lshlrev_b32 {v(T+4)}, 4, {v(T+4)}")
    A(f"v_add3_u32 {v(T+2)}, {v(T+2)}, {v(T+3)}, {v(T+4)}")
    A(f"s_lshl_b32 {s(sT)}, {s(sD)}, 12")
    A(f"s_lshl_b32 {s(sT+1)}, {s(sNH)}, 11")
    A(f"s_add_u32 {s(sT)}, {s(sT)}, {s(sT+1)}")
    A(f"s_add_u32 {s(sT)}, {s(sT)}, {WS_S}")
    A("s_waitcnt lgkmcnt(0)")
    for k in range(16): A(f"v_add_f32 {v(CV_F+k)}, {v(CV_F+k)}, {v(CV_F+16+k)}")
    O = CV_F + 32
    for k in range(8): A(f"v_cvt_pk_bf16_f32 {v(O+k)}, {v(CV_F+2*k)}, {v(CV_F+2*k+1)}")
    if clean:
        for k in range(8): A(f"v_min_u32 {v(O+k)}, -2, {v(O+k)}")
    A("s_nop 1")
    for pr in range(2):
        A(f"v_permlane16_swap_b32 {v(O+4*pr)}, {v(O+4*pr+2)}")
        A(f"v_permlane16_swap_b32 {v(O+4*pr+1)}, {v(O+4*pr+3)}")
    for pr in range(2):
        A(f"buffer_store_dwordx4 {v(O+4*pr,4)}, {v(T+2)}, {s(sWS,4)}, {s(sT)} offen offset:{1024*pr} {sc}")

C_FULL = L_CTL
C_FREE = L_CTL + 16
L_JUNK = L_CTL + 256
def sig_addr(A, vD, sAddr):
    A(f"v_lshlrev_b32 {v(vD)}, 2, {v(vLANE)}")
    A(f"v_add_u32 {v(vD)}, {L_JUNK}, {v(vD)}")
    A(f"v_writelane_b32 {v(vD)}, {sAddr}, 0")
def poll_addr(A, vD, base, n):
    A(f"v_and_b32 {v(vD)}, {n-1}, {v(vLANE)}")
    A(f"v_lshlrev_b32 {v(vD)}, 2, {v(vD)}")
    A(f"v_add_u32 {v(vD)}, {base}, {v(vD)}")
def lds_spin(A, vAddr, vT, n):
    lp = A.new("L_sp")
    A.label(lp)
    A(f"ds_read_b32 {v(vT)}, {v(vAddr)}")
    A("s_waitcnt lgkmcnt(0)")
    A(f"v_cmp_gt_u32 vcc, {n}, {v(vT)}")
    A(f"s_cbranch_vccnz {lp}")
def ctl_init(A, T=4):
    A(f"v_lshlrev_b32 {v(T)}, 2, {v(vLANE)}")
    A(f"v_add_u32 {v(T)}, {L_CTL}, {v(T)}")
    A(f"v_mov_b32 {v(T+1)}, 0")
    A(f"ds_write_b32 {v(T)}, {v(T+1)}")
NSTAGE = 16
L_CSX = L_ST

def lds_signal(A, vAddr, vTmp, val, off):
    A(f"v_mov_b32 {v(vTmp)}, {val}")
    A(f"ds_write_b32 {v(vAddr)}, {v(vTmp)} offset:{off}")

def g1_loader(A, which, sRT, sFC, sROT, D=13, Vw=8, Vx=12, vZ=16, T=18, sT=40, pre=None, post=None):
    srdW = sWG if which == 0 else sWU
    A(f"s_mov_b32 {s(sT)}, 2752")
    A(f"s_mov_b32 {s(sT+1)}, 0x15555556")
    for j in range(3):
        A(f"v_add_u32 {v(T)}, {64*j}, {v(vLANE)}")
        A(f"v_mul_hi_u32 {v(T+1)}, {v(T)}, {s(sT+1)}")
        A(f"v_mul_u32_u24 {v(T+2)}, 12, {v(T+1)}")
        A(f"v_sub_u32 {v(T+2)}, {v(T)}, {v(T+2)}")
        A(f"v_mul_u32_u24 {v(T+1)}, {s(sT)}, {v(T+1)}")
        A(f"v_lshl_add_u32 {v(Vw+j)}, {v(T+2)}, 4, {v(T+1)}")
        if j: A(f"v_subrev_u32 {v(Vw+j)}, {1024*j}, {v(Vw+j)}")
    A(f"v_lshrrev_b32 {v(T)}, 3, {v(vLANE)}")
    A(f"v_lshlrev_b32 {v(T)}, 10, {v(T)}")
    A(f"v_lshrrev_b32 {v(T+1)}, 4, {v(vLANE)}")
    A(f"v_and_b32 {v(T+2)}, 7, {v(vLANE)}")
    A(f"v_xor_b32 {v(T+1)}, {v(T+1)}, {v(T+2)}")
    A(f"v_lshl_add_u32 {v(Vx)}, {v(T+1)}, 4, {v(T)}")
    A(f"v_xor_b32 {v(Vx+1)}, 64, {v(Vx)}")
    A(f"v_add_u32 {v(Vx+2)}, {2*7168}, {v(Vx)}")
    A(f"v_add_u32 {v(Vx+3)}, {3*7168}, {v(Vx+1)}")
    A(f"v_add_u32 {v(Vx+1)}, {7168}, {v(Vx+1)}")
    A(f"s_mov_b32 {s(sT)}, {C_FULL + 4*which}")
    sig_addr(A, vZ, s(sT))
    poll_addr(A, vZ+1, C_FREE, 4)
    sXB, sWB, sC, sXo, sWo = sT+2, sT+3, sT+4, sT+5, sT+6
    A(f"s_lshl_b32 {s(sXB)}, {s(sRT)}, 17")
    if which: A(f"s_add_u32 {s(sXB)}, {s(sXB)}, 65536")
    A(f"s_mul_i32 {s(sWB)}, {s(sFC)}, 192")
    A(f"s_mov_b32 {s(sC)}, {s(sROT)}")
    npre = (pre() or 0) if pre else 0
    ops = []
    for st in range(NSTAGE):
        if st % 2 == 0:
            for i in range(8): ops.append((st, "x", i))
        for i in range(6): ops.append((st, "w", i))
    last_of = {}
    for n, (st, k, i) in enumerate(ops): last_of[st] = n
    signaled = 0
    for n, (st, k, i) in enumerate(ops):
        firstop = n == 0 or ops[n-1][0] != st
        if firstop and st % 2 == 0:
            A(f"s_lshl_b32 {s(sXo)}, {s(sC)}, 7")
            A(f"s_add_u32 {s(sXo)}, {s(sXo)}, {s(sXB)}")
            A(f"s_mul_i32 {s(sWo)}, {s(sC)}, {64*2752}")
            A(f"s_add_u32 {s(sWo)}, {s(sWo)}, {s(sWB)}")
            A(f"s_add_u32 {s(sC)}, {s(sC)}, 1")
            A(f"s_and_b32 {s(sC)}, {s(sC)}, 7")
        if firstop and st >= NWS:
            lds_spin(A, vZ+1, T, st-NWS+1)
        if n >= D:
            A(f"s_waitcnt vmcnt({D-1})")
            done = n - D
            if done == last_of[signaled]:
                signaled += 1
                lds_signal(A, vZ, T, signaled, 0)
        if k == "x":
            if i % 4 == 0:
                A(f"s_mov_b32 m0, {L_X + ((st//2) % NXS) * XSLOT + (8*which + i) * 1024}")
                if i: A(f"s_add_u32 {s(sXo)}, {s(sXo)}, 32768")
                else: A("s_nop 0")
            A(f"buffer_load_dwordx4 {v(Vx + i%4)}, {s(sX,4)}, {s(sXo)} offen offset:{1024*(i%4)} lds")
        else:
            if i % 3 == 0:
                A(f"s_mov_b32 m0, {L_W + (st % NWS) * WSLOT + which * UPOFF + (i//3) * 3072}")
                if i or st % 2: A(f"s_add_u32 {s(sWo)}, {s(sWo)}, {16*2752}")
                else: A("s_nop 0")
            A(f"buffer_load_dwordx4 {v(Vw + i%3)}, {s(srdW,4)}, {s(sWo)} offen offset:{1024*(i%3)} lds")
    npost = (post() or 0) if post else 0
    while signaled < NSTAGE:
        A(f"s_waitcnt vmcnt({len(ops) - 1 - last_of[signaled] + npost})")
        signaled += 1
        lds_signal(A, vZ, T, signaled, 0)

G_ACC = 64
G_CS = 160
G_SEL = 172
G_F = 176
def g1_setup(A, sMH, sNH, vW=8, vXs=9, vC=13, T=16):
    A(f"v_bfe_u32 {v(T)}, {v(vLANE)}, 4, 1")
    A(f"v_mul_u32_u24 {v(T)}, {UPOFF}, {v(T)}")
    A(f"v_lshrrev_b32 {v(T+1)}, 5, {v(vLANE)}")
    A(f"v_bfe_u32 {v(T+2)}, {v(vLANE)}, 2, 2")
    A(f"v_lshl_add_u32 {v(T+2)}, {v(T+1)}, 3, {v(T+2)}")
    A(f"v_mul_u32_u24 {v(T+2)}, 192, {v(T+2)}")
    A(f"v_and_b32 {v(T+3)}, 3, {v(vLANE)}")
    A(f"v_lshl_add_u32 {v(T+2)}, {v(T+3)}, 3, {v(T+2)}")
    A(f"s_mul_i32 s32, {s(sMH)}, 96")
    A(f"v_add3_u32 {v(vW)}, {v(T)}, {v(T+2)}, s32")
    A(f"v_and_b32 {v(T)}, 31, {v(vLANE)}")
    A(f"v_bfe_u32 {v(T+2)}, {v(vLANE)}, 1, 3")
    A(f"v_xor_b32 {v(T+2)}, {v(T+2)}, {v(T+1)}")
    A(f"v_lshlrev_b32 {v(T+2)}, 4, {v(T+2)}")
    A(f"v_lshl_add_u32 {v(T)}, {v(T)}, 7, {v(T+2)}")
    A(f"s_lshl_b32 s32, {s(sNH)}, 13")
    A(f"s_add_u32 s32, s32, {L_X}")
    for k in range(4):
        A(f"v_xor_b32 {v(T+3)}, {32*k}, {v(T)}")
        A(f"v_add_u32 {v(vXs+k)}, s32, {v(T+3)}")
    poll_addr(A, vC, C_FULL, 2)
    A(f"s_lshl_b32 s32, {s(sWAVE)}, 2")
    A(f"s_add_u32 s32, s32, {C_FREE}")
    sig_addr(A, vC+1, "s32")
    A(f"v_lshrrev_b32 {v(T)}, 2, {v(vLANE)}")
    A(f"v_lshrrev_b32 {v(T+1)}, 4, {v(vLANE)}")
    A(f"v_xor_b32 {v(T)}, {v(T)}, {v(T+1)}")
    A(f"v_and_b32 {v(T)}, 1, {v(T)}")
    A(f"v_cmp_eq_u32 vcc, 0, {v(T)}")
    A(f"v_mov_b32 {v(T+1)}, 0x3f803f80")
    A("s_nop 0")
    for k in range(4): A(f"v_cndmask_b32 {v(G_SEL+k)}, 0, {v(T+1)}, vcc")

def g1_main(A, sNH, vW=8, vXs=9, vC=13, T=16):
    def reads(ks):
        st, i = ks // 2, ks % 2
        F = G_F + 20 * (ks & 1); L = []
        wo = L_W + (st % NWS) * WSLOT + i * 3072
        xo = ((ks // 4) % NXS) * XSLOT
        L.append(f"ds_read_b128 {v(F+12,4)}, {v(vXs + ks%4)} offset:{xo}")
        for mt in range(3):
            for h in range(2): L.append(f"ds_read_b64_tr_b16 {v(F+4*mt+2*h,2)}, {v(vW)} offset:{wo + h*768 + mt*32}")
            if mt == 0: L.append(f"ds_read_b128 {v(F+16,4)}, {v(vXs + ks%4)} offset:{xo+4096}")
        return L
    def wait_full(n, pre_read):
        ok = A.new("L_gk")
        if pre_read:
            A(f"v_cmp_gt_u32 vcc, {n}, {v(T)}")
            A(f"s_cbranch_vccz {ok}")
        lds_spin(A, vC, T, n)
        A.label(ok)
    for k in range(12): A(f"v_mov_b32 {v(G_CS+k)}, 0")
    wait_full(1, False)
    for l in reads(0): A(l)
    for ks in range(32):
        F = G_F + 20 * (ks & 1)
        A("s_waitcnt lgkmcnt(0)")
        if ks % 2 == 1:
            lds_signal(A, vC+1, T+2, ks // 2 + 1, 0)
            if ks < 31: wait_full(ks // 2 + 2, True)
        nxt = reads(ks + 1) if ks < 31 else []
        if ks % 2 == 0 and ks < 30: nxt.append(f"ds_read_b32 {v(T)}, {v(vC)}")
        for mt in range(3):
            for nt in range(2):
                acc = v(G_ACC + 16*(2*mt+nt), 16)
                A(f"v_mfma_f32_32x32x16_bf16 {acc}, {v(F+4*mt,4)}, {v(F+12+4*nt,4)}, {'0' if ks == 0 else acc}")
                for _ in range(2):
                    if nxt: A(nxt.pop(0))
        assert not nxt
        if ks == 30:
            A(f"s_mul_i32 s32, {s(sWAVE)}, 768")
            A(f"s_add_u32 s32, s32, {L_CSX}")
            A(f"v_lshl_add_u32 {v(T+4)}, {v(vLANE)}, 2, s32")
            for mt in range(3): A(f"ds_write_b32 {v(T+4)}, {v(G_CS+4*mt)} offset:{256*mt}")
        sk = None
        if ks < 30:
            sk = A.new("L_cs")
            A(f"s_cmp_lg_u32 {s(sNH)}, {ks & 1}")
            A(f"s_cbranch_scc1 {sk}")
        for mt in range(3):
            A(f"v_mfma_f32_16x16x32_bf16 {v(G_CS+4*mt,4)}, {v(G_SEL,4)}, {v(F+4*mt,4)}, {v(G_CS+4*mt,4)}")
        if sk: A.label(sk)

def g1_stats_load(A, sRT, sNH, sc, ST=20, T=24):
    A(f"v_bfe_u32 {v(T)}, {v(vLANE)}, 3, 2")
    A(f"v_mul_u32_u24 {v(T)}, {UBLK}, {v(T)}")
    A(f"v_and_b32 {v(T+1)}, 7, {v(vLANE)}")
    A(f"v_lshl_add_u32 {v(T)}, {v(T+1)}, 3, {v(T)}")
    A(f"s_lshl_b32 s32, {s(sRT)}, 1")
    A(f"s_add_u32 s32, s32, {s(sNH)}")
    A(f"s_mul_i32 s32, s32, {8*UBLK}")
    A(f"s_add_u32 s32, s32, {WS_U + 8192}")
    A(f"s_add_u32 s33, s32, {4*UBLK}")
    for nt in range(2): A(f"buffer_load_dwordx2 {v(ST+2*nt,2)}, {v(T)}, {s(sWS,4)}, s{32+nt} offen {sc}")

def g1_epilogue(A, sRT, sFC, sMH, sNH, sc, ST=20, vC=13, T=24):
    A(f"s_xor_b32 s32, {s(sWAVE)}, 2")
    A(f"s_lshl_b32 s33, s32, 2")
    A(f"s_add_u32 s33, s33, {C_FREE}")
    A(f"v_mov_b32 {v(T)}, s33")
    A(f"s_mul_i32 s32, s32, 768")
    A(f"s_add_u32 s32, s32, {L_CSX}")
    A(f"v_lshl_add_u32 {v(T+1)}, {v(vLANE)}, 2, s32")
    lp = A.new("L_pw")
    A.label(lp)
    A(f"ds_read_b32 {v(T+2)}, {v(T)}")
    for mt in range(3): A(f"ds_read_b32 {v(T+4+mt)}, {v(T+1)} offset:{256*mt}")
    A("s_waitcnt lgkmcnt(0)")
    A(f"v_cmp_gt_u32 vcc, 16, {v(T+2)}")
    A(f"s_cbranch_vccnz {lp}")
    BF = G_F; AF = G_F + 8
    A(f"v_cmp_gt_u32 vcc, 32, {v(vLANE)}")
    A("s_nop 0")
    for nt in range(2):
        A(f"v_xor_b32 {v(T+8)}, 0x80000000, {v(ST+2*nt)}")
        A(f"v_cndmask_b32 {v(T+8)}, 0, {v(T+8)}, vcc")
        A(f"v_lshrrev_b32 {v(BF+4*nt+1)}, 16, {v(T+8)}")
        A(f"v_or_b32 {v(BF+4*nt)}, {v(T+8)}, {v(BF+4*nt+1)}")
        A(f"v_mov_b32 {v(BF+4*nt+2)}, 0")
        A(f"v_mov_b32 {v(BF+4*nt+3)}, 0")
        A(f"v_mul_f32 {v(ST+2*nt)}, {fl(-LOG2E)}, {v(ST+2*nt+1)}")
    for mt in range(3):
        c = T + 4 + mt; a = AF + 4 * mt
        A(f"v_add_f32 {v(c)}, {v(c)}, {v(G_CS+4*mt)}")
        A(f"v_and_b32 {v(T+8)}, 0xffff0000, {v(c)}")
        A(f"v_sub_f32 {v(c)}, {v(c)}, {v(T+8)}")
        A(f"v_and_b32 {v(T+9)}, 0xffff0000, {v(c)}")
        A(f"v_sub_f32 {v(c)}, {v(c)}, {v(T+9)}")
        A(f"v_lshrrev_b32 {v(T+8)}, 16, {v(T+8)}")
        A(f"v_or_b32 {v(a)}, {v(T+8)}, {v(T+9)}")
        A(f"v_lshrrev_b32 {v(a+1)}, 16, {v(c)}")
        A(f"v_mov_b32 {v(a+2)}, 0")
        A(f"v_mov_b32 {v(a+3)}, 0")
    A("s_nop 1")
    for mt in range(3):
        for nt in range(2):
            acc = v(G_ACC + 16*(2*mt+nt), 16)
            A(f"v_mfma_f32_32x32x16_bf16 {acc}, {v(AF+4*mt,4)}, {v(BF+4*nt,4)}, {acc}")
    A(f"v_lshlrev_b32 {v(T)}, 4, {v(vLANE)}")
    A(f"s_lshl_b32 s32, {s(sRT)}, 2")
    A(f"s_lshl_b32 s33, {s(sNH)}, 1")
    A(f"s_add_u32 s32, s32, s33")
    A(f"s_mul_i32 s32, s32, 86")
    A(f"s_mul_i32 s33, {s(sFC)}, 6")
    A(f"s_mul_i32 s34, {s(sMH)}, 3")
    A(f"s_add_u32 s33, s33, s34")
    A(f"s_add_u32 s32, s32, s33")
    A(f"s_lshl_b32 s32, s32, 10")
    A(f"s_add_u32 s34, s32, {WS_H}")
    A(f"s_add_u32 s35, s34, {86*1024}")
    A(f"v_mov_b32 {v(T+2)}, 1.0")
    end = A.new("L_e1")
    for mt in range(3):
        A(f"s_cmp_ge_u32 s33, {86-mt}")
        A(f"s_cbranch_scc1 {end}")
        for nt in range(2):
            a = G_ACC + 16*(2*mt+nt); O = T + 4 + 4 * nt
            for k in range(4): A(f"v_pk_mul_f32 {v(a+2*k,2)}, {v(a+2*k,2)}, {v(ST+2*nt,2)} op_sel_hi:[1,0]")
            for k in range(8): A(f"v_exp_f32 {v(a+k)}, {v(a+k)}")
            for k in range(4): A(f"v_pk_add_f32 {v(a+2*k,2)}, {v(a+2*k,2)}, {v(T+2,2)} op_sel_hi:[1,0]")
            for k in range(8): A(f"v_rcp_f32 {v(a+k)}, {v(a+k)}")
            for k in range(4): A(f"v_pk_mul_f32 {v(a+2*k,2)}, {v(a+2*k,2)}, {v(a+8+2*k,2)}")
            for k in range(4): A(f"v_cvt_pk_bf16_f32 {v(a+8+k)}, {v(a+2*k)}, {v(a+2*k+1)}")
            A(f"buffer_store_dwordx4 {v(a+8,4)}, {v(T)}, {s(sWS,4)}, s{34+nt} offen offset:{1024*mt} {sc}")
    A.label(end)

G2_P = 16
G2_NA = 27
G2_ACC = 16
G2_PRE = 48
G2_JIT = 176
G2_H = 192; G2_NH = 14
def g2_slot(kq, i):
    j = i if i < G2_NA else i - G2_NA
    return (kq * G2_NA + j) * 2048
L_PART = L_RINGEND; PROW = 272

def wd_addr(A, vA, T):
    A(f"v_lshrrev_b32 {v(T)}, 3, {v(vLANE)}")
    A(f"v_lshlrev_b32 {v(T)}, 10, {v(T)}")
    A(f"v_lshrrev_b32 {v(T+1)}, 2, {v(vLANE)}")
    A(f"v_and_b32 {v(T+1)}, 4, {v(T+1)}")
    A(f"v_and_b32 {v(T+2)}, 7, {v(vLANE)}")
    A(f"v_xor_b32 {v(T+1)}, {v(T+1)}, {v(T+2)}")
    A(f"v_lshl_add_u32 {v(vA)}, {v(T+1)}, 4, {v(T)}")
    A(f"v_add_u32 {v(vA+1)}, 7168, {v(vA)}")

def wd_dma(A, vA, sSoff, ldsexpr):
    A(ldsexpr)
    A("s_nop 0")
    A(f"buffer_load_dwordx4 {v(vA)}, {s(sWD,4)}, {s(sSoff)} offen lds")
    A(f"buffer_load_dwordx4 {v(vA+1)}, {s(sWD,4)}, {s(sSoff)} offen offset:1024 lds")

def g2_setup(A, sKQ, vR=8, T=10):
    A(f"v_bfe_u32 {v(T)}, {v(vLANE)}, 2, 2")
    A(f"v_lshrrev_b32 {v(T+1)}, 5, {v(vLANE)}")
    A(f"v_lshl_add_u32 {v(T+1)}, {v(T+1)}, 2, {v(T)}")
    A(f"v_lshlrev_b32 {v(T+1)}, 7, {v(T+1)}")
    A(f"v_lshrrev_b32 {v(T)}, 1, {v(T)}")
    A(f"v_lshlrev_b32 {v(T)}, 6, {v(T)}")
    A(f"v_bfe_u32 {v(T+2)}, {v(vLANE)}, 4, 1")
    A(f"v_lshlrev_b32 {v(T+2)}, 5, {v(T+2)}")
    A(f"v_and_b32 {v(T+3)}, 3, {v(vLANE)}")
    A(f"v_lshl_add_u32 {v(T+2)}, {v(T+3)}, 3, {v(T+2)}")
    A(f"v_add3_u32 {v(T)}, {v(T)}, {v(T+1)}, {v(T+2)}")
    A(f"s_mul_i32 s32, {s(sKQ)}, {G2_NA*2048}")
    A(f"v_add_u32 {v(vR)}, s32, {v(T)}")
    A(f"v_xor_b32 {v(vR+1)}, 64, {v(vR)}")

def g2_wd_reads(i, F, vR=8):
    o = g2_slot(0, i); L = []
    for dt in range(2):
        for h in range(2): L.append(f"ds_read_b64_tr_b16 {v(F+4*dt+2*h,2)}, {v(vR+dt)} offset:{o + 1024*h}")
    return L

def g2_pull(A, vR=8):
    for i in range(G2_P):
        for l in g2_wd_reads(i, G2_PRE + 8*i, vR): A(l)
    A("s_waitcnt lgkmcnt(0)")

def g2_main(A, sTT, sTB, sKQ, sc, mid=None, vR=8, vH=10, extra_vm=0, mark=None):
    A(f"v_lshlrev_b32 {v(vH)}, 4, {v(vLANE)}")
    A(f"s_lshl_b32 s32, {s(sTT)}, 1")
    A(f"s_add_u32 s32, s32, {s(sTB)}")
    A(f"s_mul_i32 s32, s32, 86")
    A(f"s_mul_i32 s33, {s(sKQ)}, 43")
    A(f"s_add_u32 s32, s32, s33")
    A(f"s_lshl_b32 s32, s32, 10")
    A(f"s_add_u32 s32, s32, {WS_H}")
    def hload(i):
        if i % 4 == 0 and i: A(f"s_add_u32 s32, s32, 4096")
        A(f"buffer_load_dwordx4 {v(G2_H+4*(i%G2_NH),4)}, {v(vH)}, {s(sWS,4)}, s32 offen offset:{1024*(i%4)} {sc}")
    for i in range(G2_NH): hload(i)
    for i in range(43):
        F = G2_PRE + 8*i if i < G2_P else G2_JIT + 8*(i & 1)
        nxt = []
        if G2_P <= i + 1 < 43:
            if i + 1 == G2_NA and mid: mid()
            nxt = g2_wd_reads(i + 1, G2_JIT + 8*((i+1) & 1), vR)
        issued = min(43, i + G2_NH)
        w = f"s_waitcnt vmcnt({issued - i - 1})"
        if i >= G2_P: w += " lgkmcnt(0)"
        A(w)
        for dt in range(2):
            acc = v(G2_ACC + 16*dt, 16)
            A(f"v_mfma_f32_32x32x16_bf16 {acc}, {v(F+4*dt,4)}, {v(G2_H+4*(i%G2_NH),4)}, {'0' if i == 0 else acc}")
            for _ in range(2):
                if nxt: A(nxt.pop(0))
        if i + G2_NH < 43: hload(i + G2_NH)
        if mark: mark(i)

def g2_partials(A, sTB, sKQ, T=10):
    A(f"v_and_b32 {v(T)}, 31, {v(vLANE)}")
    A(f"v_mul_u32_u24 {v(T)}, {PROW}, {v(T)}")
    A(f"v_lshrrev_b32 {v(T+1)}, 5, {v(vLANE)}")
    A(f"v_lshlrev_b32 {v(T+1)}, 4, {v(T+1)}")
    A(f"s_lshl_b32 s32, {s(sKQ)}, 1")
    A(f"s_add_u32 s32, s32, {s(sTB)}")
    A(f"s_mul_i32 s32, s32, {32*PROW}")
    A(f"s_add_u32 s32, s32, {L_PART}")
    A(f"v_add3_u32 {v(T)}, {v(T)}, {v(T+1)}, s32")
    A("s_nop 4")
    for dt in range(2):
        for q in range(4): A(f"ds_write_b128 {v(T)}, {v(G2_ACC+16*dt+4*q,4)} offset:{128*dt+32*q}")

FN = 224
def fin_loads(A, sTT, sDT, sc, X, T):
    A(f"s_lshr_b32 s32, {s(sWAVE)}, 1")
    A(f"s_lshl_b32 s33, {s(sTT)}, 2")
    A(f"s_add_u32 s32, s32, s33")
    A(f"s_and_b32 s33, {s(sWAVE)}, 1")
    A(f"s_lshl_b32 s34, {s(sDT)}, 1")
    A(f"s_add_u32 s33, s33, s34")
    A(f"s_lshl_b32 s33, s33, 6")
    A(f"s_lshl_b32 s34, s32, 14")
    A(f"s_add_u32 s33, s33, s34")
    A(f"v_and_b32 {v(T)}, 15, {v(vLANE)}")
    A(f"v_lshlrev_b32 {v(T)}, 10, {v(T)}")
    A(f"v_and_b32 {v(T+1)}, 48, {v(vLANE)}")
    A(f"v_add3_u32 {v(X+5)}, {v(T)}, {v(T+1)}, s33")
    A(f"buffer_load_dwordx4 {v(X,4)}, {v(X+5)}, {s(sX,4)}, 0 offen")
    A(f"v_bfe_u32 {v(T)}, {v(vLANE)}, 3, 1")
    A(f"v_mul_u32_u24 {v(T)}, {UBLK}, {v(T)}")
    A(f"v_and_b32 {v(T+1)}, 7, {v(vLANE)}")
    A(f"v_lshl_add_u32 {v(T)}, {v(T+1)}, 3, {v(T)}")
    A(f"s_mul_i32 s32, s32, {2*UBLK}")
    A(f"s_add_u32 s32, s32, {WS_U + 8192 + 4}")
    A(f"buffer_load_dword {v(X+4)}, {v(T)}, {s(sWS,4)}, s32 offen {sc}")

def s_tile_dma(A, sTT, sDT, sc, part, nparts, T, chan_soff):
    A(f"v_lshrrev_b32 {v(T)}, 3, {v(vLANE)}")
    A(f"v_lshlrev_b32 {v(T)}, 12, {v(T)}")
    A(f"v_and_b32 {v(T+1)}, 7, {v(vLANE)}")
    A(f"v_lshl_add_u32 {v(T)}, {v(T+1)}, 4, {v(T)}")
    A(f"s_lshl_b32 s32, {s(sDT)}, 18")
    A(f"s_lshl_b32 s33, {s(sTT)}, 7")
    A(f"s_add_u32 s32, s32, s33")
    A(f"s_add_u32 s32, s32, {WS_S}")
    per = 8 // nparts
    A(f"s_mul_i32 s33, {s(part)}, {per*32768}")
    A(f"s_add_u32 s32, s32, s33")
    A(f"s_mul_i32 s33, {s(part)}, {per*1024}")
    for i in range(per):
        A(f"s_add_u32 m0, s33, {L_ST + 1024*i}")
        if i: A(f"s_add_u32 s32, s32, 32768")
        else: A("s_nop 0")
        A(f"buffer_load_dwordx4 {v(T)}, {s(sWS,4)}, s32 offen {sc} lds")

def final(A, X, sc_out, T=16):
    P0 = T + 8; P1 = T + 16; SS = T + 24; E = T + 32
    A(f"s_lshr_b32 s32, {s(sWAVE)}, 1")
    A(f"s_and_b32 s33, {s(sWAVE)}, 1")
    A(f"v_and_b32 {v(T)}, 15, {v(vLANE)}")
    A(f"v_mul_u32_u24 {v(T)}, {PROW}, {v(T)}")
    A(f"v_and_b32 {v(T+1)}, 48, {v(vLANE)}")
    A(f"v_lshlrev_b32 {v(T+1)}, 1, {v(T+1)}")
    A(f"s_mul_i32 s34, s32, {16*PROW}")
    A(f"s_lshl_b32 s35, s33, 7")
    A(f"s_add_u32 s34, s34, s35")
    A(f"s_add_u32 s34, s34, {L_PART}")
    A(f"v_add3_u32 {v(T)}, {v(T)}, {v(T+1)}, s34")
    A(f"v_lshlrev_b32 {v(T+1)}, 5, {v(T+1)}")
    A(f"v_bfe_u32 {v(T+2)}, {v(vLANE)}, 2, 2")
    A(f"v_lshl_add_u32 {v(T+1)}, {v(T+2)}, 7, {v(T+1)}")
    A(f"v_and_b32 {v(T+2)}, 3, {v(vLANE)}")
    A(f"v_lshl_add_u32 {v(T+1)}, {v(T+2)}, 3, {v(T+1)}")
    A(f"s_lshl_b32 s34, s33, 12")
    A(f"s_lshl_b32 s35, s32, 5")
    A(f"s_add_u32 s34, s34, s35")
    A(f"s_add_u32 s34, s34, {L_ST}")
    A(f"v_add_u32 {v(T+1)}, s34, {v(T+1)}")
    return_point = len(A.lines)
    def body():
        for k in range(2): A(f"ds_read_b128 {v(P0+4*k,4)}, {v(T)} offset:{16*k}")
        for k in range(2): A(f"ds_read_b128 {v(P1+4*k,4)}, {v(T)} offset:{64*PROW+16*k}")
        for k in range(2): A(f"ds_read_b64_tr_b16 {v(SS+2*k,2)}, {v(T+1)} offset:{512*k}")
        A(f"v_mul_f32 {v(T+2)}, {fl(-LOG2E)}, {v(X+4)}")
        A(f"v_mov_b32 {v(T+4)}, 1.0")
        A("s_waitcnt lgkmcnt(2)")
        for k in range(4): A(f"v_pk_add_f32 {v(P0+2*k,2)}, {v(P0+2*k,2)}, {v(P1+2*k,2)}")
        for k in range(4): A(f"v_pk_mul_f32 {v(E+2*k,2)}, {v(P0+2*k,2)}, {v(T+2,2)} op_sel_hi:[1,0]")
        for k in range(8): A(f"v_exp_f32 {v(E+k)}, {v(E+k)}")
        for k in range(4): A(f"v_pk_mul_f32 {v(P0+2*k,2)}, {v(P0+2*k,2)}, {v(X+4,2)} op_sel_hi:[1,0]")
        for k in range(4): A(f"v_pk_add_f32 {v(E+2*k,2)}, {v(E+2*k,2)}, {v(T+4,2)} op_sel_hi:[1,0]")
        for k in range(8): A(f"v_rcp_f32 {v(E+k)}, {v(E+k)}")
        A("s_waitcnt lgkmcnt(0)")
        for k in range(4):
            A(f"v_lshlrev_b32 {v(P1+2*k)}, 16, {v(SS+k)}")
            A(f"v_and_b32 {v(P1+2*k+1)}, 0xffff0000, {v(SS+k)}")
        for k in range(4): A(f"v_pk_mul_f32 {v(P0+2*k,2)}, {v(P0+2*k,2)}, {v(E+2*k,2)}")
        for k in range(4):
            A(f"v_lshlrev_b32 {v(E+2*k)}, 16, {v(X+k)}")
            A(f"v_and_b32 {v(E+2*k+1)}, 0xffff0000, {v(X+k)}")
        for k in range(4): A(f"v_pk_fma_f32 {v(P0+2*k,2)}, {v(P0+2*k,2)}, {v(P1+2*k,2)}, {v(E+2*k,2)}")
        for k in range(4): A(f"v_cvt_pk_bf16_f32 {v(SS+k)}, {v(P0+2*k)}, {v(P0+2*k+1)}")
        A(f"buffer_store_dwordx4 {v(SS,4)}, {v(X+5)}, {s(sOUT,4)}, 0 offen {sc_out}")
    return body

WS_STAMP = 0x1000000
class Stamp:
    on = False
def stamp(A, k):
    if not Stamp.on: return
    A("s_memtime s[96:97]"); A("s_memrealtime s[98:99]"); A("s_waitcnt lgkmcnt(0)")
    A(f"v_writelane_b32 v255, s96, {k}"); A(f"v_writelane_b32 v255, s98, {32+k}")
def stamp_flush(A, kidx):
    if not Stamp.on: return
    A(f"s_lshl_b32 s96, s2, 3"); A(f"s_add_u32 s96, s96, {s(sWAVE)}"); A(f"s_lshl_b32 s96, s96, 8")
    A(f"s_add_u32 s96, s96, {WS_STAMP + kidx*0x80000}")
    A(f"v_lshlrev_b32 v254, 2, {v(vLANE)}")
    A(f"buffer_store_dword v255, v254, {s(sWS,4)}, s96 offen")
    A("s_waitcnt vmcnt(0)")
```

```python
from roles import *
from kgen2 import *
import roles, sys
KNAME = "recurrent_scan__ssm_conv_s4__glu_gated_glu__prompt_kernel"
HDR = open("recurrent_scan__ssm_conv_s4__glu_gated_glu__prompt.s.ref").read().split("; Override launch")[0]
OPT = dict(D=14, NPF=7, PWAIT=9, PST=3, ROT=1, STAG=1, SCOUT="", ALIGN=1, WTH=10, LATE=26, XT=1, PFD=2, WT=0,
           YPRIO=1, LNPRIO=1, HPRIO=0, ARR2=0, FD=8, PP=22, PF1=1, NOCV=0, NOST=0, NOMF=0, NH=13)
for a in sys.argv[2:]:
    if "=" in a:
        k, x = a.split("="); assert k in OPT, k; OPT[k] = x if k == "SCOUT" else int(x)
Stamp.on = "--stamp" in sys.argv
SC = "sc1"
roles.PLAIN[0] = False
sV = 4
sXCD, sIDX, sRT, sFC, sROT, sB, sD, sTT, sDT, sA, sB2, sKB, sUB, sRG = range(48, 62)
FL_H = 0x4000; FL_S = 0x14000
FL_LN = 0x1000
L_STAT = L_ST + 4096
L_XS = [L_U[0], L_X + 2 * XSLOT]
SPIN_MAX = 30000
def EV(row, col=0): return L_CTL + 32 * row + 4 * col
R_EPI, R_PULL, R_BL, R_LATE = 16, 17, 18, 19
R_WD, R_CV, R_XW, R_XR = 20, 21, 22, 23
R_CS, R_WD2 = 26, 27
E_KRDY, E_URDY, E_XRDY, E_XDONE = EV(24, 0), EV(24, 2), EV(24, 4), EV(24, 6)
E_SRDY, E_LNOK, E_LND = EV(25, 1), EV(25, 2), EV(25, 3)
L_V = EV(28, 0)
LNW, TW = 2, 3
vOOB, vZERO, vEV, vET = 252, 253, 250, 251
PRM = 236
FX = 244
A = Asm(); SLOW = Asm(); SLOW.uid = 100000

def mapping2():
    A(f"s_lshr_b32 s32, {s(sXCD)}, 1")
    A(f"s_mul_i32 {s(sRG)}, s32, {OPT['STAG']}")
    A(f"s_and_b32 s33, {s(sXCD)}, 1")
    A(f"s_and_b32 s34, {s(sIDX)}, 3")
    A(f"s_lshr_b32 s35, {s(sIDX)}, 2")
    if OPT["ARR2"] == 0:
        A(f"s_lshl_b32 {s(sDT)}, s33, 2"); A(f"s_add_u32 {s(sDT)}, {s(sDT)}, s34")
        A(f"s_lshl_b32 {s(sTT)}, s32, 3"); A(f"s_add_u32 {s(sTT)}, {s(sTT)}, s35")
    else:
        A(f"s_and_b32 {s(sDT)}, {s(sIDX)}, 7"); A(f"s_lshr_b32 {s(sTT)}, {s(sB)}, 3")
    A(f"s_mul_i32 {s(sROT)}, s34, {2*OPT['ROT']}")
    A(f"s_mul_i32 {s(sFC)}, s33, 7")
    A(f"s_add_u32 {s(sFC)}, {s(sFC)}, s35")
    A(f"s_lshl_b32 s36, s33, 1")
    A(f"s_add_u32 s36, s36, s34")
    A(f"s_cmp_ge_u32 {s(sIDX)}, 28")
    A(f"s_cselect_b32 {s(sFC)}, 14, {s(sFC)}")
    A(f"s_cselect_b32 s34, s36, s34")
    A(f"s_and_b32 s34, s34, 3")
    A(f"s_lshl_b32 {s(sRT)}, s32, 2")
    A(f"s_add_u32 {s(sRT)}, {s(sRT)}, s34")
    A(f"s_bfe_u32 {s(sB2)}, {s(sWAVE)}, 0x10001")
    A(f"s_cmp_eq_u32 {s(sA)}, 0")
    A(f"s_cselect_b64 {s(sWG,2)}, {s(P_WG,2)}, {s(P_WU,2)}")
    A(f"s_mov_b32 {s(sWG+2)}, 1409024"); A(f"s_mov_b32 {s(sWG+3)}, 0x20000")
    A(f"s_mov_b64 {s(sX,2)}, {s(P_X,2)}"); A(f"s_mov_b32 {s(sX+2)}, 0x200000"); A(f"s_mov_b32 {s(sX+3)}, 0x20000")
def mapping3(X=None):
    X = X or A
    X(f"s_mul_i32 {s(sKB)}, {s(sA)}, {L_K[1]-L_K[0]}")
    X(f"s_add_u32 {s(sKB)}, {s(sKB)}, {L_K[0]}")
    X(f"s_lshl_b32 {s(sUB)}, {s(sA)}, 4")
    X(f"s_add_u32 {s(sUB)}, {s(sUB)}, {L_U[0]}")
    for srd, p, sz in ((sWD, P_WD, 1409024), (sWS, P_WS, WS_SIZE), (sOUT, P_OUT, 0x200000)):
        X(f"s_mov_b64 {s(srd,2)}, {s(p,2)}"); X(f"s_mov_b32 {s(srd+2)}, {sz}"); X(f"s_mov_b32 {s(srd+3)}, 0x20000")
    X(f"v_mov_b32 {v(vOOB)}, 0x7ff00000")
    X(f"v_mov_b32 {v(vZERO)}, 0")

def ev_addr(base, n, X=None):
    X = X or A
    if n == 1: X(f"v_mov_b32 {v(vEV)}, {base}")
    else:
        X(f"v_and_b32 {v(vEV)}, {n-1}, {v(vLANE)}")
        if isinstance(base, int):
            X(f"v_lshlrev_b32 {v(vEV)}, 2, {v(vEV)}"); X(f"v_add_u32 {v(vEV)}, {base}, {v(vEV)}")
        else: X(f"v_lshl_add_u32 {v(vEV)}, {v(vEV)}, 2, {base}")
def ev_check(X=None):
    X = X or A
    X("s_getpc_b64 s[62:63]"); X("s_cbranch_vccnz L_stub")
def ev_wait(base=None, n=1, X=None):
    X = X or A
    if base is not None: ev_addr(base, n, X)
    X(f"ds_read_b32 {v(vET)}, {v(vEV)}")
    X("s_waitcnt lgkmcnt(0)")
    X(f"v_cmp_ne_u32 vcc, 0, {v(vET)}")
    ev_check(X)
def ev_set(addr, X=None):
    X = X or A
    X(f"v_mov_b32 {v(vET)}, {addr}")
    X("s_mov_b64 exec, 1")
    X(f"ds_write_b32 {v(vET)}, {v(vZERO)}")
    X("s_mov_b64 exec, -1")
def ev_dma(off, X=None):
    X = X or A
    X("s_mov_b64 exec, 1")
    X(f"buffer_load_dword {v(vOOB)}, {s(sX,4)}, 0 offen offset:{off} lds")
    X("s_mov_b64 exec, -1")
def wcol(row, sOut):
    A(f"s_and_b32 {sOut}, {s(sWAVE)}, 3")
    A(f"s_lshl_b32 {sOut}, {sOut}, 2"); A(f"s_add_u32 {sOut}, {sOut}, {EV(row, 4)}")
def gflag_store(sOff, T=None):
    A(f"s_mov_b64 s[6:7], {s(sV,2)}")
    A(f"s_atomic_swap_x2 s[6:7], {s(P_WS,2)}, {s(sOff)}")
def get_v(X=None):
    X = X or A
    X(f"v_mov_b32 {v(vEV)}, {L_V}")
    X(f"ds_read_b64 {v(vEV,2)}, {v(vEV)}")
    X("s_waitcnt lgkmcnt(0)")
    X(f"v_readfirstlane_b32 {s(sV)}, {v(vEV)}")
    X(f"v_readfirstlane_b32 {s(sV+1)}, {v(vET)}")
    X("s_nop 1")
def retry_loop(loads, test):
    lp = A.new("L_gp")
    A("s_mov_b32 s46, 0")
    A.label(lp)
    loads()
    A("s_add_u32 s46, s46, 1")
    A(f"s_cmp_lt_u32 s46, {SPIN_MAX}")
    A("s_cselect_b64 s[42:43], -1, 0")
    A("s_waitcnt vmcnt(0)")
    test()
    A("s_nop 0")
    A("s_and_b64 vcc, vcc, s[42:43]")
    A(f"s_cbranch_scc1 {lp}")

def _need(m):
    lo, hi = 4096 * m, 4096 * m + 4096; n = 0
    for w in range(NWS):
        a = L_W + w * WSLOT
        if a < hi and a + WSLOT > lo: n = max(n, max(st for st in range(NSTAGE) if st % NWS == w))
    for x in range(NXS):
        a = L_X + x * XSLOT
        if a < hi and a + XSLOT > lo: n = max(n, max(st for st in range(NSTAGE) if (st // 2) % NXS == x))
    return n
PSLOT = sorted(range(G2_NA), key=lambda m_: (_need(m_), m_))
def pslot(i): return PSLOT[i if i < G2_NA else i - G2_NA]
PRE = [48 + 8*i for i in range(6)] + [176 + 8*i for i in range(5)] + [160] + [96 + 8*i for i in range(4)]
JIT = [128, 136]
HW = [168, 172, 216, 220, 224, 228, 232, 236, 240, 144, 148, 152, 156, 128, 132, 136, 140][:OPT['NH']]
vR = 38
def wd_reads(i, F):
    o = 4096 * pslot(i); b = vR + 2 * (o >> 16); o &= 0xffff
    return [f"ds_read_b64_tr_b16 {v(F+4*dt+2*h,2)}, {v(b+dt)} offset:{o + 1024*h}" for dt in range(2) for h in range(2)]
def wd_piece_addr(X, vD, vT):
    if OPT["ARR2"] == 0:
        X(f"v_lshrrev_b32 {v(vD)}, 2, {v(vLANE)}"); X(f"v_lshlrev_b32 {v(vD)}, 10, {v(vD)}")
        X(f"v_and_b32 {v(vT)}, 3, {v(vLANE)}"); X(f"v_lshl_add_u32 {v(vD)}, {v(vT)}, 7, {v(vD)}")
        X(f"s_and_b32 s41, {s(sXCD)}, 1"); X("s_lshl_b32 s41, s41, 9"); X(f"v_add_u32 {v(vD)}, s41, {v(vD)}")
        return 16384
    X(f"v_lshlrev_b32 {v(vD)}, 7, {v(vLANE)}")
    return 8192

def loader():
    D = OPT["D"]; Vw = 8; Vx = 12; T = 18; sT = 36
    sXB, sWB, sC, sXo, sWo, sLW, sLX, sCX, sWS2, sEF = range(sT+2, sT+12)
    mapping2()
    A(f"s_cmp_ge_u32 {s(sIDX)}, 30")
    A("s_cbranch_scc1 L_spare_ld")
    A(f"s_mul_i32 {s(sWB)}, {s(sFC)}, 192")
    A(f"s_lshr_b32 {s(sCX)}, {s(sRG)}, 1")
    A(f"s_bitcmp1_b32 {s(sRG)}, 0")
    A(f"s_cselect_b32 {s(sT)}, {32*2752}, 0")
    A(f"s_add_u32 {s(sWB)}, {s(sWB)}, {s(sT)}")
    A(f"s_mul_i32 {s(sLW)}, {s(sA)}, {UPOFF}")
    def late_setup():
        A(f"v_lshrrev_b32 {v(T)}, 3, {v(vLANE)}")
        A(f"v_lshlrev_b32 {v(T)}, 10, {v(T)}")
        A(f"v_lshrrev_b32 {v(T+1)}, 4, {v(vLANE)}")
        A(f"v_and_b32 {v(T+2)}, 7, {v(vLANE)}")
        A(f"v_xor_b32 {v(T+1)}, {v(T+1)}, {v(T+2)}")
        A(f"v_lshl_add_u32 {v(Vx)}, {v(T+1)}, 4, {v(T)}")
        A(f"v_xor_b32 {v(Vx+1)}, 64, {v(Vx)}")
        A(f"v_add_u32 {v(Vx+2)}, {2*7168}, {v(Vx)}")
        A(f"v_add_u32 {v(Vx+3)}, {3*7168}, {v(Vx+1)}")
        A(f"v_add_u32 {v(Vx+1)}, {7168}, {v(Vx+1)}")
        A(f"s_lshl_b32 {s(sEF)}, {s(sA)}, 2")
        A(f"s_add_u32 {s(sEF)}, {s(sEF)}, {EV(0)}")
        A(f"s_lshl_b32 {s(sXB)}, {s(sRT)}, 17")
        A(f"s_lshl_b32 {s(sT)}, {s(sA)}, 16")
        A(f"s_add_u32 {s(sXB)}, {s(sXB)}, {s(sT)}")
        A(f"s_mov_b32 {s(sWS2)}, {16*2752}")
        A(f"s_bitcmp1_b32 {s(sRG)}, 0")
        A(f"s_cselect_b32 {s(sWS2)}, {(-48*2752) & 0xffffffff}, {s(sWS2)}")
        A(f"s_lshl_b32 {s(sLX)}, {s(sA)}, 13")
    n = 0
    for st in range(NSTAGE):
        if st % 2 == 0:
            A(f"s_xor_b32 {s(sC)}, {s(sCX)}, {st//2}")
            A(f"s_add_u32 {s(sC)}, {s(sC)}, {s(sROT)}")
            A(f"s_and_b32 {s(sC)}, {s(sC)}, 7")
            A(f"s_mul_i32 {s(sWo)}, {s(sC)}, {64*2752}")
            A(f"s_add_u32 {s(sWo)}, {s(sWo)}, {s(sWB)}")
        if st == NWS: ev_addr(EV(0, 4), 4)
        if st > NWS: A(f"v_add_u32 {v(vEV)}, 32, {v(vEV)}")
        if st >= NWS: ev_wait()
        for k, i in [("w", i) for i in range(6)] + ([("x", i) for i in range(8)] if st % 2 == 0 else []):
            if k == "x" and i == 0:
                if st == 0: stamp(A, 2); late_setup()
                if st == 4: ev_wait(E_XDONE, 2)
                A(f"s_lshl_b32 {s(sXo)}, {s(sC)}, 7")
                A(f"s_add_u32 {s(sXo)}, {s(sXo)}, {s(sXB)}")
            if n >= D: A(f"s_waitcnt vmcnt({D-1})")
            n += 1
            if k == "x":
                if i % 4 == 0:
                    A(f"s_add_u32 m0, {s(sLX)}, {L_X + ((st//2) % NXS) * XSLOT + i * 1024}")
                    if i: A(f"s_add_u32 {s(sXo)}, {s(sXo)}, 32768")
                    else: A("s_nop 0")
                A(f"buffer_load_dwordx4 {v(Vx + i%4)}, {s(sX,4)}, {s(sXo)} offen offset:{1024*(i%4)} lds")
            else:
                if i % 3 == 0:
                    A(f"s_add_u32 m0, {s(sLW)}, {L_W + (st % NWS) * WSLOT + (i//3) * 3072}")
                    if i: A(f"s_add_u32 {s(sWo)}, {s(sWo)}, {16*2752}")
                    elif st % 2: A(f"s_add_u32 {s(sWo)}, {s(sWo)}, {s(sWS2)}")
                    else: A("s_nop 0")
                A(f"buffer_load_dwordx4 {v(Vw + i%3)}, {s(sWG,4)}, {s(sWo)} offen offset:{1024*(i%3)} lds")
        if st == 0: mapping3()
        A(f"s_mov_b32 m0, {s(sEF)}")
        ev_dma(32 * st); n += 1
        if st in (3, 7, 11): stamp(A, 3 + st // 4)
    stamp(A, 6)
    A.label("L_fetch")
    A(f"v_lshrrev_b32 v8, 2, {v(vLANE)}"); A(f"v_mul_u32_u24 v8, {UBLK}, v8")
    A(f"v_and_b32 v9, 3, {v(vLANE)}"); A("v_lshl_add_u32 v8, v9, 4, v8")
    A(f"v_lshrrev_b32 v10, 1, {v(vLANE)}"); A(f"v_mul_u32_u24 v10, {UBLK}, v10")
    A(f"v_and_b32 v9, 1, {v(vLANE)}"); A("v_lshl_add_u32 v10, v9, 4, v10")
    A(f"s_mul_i32 s34, {s(sRT)}, {16*UBLK}"); A(f"s_add_u32 s34, s34, {WS_U+8192}")
    A(f"s_and_b32 s32, {s(sD)}, 7"); A("s_lshl_b32 s32, s32, 10"); A(f"s_lshr_b32 s33, {s(sD)}, 4"); A("s_lshl_b32 s33, s33, 5")
    A("s_add_u32 s32, s32, s33"); A(f"s_mul_i32 s33, {s(sA)}, {128*UBLK}"); A("s_add_u32 s32, s32, s33"); A(f"s_add_u32 s32, s32, {WS_U}")
    A(f"s_lshl_b32 s33, {s(sA)}, 12"); A(f"s_add_u32 s33, s33, {L_U[0] + 1024}")
    ev_wait(E_LNOK)
    A(f"s_cmp_eq_u32 {s(sA)}, 1"); A("s_cbranch_scc1 L_nost")
    A(f"s_mov_b32 m0, {L_STAT}"); A("s_nop 0")
    A(f"buffer_load_dwordx4 v8, {s(sWS,4)}, s34 offen {SC} lds")
    A(f"s_mov_b32 m0, {E_SRDY}"); ev_dma(0)
    A.label("L_nost")
    for i in range(4):
        A(f"s_add_u32 m0, s33, {1024*i}")
        if i: A(f"s_add_u32 s32, s32, {32*UBLK}")
        else: A("s_nop 0")
        A(f"buffer_load_dwordx4 v10, {s(sWS,4)}, s32 offen {SC} lds")
    A(f"s_lshl_b32 s33, {s(sA)}, 2"); A(f"s_add_u32 m0, s33, {E_URDY}"); ev_dma(0)
    stamp(A, 7)
    S = SLOW
    S.label("L_spare_ld")
    mapping3(S)
    PB = wd_piece_addr(S, T, T+2)
    S(f"s_and_b32 s40, {s(sIDX)}, 1"); S("s_lshl_b32 s40, s40, 1"); S(f"s_add_u32 s40, s40, {s(sA)}")
    if OPT["ARR2"] == 0: S(f"s_lshr_b32 s42, {s(sXCD)}, 1"); nsh = 16
    else: S(f"s_mov_b32 s42, {s(sXCD)}"); nsh = 32
    S("s_lshl_b32 s42, s42, 2"); S("s_add_u32 s42, s42, s40"); S(f"s_mul_i32 s42, s42, {PB}")
    for i in range(6):
        S(f"buffer_load_dword {v(T+2)}, {v(T)}, {s(sWD,4)}, s42 offen")
        S(f"s_add_u32 s42, s42, {nsh*PB}"); S(f"s_waitcnt vmcnt({OPT['PFD']-1})")
    PPS = 16384 // PB
    if OPT["PF1"]:
        S("s_lshr_b32 s42, s40, 1"); S(f"s_mul_i32 s42, s42, 43"); S("s_and_b32 s43, s40, 1"); S("s_lshl_b32 s43, s43, 3"); S("s_add_u32 s42, s42, s43"); S("s_lshl_b32 s42, s42, 14")
        for i in range(8 * PPS):
            S(f"buffer_load_dword {v(T+2)}, {v(T)}, {s(sWD,4)}, s42 offen")
            S(f"s_add_u32 s42, s42, {PB}"); S(f"s_waitcnt vmcnt({OPT['PFD']-1})")
    S("s_waitcnt vmcnt(0)")
    stamp(S, 19)
    S(f"s_lshl_b32 s40, {s(sA)}, 2"); S(f"s_add_u32 s40, s40, {EV(0)}")
    S(f"v_lshl_add_u32 {v(T)}, {v(vLANE)}, 5, s40"); S("s_mov_b64 exec, 0xffff"); S(f"ds_write_b32 {v(T)}, {v(vZERO)}"); S("s_mov_b64 exec, -1")
    S("s_branch L_fetch")

def h_common():
    A.label("L_conv")
    T = 12; vWD = 6
    if OPT["HPRIO"]: A("s_setprio 1")
    wd_addr(A, vWD, T)
    A(f"s_mul_i32 s40, {s(sB2)}, {43*16384}"); A(f"s_lshl_b32 s41, {s(sDT)}, 7"); A("s_add_u32 s40, s40, s41")
    A(f"s_lshl_b32 s41, {s(sA)}, 13"); A("s_add_u32 s40, s40, s41")
    A(f"s_lshl_b32 s41, {s(sB2)}, 11"); A(f"s_lshl_b32 s42, {s(sA)}, 10"); A("s_add_u32 s41, s41, s42")
    wcol(R_WD, "s38")
    def wdma(i):
        if i >= OPT["WTH"]: A(f"s_waitcnt vmcnt({OPT['WTH']-1})")
        A(f"s_add_u32 m0, s41, {4096*pslot(i)}")
        if i: A("s_add_u32 s40, s40, 16384")
        else: A("s_nop 0")
        A(f"buffer_load_dwordx4 {v(vWD)}, {s(sWD,4)}, s40 offen lds")
    ev_wait(EV(15), 2)
    have = -1
    for i in range(G2_P):
        if _need(pslot(i)) > have:
            have = _need(pslot(i)); ev_wait(EV(have, 4), 4)
            if i == 0: stamp(A, 8)
        wdma(i)
    A("s_mov_b32 m0, s38"); ev_dma(0)
    stamp(A, 9)
    ev_wait(E_KRDY, 4)
    get_v()
    fin_loads(A, sTT, sDT, SC, FX, 20)
    ev_wait(EV(R_EPI, 4), 4)
    stamp(A, 10)
    if not OPT['NOCV']: conv_main(A, sKB, sUB, sB2, il=True)
    stamp(A, 13)
    def sync():
        A("s_add_u32 s38, s38, 32"); ev_set("s38")
        A("s_xor_b32 s39, s38, 8"); ev_wait("s39")
    A(f"v_and_b32 v10, 15, {v(vLANE)}"); A(f"v_lshrrev_b32 v11, 4, {v(vLANE)}"); A("v_lshl_add_u32 v11, v10, 2, v11")
    A("v_bfe_u32 v10, v10, 1, 2"); A("v_xor_b32 v11, v11, v10")
    A(f"s_lshl_b32 s32, {s(sB2)}, 13"); A(f"s_add_u32 s32, s32, {s(sKB)}"); A("v_lshl_add_u32 v11, v11, 4, s32")
    A(f"v_lshlrev_b32 v12, 1, {v(vLANE)}"); A(f"v_bfe_u32 v13, {v(vLANE)}, 2, 2"); A("v_xor_b32 v12, v12, v13")
    A(f"s_lshl_b32 s32, {s(sB2)}, 12"); A(f"s_add_u32 s32, s32, {s(sKB)}")
    A("v_xor_b32 v13, 1, v12"); A("v_lshl_add_u32 v12, v12, 4, s32"); A("v_lshl_add_u32 v13, v13, 4, s32")
    A(f"v_lshlrev_b32 v14, 4, {v(vLANE)}")
    A(f"s_lshl_b32 s32, {s(sD)}, 12"); A(f"s_lshl_b32 s33, {s(sB2)}, 11"); A("s_add_u32 s32, s32, s33"); A(f"s_add_u32 s34, s32, {WS_S}")
    sync()
    for c in range(8): A(f"ds_write_b128 v11, {v(CV_ACC+4*c,4)} offset:{1024*c}")
    sync()
    for i in range(2):
        for ar in range(2):
            for e in range(2): A(f"ds_read_b128 {v(CV_F+16*i+8*ar+4*e,4)}, v{12+e} offset:{8192*ar+2048*i}")
    for i in range(2):
        A(f"s_waitcnt lgkmcnt({4-4*i})")
        for k in range(8): A(f"v_add_f32 {v(CV_F+16*i+k)}, {v(CV_F+16*i+k)}, {v(CV_F+16*i+8+k)}")
        for k in range(4): A(f"v_cvt_pk_bf16_f32 {v(CV_F+32+4*i+k)}, {v(CV_F+16*i+2*k)}, {v(CV_F+16*i+2*k+1)}")
        A(f"buffer_store_dwordx4 {v(CV_F+32+4*i,4)}, v14, {s(sWS,4)}, s34 offen offset:{1024*i} {SC}")
    A("s_add_u32 s38, s38, 32"); ev_set("s38")
    stamp(A, 14)
    A(f"s_lshr_b32 s32, {s(sD)}, 6"); A("s_lshl_b32 s32, s32, 1"); A(f"s_add_u32 s32, s32, {s(sB2)}"); A("s_lshl_b32 s32, s32, 6")
    A(f"s_and_b32 s33, {s(sD)}, 63"); A("s_add_u32 s32, s32, s33"); A("s_lshl_b32 s32, s32, 5"); A(f"s_add_u32 s36, s32, {FL_S}")
    A("s_waitcnt vmcnt(0)")
    stamp(A, 11)
    gflag_store(36, 20)
    A(f"s_lshr_b32 s32, {s(sTT)}, 4"); A(f"s_lshl_b32 s33, {s(sDT)}, 1"); A("s_add_u32 s32, s32, s33"); A("s_lshl_b32 s32, s32, 2")
    A(f"s_and_b32 s40, {s(sWAVE)}, 3"); A("s_add_u32 s32, s32, s40"); A("s_lshl_b32 s32, s32, 9"); A(f"s_add_u32 s36, s32, {FL_S}")
    A(f"v_and_b32 v24, 15, {v(vLANE)}"); A("v_lshlrev_b32 v24, 5, v24")
    ev_wait(EV(R_LATE, 4), 4)
    stamp(A, 15)
    retry_loop(lambda: A(f"buffer_load_dwordx2 v[26:27], v24, {s(sWS,4)}, s36 offen {SC}"), lambda: A(f"v_cmp_ne_u64 vcc, {s(sV,2)}, v[26:27]"))
    stamp(A, 12)
    s_tile_dma(A, sTT, sDT, SC, 40, 4, 12, None)
    A.label("L_final")
    body = final(A, FX, OPT["SCOUT"], T=48)
    A("s_waitcnt vmcnt(0) lgkmcnt(0)"); stamp(A, 20); A("s_barrier"); stamp(A, 21)
    body()
    stamp(A, 22)
    if Stamp.on: A("s_waitcnt vmcnt(0)"); stamp(A, 23); stamp_flush(A, 0)
    A.label("L_done")
    A("s_endpgm")

def xs_base(sOut):
    A(f"s_mov_b32 {sOut}, {L_XS[0]}"); A(f"s_cmp_eq_u32 {s(sA)}, 1"); A(f"s_cselect_b32 {sOut}, {L_XS[1]}, {sOut}")

def kg():
    A(f"s_load_dwordx2 s[6:7], {s(P_WS,2)}, 0")
    if OPT["YPRIO"]: A("s_setprio 1")
    mapping2(); mapping3()
    xs_base("s40")
    A(f"s_lshl_b32 s41, {s(sA)}, 2")
    A("s_waitcnt vmcnt(0) lgkmcnt(0)")
    A("s_mov_b64 s[44:45], s[100:101]")
    A(f"s_add_u32 {s(sV)}, s6, 0x7f4a7c15"); A(f"s_addc_u32 {s(sV+1)}, s7, 0x9e3779b9")
    stamp(A, 2)
    def wait_x():
        stamp(A, 3)
        A(f"s_add_u32 s32, s41, {E_XRDY}"); ev_wait("s32")
    def x_done():
        A(f"s_add_u32 s32, s41, {E_XDONE}"); ev_set("s32")
    kg_y(A, sD, sKB, 40, wait_x, x_done, P=PRM)
    if OPT["YPRIO"]: A("s_setprio 0")
    A(f"s_cmp_eq_u32 {s(sA)}, 1"); A("s_cbranch_scc1 L_w7")
    for i in range(4): A(f"v_mov_b32 v{8+i}, 0")
    A(f"v_lshlrev_b32 v12, 4, {v(vLANE)}"); A(f"v_add_u32 v12, {L_U[0]}, v12"); A("ds_write_b128 v12, v[8:11]")
    A(f"v_mov_b32 v8, {s(sV)}"); A(f"v_mov_b32 v9, {s(sV+1)}"); A(f"v_mov_b32 v12, {L_V}")
    A("s_mov_b64 exec, 1"); A("ds_write_b64 v12, v[8:9]"); A("s_mov_b64 exec, -1")
    ev_set(E_KRDY)
    stamp(A, 4)
    A(f"s_mov_b32 s35, {E_KRDY+4}"); A(f"v_mov_b32 {v(vEV)}, {E_LND}"); A(f"v_writelane_b32 {v(vEV)}, s35, 0")
    ev_wait()
    A(f"s_lshl_b32 s32, {s(sB)}, 5"); A(f"s_add_u32 s32, s32, {FL_LN}")
    gflag_store(32, 8)
    stamp(A, 5)
    A("s_branch L_conv")
    A.label("L_w7")
    ev_set(E_KRDY + 4)
    stamp(A, 4)
    WT = OPT["WT"]
    A(f"s_and_b32 s32, {s(sIDX)}, {OPT['PST']}"); A("s_lshl_b32 s32, s32, 5"); A(f"s_add_u32 s32, s32, {EV(OPT['PWAIT']-1)}")
    PB = wd_piece_addr(A, 8, 9)
    A(f"s_and_b32 s34, {s(sIDX)}, 1"); A(f"s_mul_i32 s34, s34, {43*16384}"); A(f"s_lshr_b32 s35, {s(sIDX)}, 1"); A(f"s_mul_i32 s35, s35, {WT*PB}")
    A("s_add_u32 s34, s34, s35"); A(f"s_add_u32 s34, s34, {16*16384}")
    A(f"v_lshlrev_b32 v9, 5, {v(vLANE)}")
    A(f"s_mov_b32 s36, {FL_LN}"); A(f"s_mov_b32 s37, {FL_LN+4096}")
    ev_wait("s32", 2)
    stamp(A, 5)
    for i in range(WT):
        A(f"buffer_load_dword v{20+i}, v8, {s(sWD,4)}, s34 offen")
        if i + 1 < WT: A(f"s_add_u32 s34, s34, {PB}")
    def loads():
        for i in range(4): A(f"buffer_load_dwordx2 {v(10+2*i,2)}, v9, {s(sWS,4)}, s{36+i//2} offen offset:{2048*(i%2)} {SC}")
    def test():
        for i in range(4):
            A(f"v_cmp_ne_u64 {'vcc' if i == 0 else 's[44:45]'}, {s(sV,2)}, {v(10+2*i,2)}")
            if i: A("s_nop 0"); A("s_or_b64 vcc, vcc, s[44:45]")
    retry_loop(loads, test)
    A(f"s_mov_b32 m0, {E_LNOK}"); ev_dma(0)
    stamp(A, 6)
    A("s_cmp_lg_u32 s2, 0"); A(f"s_cbranch_scc1 L_conv")
    A("s_mov_b32 s33, 0"); gflag_store(33, 10)
    A("s_branch L_conv")

def gwave():
    vW = 4; vXs = 10; T = 24; ST = 20
    sMH, sNH = sA, sB2
    sTB, sKQ = sA, sB2
    stamp(A, 14)
    mapping2(); mapping3()
    A(f"s_cmp_eq_u32 {s(sWAVE)}, {TW}"); A("s_cbranch_scc1 L_gt")
    A(f"s_cmp_lg_u32 {s(sWAVE)}, {LNW}"); A("s_cbranch_scc1 L_gx")
    if OPT["LNPRIO"]: A("s_setprio 2")
    A(f"v_lshlrev_b32 v2, 4, {v(vLANE)}")
    if Stamp.on: A("s_waitcnt vmcnt(0)"); stamp(A, 16)
    ln_compute(A, sB, SC, X=64, D=96, T=160)
    A(f"s_mov_b32 m0, {E_LND}"); ev_dma(0)
    if OPT["LNPRIO"]: A("s_setprio 0")
    stamp(A, 17)
    A("s_branch L_gsetup")
    A.label("L_gt")
    if OPT["XT"]:
        A(f"s_xor_b32 s32, {s(sB)}, 32"); A("s_lshl_b32 s32, s32, 13")
        A(f"v_lshlrev_b32 v2, 7, {v(vLANE)}")
        A(f"buffer_load_dword v243, v2, {s(sX,4)}, s32 offen")
    A("s_branch L_gsetup")
    A.label("L_gx")
    stamp(A, 15)
    xs_base("s40")
    A("s_waitcnt vmcnt(0) lgkmcnt(0)")
    A("s_mov_b64 s[44:45], s[100:101]")
    stamp(A, 16)
    kg_x(A, sD, 40, P=PRM)
    A(f"s_lshl_b32 s32, {s(sA)}, 2"); A(f"s_add_u32 s32, s32, {E_XRDY}"); ev_set("s32")
    stamp(A, 17)
    A.label("L_gsetup")
    A(f"v_bfe_u32 {v(T)}, {v(vLANE)}, 4, 1")
    A(f"v_mul_u32_u24 {v(T)}, {UPOFF}, {v(T)}")
    A(f"v_lshrrev_b32 {v(T+1)}, 5, {v(vLANE)}")
    A(f"v_bfe_u32 {v(T+2)}, {v(vLANE)}, 2, 2")
    A(f"v_lshl_add_u32 {v(T+2)}, {v(T+1)}, 3, {v(T+2)}")
    A(f"v_mul_u32_u24 {v(T+2)}, 192, {v(T+2)}")
    A(f"v_and_b32 {v(T+3)}, 3, {v(vLANE)}")
    A(f"v_lshl_add_u32 {v(T+2)}, {v(T+3)}, 3, {v(T+2)}")
    A(f"s_mul_i32 s32, {s(sMH)}, 96")
    A(f"v_add3_u32 {v(T+4)}, {v(T)}, {v(T+2)}, s32")
    A(f"s_lshl_b32 s33, {s(sNH)}, 5"); A("s_xor_b32 s34, s33, 32"); A("s_mov_b32 s35, 64")
    A(f"s_mul_i32 s36, {s(sNH)}, 3072"); A("s_sub_u32 s37, 3072, s36")
    for sl in range(3):
        for i in range(2):
            A(f"s_add_u32 s38, s{33+sl}, s{36+i}")
            A(f"v_add_u32 {v(vW+2*sl+i)}, s38, {v(T+4)}")
    A(f"v_and_b32 {v(T)}, 31, {v(vLANE)}")
    A(f"v_bfe_u32 {v(T+2)}, {v(vLANE)}, 1, 3")
    A(f"v_xor_b32 {v(T+2)}, {v(T+2)}, {v(T+1)}")
    A(f"v_lshlrev_b32 {v(T+2)}, 4, {v(T+2)}")
    A(f"v_lshl_add_u32 {v(T)}, {v(T)}, 7, {v(T+2)}")
    A(f"s_and_b32 s38, {s(sRG)}, 1"); A("s_lshl_b32 s38, s38, 6"); A("s_xor_b32 s38, s38, s33")
    A(f"v_xor_b32 {v(T)}, s38, {v(T)}")
    A(f"s_lshl_b32 s32, {s(sNH)}, 13"); A(f"s_add_u32 s32, s32, {L_X}")
    for k in range(4):
        A(f"v_xor_b32 {v(T+3)}, {32*k}, {v(T)}")
        A(f"v_add_u32 {v(vXs+k)}, s32, {v(T+3)}")
    A(f"v_lshrrev_b32 {v(T)}, 2, {v(vLANE)}")
    A(f"v_lshrrev_b32 {v(T+1)}, 4, {v(vLANE)}")
    A(f"v_xor_b32 {v(T)}, {v(T)}, {v(T+1)}")
    A(f"v_and_b32 {v(T)}, 1, {v(T)}")
    A(f"v_cmp_eq_u32 vcc, 0, {v(T)}")
    A(f"v_mov_b32 {v(T+1)}, 0x3f803f80")
    wcol(0, "s39")
    for k in range(4): A(f"v_cndmask_b32 {v(G_SEL+k)}, 0, {v(T+1)}, vcc")
    A("s_mov_b32 m0, s39")
    ev_addr(EV(0), 2)
    stamp(A, 18)
    BF = G_F + 40; AF = G_F + 48
    LT = []
    X = LT.append
    X(f"s_lshl_b32 s32, {s(sWAVE)}, 9"); X(f"s_add_u32 s32, s32, {L_CSX}"); X(f"v_lshl_add_u32 v16, {v(vLANE)}, 2, s32")
    X(f"s_xor_b32 s33, {s(sWAVE)}, 2"); X("s_lshl_b32 s33, s33, 9"); X(f"s_add_u32 s33, s33, {L_CSX}"); X(f"v_lshl_add_u32 v17, {v(vLANE)}, 2, s33")
    X(f"v_and_b32 {v(T)}, 31, {v(vLANE)}"); X(f"s_lshl_b32 s33, {s(sNH)}, 9"); X(f"s_add_u32 s33, s33, {L_STAT}"); X(f"v_lshl_add_u32 v19, {v(T)}, 3, s33")
    for k in (2, 3, 6, 7): X(f"v_mov_b32 {v(BF+k)}, 0")
    for sl in range(3): X(f"v_mov_b32 {v(AF+4*sl+2)}, 0"); X(f"v_mov_b32 {v(AF+4*sl+3)}, 0")
    X(f"v_cmp_gt_u32 s[42:43], 32, {v(vLANE)}")
    X("s_mov_b32 s41, 0x07060302")
    X("s_xor_b32 s33, s39, 8"); X(f"s_add_u32 s33, s33, {32*R_CS}"); X("v_mov_b32 v18, s33")
    X(f"v_lshlrev_b32 v37, 4, {v(vLANE)}"); X(f"s_lshl_b32 s32, {s(sNH)}, 10"); X("v_add_u32 v14, s32, v37"); X("v_xor_b32 v15, 1024, v14")
    X(f"s_lshl_b32 s32, {s(sRT)}, 2"); X(f"s_lshl_b32 s33, {s(sNH)}, 1"); X("s_add_u32 s32, s32, s33"); X("s_mul_i32 s32, s32, 86")
    X(f"s_lshl_b32 s36, {s(sFC)}, 1"); X(f"s_add_u32 s36, s36, {s(sMH)}")
    X(f"s_lshl_b32 s37, {s(sRT)}, 1"); X(f"s_add_u32 s37, s37, {s(sNH)}"); X("s_lshl_b32 s37, s37, 5"); X("s_add_u32 s37, s37, s36")
    X("s_lshl_b32 s37, s37, 6"); X(f"s_add_u32 s37, s37, {FL_H}")
    X(f"v_mov_b32 {v(T+12)}, {L_V}")
    X("s_mul_i32 s36, s36, 3"); X("s_add_u32 s32, s32, s36"); X("s_lshl_b32 s32, s32, 10")
    X(f"s_add_u32 s34, s32, {WS_H}"); X(f"s_add_u32 s35, s34, {86*1024}")
    X(f"v_mov_b32 {v(T+2)}, 1.0")
    X(f"s_lshr_b32 s32, {s(sWAVE)}, 1"); X(f"s_lshl_b32 s33, {s(sTT)}, 2"); X("s_add_u32 s32, s32, s33")
    X(f"s_mul_i32 s38, s32, {2*UBLK}"); X(f"s_add_u32 s38, s38, {WS_U + 8192 + 4}")
    X(f"s_lshl_b32 s33, {s(sDT)}, 1"); X(f"s_add_u32 s33, s33, {s(sA)}"); X("s_lshl_b32 s33, s33, 6"); X("s_lshl_b32 s32, s32, 14"); X("s_add_u32 s33, s33, s32")
    X(f"v_and_b32 v42, 15, {v(vLANE)}"); X("v_lshlrev_b32 v42, 10, v42"); X(f"v_and_b32 v43, 48, {v(vLANE)}"); X(f"v_add3_u32 {v(FX+5)}, v42, v43, s33")
    X(f"v_bfe_u32 v42, {v(vLANE)}, 3, 1"); X(f"v_mul_u32_u24 v42, {UBLK}, v42"); X(f"v_and_b32 v43, 7, {v(vLANE)}"); X("v_lshl_add_u32 v3, v43, 3, v42")
    nG1 = len(LT)
    X(f"v_and_b32 v2, 3, {v(vLANE)}"); X("v_lshlrev_b32 v2, 2, v2"); X(f"v_add_u32 v2, {EV(15, 4)}, v2")
    X(f"s_lshl_b32 s33, {s(sKQ)}, 3"); X(f"s_add_u32 s33, s33, {EV(R_WD, 4)}"); X("v_writelane_b32 v2, s33, 4")
    X("s_add_u32 s33, s33, 4"); X("v_writelane_b32 v2, s33, 5")
    t = 42
    X(f"v_bfe_u32 {v(t)}, {v(vLANE)}, 2, 2"); X(f"v_lshrrev_b32 {v(t+1)}, 5, {v(vLANE)}"); X(f"v_lshl_add_u32 {v(t+1)}, {v(t+1)}, 2, {v(t)}")
    X(f"v_lshlrev_b32 {v(t+1)}, 7, {v(t+1)}"); X(f"v_lshrrev_b32 {v(t)}, 1, {v(t)}"); X(f"v_lshlrev_b32 {v(t)}, 6, {v(t)}")
    X(f"v_bfe_u32 {v(t+2)}, {v(vLANE)}, 4, 1"); X(f"v_lshlrev_b32 {v(t+2)}, 5, {v(t+2)}"); X(f"v_and_b32 {v(t+3)}, 3, {v(vLANE)}")
    X(f"v_lshl_add_u32 {v(t+2)}, {v(t+3)}, 3, {v(t+2)}"); X(f"v_add3_u32 {v(t)}, {v(t)}, {v(t+1)}, {v(t+2)}")
    X(f"s_lshl_b32 s32, {s(sKQ)}, 11"); X(f"v_add_u32 {v(vR)}, s32, {v(t)}"); X(f"v_xor_b32 {v(vR+1)}, 64, {v(vR)}")
    X(f"v_add_u32 {v(vR+2)}, 0x10000, {v(vR)}"); X(f"v_add_u32 {v(vR+3)}, 0x10000, {v(vR+1)}")
    X(f"s_lshl_b32 s32, {s(sTT)}, 1"); X(f"s_add_u32 s32, s32, {s(sTB)}"); X("s_mul_i32 s32, s32, 86")
    X(f"s_mul_i32 s33, {s(sKQ)}, 43"); X("s_add_u32 s32, s32, s33"); X("s_lshl_b32 s32, s32, 10"); X(f"s_add_u32 s40, s32, {WS_H}")
    X(f"v_lshrrev_b32 {v(t)}, 3, {v(vLANE)}"); X(f"v_lshlrev_b32 {v(t)}, 10, {v(t)}"); X(f"v_lshrrev_b32 {v(t+1)}, 2, {v(vLANE)}"); X(f"v_and_b32 {v(t+1)}, 4, {v(t+1)}")
    X(f"v_and_b32 {v(t+2)}, 7, {v(vLANE)}"); X(f"v_xor_b32 {v(t+1)}, {v(t+1)}, {v(t+2)}"); X(f"v_lshl_add_u32 v46, {v(t+1)}, 4, {v(t)}")
    X(f"s_mul_i32 s44, {s(sKQ)}, {43*16384}"); X(f"s_lshl_b32 s32, {s(sDT)}, 7"); X("s_add_u32 s44, s44, s32")
    X(f"s_lshl_b32 s32, {s(sTB)}, 13"); X("s_add_u32 s44, s44, s32"); X(f"s_add_u32 s44, s44, {(G2_P-1)*16384}")
    X(f"s_lshl_b32 s45, {s(sKQ)}, 11"); X(f"s_lshl_b32 s32, {s(sTB)}, 10"); X("s_add_u32 s45, s45, s32")
    X(f"v_min_u32 v47, 14, {v(vLANE)}"); X("v_lshlrev_b32 v47, 6, v47")
    X(f"s_lshl_b32 s32, {s(sTT)}, 5"); X(f"s_mul_i32 s33, {s(sKQ)}, 14"); X("s_add_u32 s32, s32, s33"); X("s_lshl_b32 s32, s32, 6"); X(f"s_add_u32 s47, s32, {FL_H}")
    A(f"s_cmp_ge_u32 {s(sIDX)}, 30"); A("s_cbranch_scc1 L_spare_g")
    S = SLOW
    S.label("L_spare_g")
    for l in LT[nG1:]: S(l)
    ev_wait(E_SRDY, 1, S)
    get_v(S)
    S(f"s_lshl_b32 s37, {s(sB)}, 2"); S(f"s_add_u32 s37, s37, {s(sWAVE)}"); S("s_lshl_b32 s37, s37, 6"); S(f"s_add_u32 s37, s37, 0x20000")
    S(f"v_lshl_add_u32 {v(T)}, {v(vLANE)}, 5, s39")
    S("s_mov_b64 exec, 0xffff"); S(f"ds_write_b32 {v(T)}, {v(vZERO)}"); S("s_mov_b64 exec, -1")
    fin_loads(S, sTT, sDT, SC, FX, 10)
    S("s_branch L_e1end")
    def reads(ks):
        st, i = ks // 2, ks % 2
        F = G_F + 20 * (ks % 2); L = []
        wo = L_W + (st % NWS) * WSLOT
        xo = ((ks // 4) % NXS) * XSLOT
        L.append(f"ds_read_b128 {v(F+12,4)}, {v(vXs + ks%4)} offset:{xo}")
        for sl in range(3):
            for h in range(2): L.append(f"ds_read_b64_tr_b16 {v(F+4*sl+2*h,2)}, {v(vW+2*sl+i)} offset:{wo + h*768}")
            if sl == 0: L.append(f"ds_read_b128 {v(F+16,4)}, {v(vXs + ks%4)} offset:{xo+4096}")
        return L
    def split(c, sl):
        a = AF + 4 * sl
        A(f"v_and_b32 {v(T+8)}, 0xffff0000, {v(c)}")
        A(f"v_sub_f32 {v(T+4)}, {v(c)}, {v(T+8)}")
        A(f"v_and_b32 {v(T+9)}, 0xffff0000, {v(T+4)}")
        A(f"v_sub_f32 {v(T+4)}, {v(T+4)}, {v(T+9)}")
        A(f"v_perm_b32 {v(a)}, {v(T+9)}, {v(T+8)}, s41")
        A(f"v_lshrrev_b32 {v(a+1)}, 16, {v(T+4)}")
    def fold(sl, nt):
        acc = v(G_ACC + 16*(2*sl+nt), 16)
        A(f"v_mfma_f32_32x32x16_bf16 {acc}, {v(AF+4*sl,4)}, {v(BF+4*nt,4)}, {acc}")
    ev_wait()
    stamp(A, 2)
    for l in reads(0): A(l)
    for ks in range(32):
        F = G_F + 20 * (ks % 2)
        A(f"s_waitcnt lgkmcnt(0)")
        nxt = reads(ks + 1) if ks < 31 else []
        if ks % 2 == 0 and ks < 30: nxt += [f"v_add_u32 {v(vEV)}, 32, {v(vEV)}", f"ds_read_b32 {v(vET)}, {v(vEV)}"]
        if ks == 30: nxt += [f"v_mov_b32 {v(vEV)}, {E_SRDY}", f"ds_read_b32 {v(vET)}, {v(vEV)}"]
        cs = [0, 2] if ks % 2 == 0 else [0]
        if ks % 2 == 1: A(f"v_cmp_ne_u32 vcc, 0, {v(vET)}")
        def csm(c): A(f"v_mfma_f32_16x16x32_bf16 {v(G_CS+4*c,4)}, {v(G_SEL,4)}, {v(F+4*c,4)}, {'0' if ks == 0 else v(G_CS+4*c,4)}")
        if ks == 31: csm(cs.pop(0))
        n = 0
        for sl in range(3):
            for nt in range(2):
                acc = v(G_ACC + 16*(2*sl+nt), 16)
                A(f"v_mfma_f32_32x32x16_bf16 {acc}, {v(F+4*sl,4)}, {v(F+12+4*nt,4)}, {'0' if ks == 0 else acc}")
                n += 1
                if n == 1 and ks % 2 == 1:
                    ev_dma(32 * (ks // 2))
                    ev_check()
                    if ks < 31: continue
                if ks == 31:
                    if n == 1:
                        for q in range(2): A(f"ds_read_b64 {v(ST+2*q,2)}, v19 offset:{256*q}")
                        A(f"ds_read_b64 {v(T+10,2)}, {v(T+12)}")
                    if n == 2:
                        A(f"ds_write_b32 v16, {v(G_CS)}"); A(f"ds_write_b32 v16, {v(G_CS+8)} offset:256")
                        A(f"s_add_u32 s32, s39, {32*R_CS}"); ev_set("s32")
                    if n == 3: split(G_CS, 0)
                    if n == 4:
                        A("s_waitcnt lgkmcnt(3)")
                        A(f"v_readfirstlane_b32 {s(sV)}, {v(T+10)}"); A(f"v_readfirstlane_b32 {s(sV+1)}, {v(T+11)}")
                    if n in (4, 5):
                        q = n - 4
                        A(f"v_xor_b32 {v(T+8)}, 0x80000000, {v(ST+2*q)}")
                        A(f"v_cndmask_b32 {v(T+8)}, 0, {v(T+8)}, s[42:43]")
                        A(f"v_lshrrev_b32 {v(BF+4*q+1)}, 16, {v(T+8)}")
                        A(f"v_or_b32 {v(BF+4*q)}, {v(T+8)}, {v(BF+4*q+1)}")
                    continue
                for _ in range(3 if (n < 3 or ks % 2 == 1) else 2):
                    if nxt: A(nxt.pop(0))
                if n >= 3 and n < 6 and cs and not (len(cs) < 6 - n): csm(cs.pop(0))
                if n == 6 or (n == 5 and ks % 2 == 1):
                    for _ in range(4 if ks < 8 else 3):
                        if LT: A(LT.pop(0))
        assert not nxt and not cs, (ks, nxt, cs)
        if ks in (7, 15, 23): stamp(A, 3 + ks // 8)
    assert not LT
    stamp(A, 6)
    A("s_nop 0")
    fold(0, 0); fold(0, 1)
    for nt in range(2): A(f"v_mul_f32 {v(ST+2*nt)}, {fl(-LOG2E)}, {v(ST+2*nt+1)}")
    A(f"v_mov_b32 {v(vEV)}, v18")
    A(f"buffer_load_dwordx4 {v(FX,4)}, {v(FX+5)}, {s(sX,4)}, 0 offen")
    A(f"buffer_load_dword {v(FX+4)}, v3, {s(sWS,4)}, s38 offen {SC}")
    A("s_cmp_ge_u32 s36, 85"); A("s_cbranch_scc1 L_e1end")
    A("s_nop 3")
    stamp(A, 7)
    def tile(sl, nt, fill, mid=None, mf=()):
        a = G_ACC + 16*(2*sl+nt)
        va, off = ((14, 0), (15, 0), (37, 2048))[sl]
        L = [f"v_pk_mul_f32 {v(a+2*k,2)}, {v(a+2*k,2)}, {v(ST+2*nt,2)} op_sel_hi:[1,0]" for k in range(4)]
        L += [f"v_exp_f32 {v(a+k)}, {v(a+k)}" for k in range(8)]
        L += [f"v_pk_add_f32 {v(a+2*k,2)}, {v(a+2*k,2)}, {v(T+2,2)} op_sel_hi:[1,0]" for k in range(4)]
        L += [f"v_rcp_f32 {v(a+k)}, {v(a+k)}" for k in range(8)]
        L += [f"v_pk_mul_f32 {v(a+2*k,2)}, {v(a+2*k,2)}, {v(a+8+2*k,2)}" for k in range(4)]
        L += [f"v_cvt_pk_bf16_f32 {v(a+8+k)}, {v(a+2*k)}, {v(a+2*k+1)}" for k in range(4)]
        mf = list(mf)
        for n, l in enumerate(L):
            if n == 4 and mid: mid()
            A(l)
            if fill and l.startswith(("v_exp", "v_rcp")): A(fill.pop(0))
            if mf and n in (5, 8, 16, 19): fold(*mf.pop(0))
        if not OPT["NOST"]: A(f"buffer_store_dwordx4 {v(a+8,4)}, {v(va)}, {s(sWS,4)}, s{34+nt} offen offset:{off} {SC}")
    tile(0, 0, [f"ds_read_b32 {v(vET)}, {v(vEV)}"])
    A("s_waitcnt lgkmcnt(0)"); A(f"v_cmp_ne_u32 vcc, 0, {v(vET)}"); ev_check()
    A(f"ds_read_b32 {v(T+5)}, v17"); A(f"ds_read_b32 {v(T+6)}, v17 offset:256")
    def folds():
        A("s_waitcnt lgkmcnt(0)")
        split(T+5, 1)
        A(f"v_add_f32 {v(T+6)}, {v(T+6)}, {v(G_CS+8)}")
        split(T+6, 2)
    tile(0, 1, [], mid=folds, mf=[(1, 0), (1, 1), (2, 0), (2, 1)])
    tile(1, 0, []); tile(1, 1, [])
    A("s_cmp_ge_u32 s36, 84"); A("s_cbranch_scc1 L_e1end")
    tile(2, 0, []); tile(2, 1, [f"v_mov_b32 {v(vEV)}, v2", f"ds_read_b32 {v(vET)}, {v(vEV)}"])
    S.label("L_e1end"); S(f"v_mov_b32 {v(vEV)}, v2"); S(f"ds_read_b32 {v(vET)}, {v(vEV)}"); S("s_nop 7"); S("s_branch L_e2end")
    A.label("L_e2end")
    stamp(A, 8)
    A("s_waitcnt lgkmcnt(0)"); A(f"v_cmp_ne_u32 vcc, 0, {v(vET)}"); ev_check()
    for p in range(G2_P):
        for l in wd_reads(p, PRE[p]): A(l)
    A(f"s_add_u32 s32, s39, {32*R_EPI}"); ev_set("s32")
    A("s_xor_b32 s32, s32, 4"); A(f"v_mov_b32 {v(vEV)}, s32")
    stamp(A, 10)
    nv = 0
    for i in range(G2_P, 43):
        k = i - G2_P
        if k == OPT["FD"]:
            ev_wait()
            stamp(A, 19)
            A(f"s_waitcnt vmcnt({nv})")
            stamp(A, 9)
            gflag_store(37)
        if i == G2_NA:
            A("s_mov_b32 m0, s39"); ev_dma(32 * R_WD2)
        if k == OPT["PP"]:
            A(f"s_add_u32 s32, {s(P_WS)}, s47"); A(f"s_addc_u32 s33, {s(P_WS+1)}, 0")
            for q in range(15): A(f"s_load_dwordx2 s[{64+2*q}:{65+2*q}], s[32:33], {64*q} glc")
        A(f"s_add_u32 m0, s45, {4096*pslot(i)}")
        A("s_add_u32 s44, s44, 16384")
        A(f"buffer_load_dwordx4 v46, {s(sWD,4)}, s44 offen lds"); nv += 1
    A("s_mov_b32 m0, s39"); ev_dma(32 * R_BL)
    for k in range(4): A(f"v_mov_b32 {v(4+k)}, {v(vR+k)}")
    globals()["vR"] = 4
    vH = 8
    A(f"v_lshlrev_b32 {v(vH)}, 4, {v(vLANE)}")
    A("s_waitcnt lgkmcnt(0)")
    stamp(A, 11)
    for q in range(15):
        A(f"s_cmp_lg_u64 s[{64+2*q}:{65+2*q}], {s(sV,2)}"); A("s_cbranch_scc1 L_hpoll")
    S.label("L_hpoll")
    S("s_mov_b32 s46, 0")
    S.label("L_hp")
    S(f"buffer_load_dwordx2 v[12:13], v47, {s(sWS,4)}, s47 offen {SC}")
    S("s_add_u32 s46, s46, 1"); S(f"s_cmp_lt_u32 s46, {SPIN_MAX}"); S("s_cselect_b64 s[42:43], -1, 0")
    S("s_waitcnt vmcnt(0)"); S(f"v_cmp_ne_u64 vcc, {s(sV,2)}, v[12:13]"); S("s_nop 0"); S("s_and_b64 vcc, vcc, s[42:43]")
    S("s_cbranch_scc1 L_hp"); S("s_branch L_hok")
    A.label("L_hok")
    stamp(A, 12)
    NH = len(HW)
    def hload(i):
        if i % 4 == 0 and i: A(f"s_add_u32 s40, s40, 4096")
        A(f"buffer_load_dwordx4 {v(HW[i%NH],4)}, {v(vH)}, {s(sWS,4)}, s40 offen offset:{1024*(i%4)} {SC}")
    def mid(row):
        A(f"s_lshl_b32 s33, {s(sKQ)}, 3"); A(f"s_add_u32 s33, s33, {EV(row, 4)}"); ev_wait("s33", 2)
    for i in range(NH): hload(i)
    LA = 3
    lg = []
    for i in range(43):
        F = PRE[i % G2_P]
        nxt = []
        if G2_P <= i + LA < 43:
            if i + LA == G2_P: mid(R_WD2); lg = []
            if i + LA == G2_NA: mid(R_BL); lg = []
            nxt = wd_reads(i + LA, PRE[(i + LA) % G2_P])
        w = f"s_waitcnt vmcnt({min(43, i + NH) - i - 1})"
        if i in lg: w += f" lgkmcnt({len(lg) - 1 - max(n for n, x in enumerate(lg) if x == i)})"
        A(w)
        lg += [i + LA] * len(nxt)
        for dt in range(2):
            acc = v(G2_ACC + 16*dt, 16)
            if not OPT["NOMF"]: A(f"v_mfma_f32_32x32x16_bf16 {acc}, {v(F+4*dt,4)}, {v(HW[i%NH],4)}, {'0' if i == 0 else acc}")
            for _ in range(2):
                if nxt: A(nxt.pop(0))
        if i == OPT["LATE"]: lg.append(-1)
        if i + NH < 43: hload(i + NH)
        if i == OPT["LATE"]:
            A(f"s_add_u32 s33, s39, {32*R_LATE}"); ev_set("s33")
    stamp(A, 13)
    ev_wait(EV(R_XR, 4), 4)
    g2_partials(A, sTB, sKQ)
    A("s_branch L_final")

if Stamp.on: A("v_mov_b32 v255, 0"); stamp(A, 0)
A("s_load_dwordx16 s[64:79], s[0:1], 0")
A("s_load_dwordx16 s[80:95], s[0:1], 64")
A("s_cmp_ge_u32 s2, 256"); A("s_cbranch_scc1 L_done")
A("s_getpc_b64 s[32:33]"); A.label("L_pcref")
A(f"s_lshr_b32 {s(sIDX)}, s2, 3")
A(f"s_lshl_b32 s34, {s(sIDX)}, 11")
A("v_lshl_add_u32 v2, v0, 2, s34")
A("v_min_u32 v2, L_codeend-L_pcref-4, v2")
A("global_load_dword v242, v2, s[32:33]")
A("v_lshrrev_b32 v2, 6, v0")
A(f"v_and_b32 {v(vLANE)}, 63, v0")
A(f"v_readfirstlane_b32 {s(sWAVE)}, v2")
A("v_and_b32 v2, 255, v0"); A("v_lshlrev_b32 v2, 2, v2"); A(f"v_add_u32 v2, {L_CTL}, v2"); A("v_mov_b32 v3, 1"); A("ds_write_b32 v2, v3")
A(f"s_and_b32 {s(sXCD)}, s2, 7")
A(f"s_lshl_b32 {s(sB)}, {s(sXCD)}, 5"); A(f"s_add_u32 {s(sB)}, {s(sB)}, {s(sIDX)}")
A(f"s_and_b32 {s(sA)}, {s(sWAVE)}, 1")
A(f"s_and_b32 s34, {s(sIDX)}, 3"); A("s_lshl_b32 s34, s34, 1"); A(f"s_add_u32 s34, s34, {s(sA)}")
A(f"s_lshl_b32 s35, {s(sXCD)}, 3"); A("s_add_u32 s34, s34, s35"); A("s_lshl_b32 s34, s34, 3")
A(f"s_lshr_b32 s35, {s(sIDX)}, 2"); A(f"s_add_u32 {s(sD)}, s34, s35")
A(f"s_lshl_b32 s34, {s(sD)}, 8"); A(f"v_lshl_add_u32 v3, {v(vLANE)}, 2, s34")
A(f"s_lshr_b32 s35, {s(sD)}, 1"); A("s_lshl_b32 s35, s35, 2")
A(f"s_lshl_b32 s34, {s(sB)}, 13"); A("s_add_u32 s34, s34, 4096"); A(f"v_lshl_add_u32 v2, {v(vLANE)}, 4, s34")
A("s_movk_i32 s36, 2752"); A("s_movk_i32 s37, 0x1556")
for j in range(3):
    if j: A(f"v_add_u32 v18, {64*j}, {v(vLANE)}")
    src = "v18" if j else v(vLANE)
    A(f"v_mul_u32_u24 v19, s37, {src}"); A("v_lshrrev_b32 v19, 16, v19")
    A(f"v_mad_i32_i24 v20, v19, -12, {src}")
    A("v_mul_u32_u24 v19, s36, v19")
    A(f"v_lshl_add_u32 v{8+j}, v20, 4, v19")
    if j: A(f"v_subrev_u32 v{8+j}, {1024*j}, v{8+j}")
A("s_waitcnt lgkmcnt(0)")
stamp(A, 1)
A(f"s_bitcmp1_b32 0xc3, {s(sWAVE)}"); A("s_cbranch_scc0 L_e1")
A(f"s_load_dword s100, {s(P_LDT,2)}, s35")
A(f"s_load_dword s101, {s(P_DSK,2)}, s35")
for i, p in enumerate((P_ARE, P_AIM)): A(f"global_load_dword {v(PRM+i)}, v3, {s(p,2)}")
A(f"s_cmp_lt_u32 {s(sWAVE)}, 2"); A("s_cbranch_scc0 L_e2")
for i, p in enumerate((P_BRE, P_BIM, P_CRE, P_CIM)): A(f"global_load_dword {v(PRM+2+i)}, v3, {s(p,2)}")
A.label("L_e1")
A(f"s_cmp_eq_u32 {s(sWAVE)}, {LNW}"); A("s_cbranch_scc0 L_e2")
for r in range(8): A(f"global_load_dwordx4 {v(64+4*r,4)}, v2, {s(P_X,2)} offset:{r*1024-4096}")
A.label("L_e2")
A("s_barrier")
A(f"s_cmp_lt_u32 {s(sWAVE)}, 4"); A("s_cbranch_scc1 L_g")
A(f"s_cmp_ge_u32 {s(sWAVE)}, 6"); A("s_cbranch_scc1 L_kg")
loader(); h_common()
A.label("L_stub")
A("s_sleep 1")
A(f"ds_read_b32 {v(vET)}, {v(vEV)}"); A("s_waitcnt lgkmcnt(0)"); A(f"v_cmp_ne_u32 vcc, 0, {v(vET)}")
A("s_cbranch_vccnz L_stub"); A("s_setpc_b64 s[62:63]")
A(".p2align 6"); A.label("L_kg"); kg()
A(".p2align 6"); A.label("L_g"); gwave()
lines = A.lines + ["    .p2align 6"] + SLOW.lines + ["L_codeend:"]
if OPT["ALIGN"]:
    lines, npm, nn = align8([KNAME + ":"] + lines); lines = lines[1:]; print("align: promoted", npm, "nops", nn)
body = "\n".join(lines) + "\n"
out = HDR + f"; @launch grid=(256,1,1) block=(512,1,1) lds={LDS_TOTAL}\n"
out += f'.amdgcn_target "amdgcn-amd-amdhsa--gfx950"\n.text\n.globl {KNAME}\n.p2align 8\n.type {KNAME},@function\n{KNAME}:\n' + body
out += f""".section .rodata,"a"
.p2align 6
.amdhsa_kernel {KNAME}
  .amdhsa_next_free_vgpr 256
  .amdhsa_next_free_sgpr 102
  .amdhsa_accum_offset 256
  .amdhsa_group_segment_fixed_size 0
  .amdhsa_kernarg_size 128
  .amdhsa_user_sgpr_count 2
  .amdhsa_user_sgpr_kernarg_segment_ptr 1
  .amdhsa_system_sgpr_workgroup_id_x 1
.end_amdhsa_kernel
"""
open(sys.argv[1], "w").write(out)
print("hazards:", check(body))
```

```python
from roles import *
import roles
def pairs(x): return [x, x + 2]
PRM4 = 226
DT, EH, U = 2, 3, 4
Z8, Z1, ZB, ZH, Z16, Z2 = 8, 12, 16, 20, 24, 28
WK, D, PKD, YF, SX, SY, ACC = 32, 64, 128, 160, 192, 200, 208
KO = 64; KADR = 16
def sel_build(A, Dst, vd, T):
    A(f"v_and_b32 {v(T)}, 1, {v(vd)}"); A(f"v_lshlrev_b32 {v(T)}, 4, {v(T)}")
    A(f"v_mov_b32 {v(T+1)}, 0x3f80"); A(f"v_lshlrev_b32 {v(T)}, {v(T)}, {v(T+1)}")
    A(f"v_lshrrev_b32 {v(T+1)}, 1, {v(vd)}")
    for p in range(0, 8, 2):
        A(f"v_cmp_eq_u32 vcc, {p}, {v(T+1)}"); A(f"v_cmp_eq_u32 s[32:33], {p+1}, {v(T+1)}"); A("s_nop 0")
        A(f"v_cndmask_b32 {v(Dst+p)}, 0, {v(T)}, vcc"); A(f"v_cndmask_b32 {v(Dst+p+1)}, 0, {v(T)}, s[32:33]")
def kg4_pre(A):
    T = WK
    A(f"v_lshrrev_b32 {v(T+2)}, 5, {v(vLANE)}")
    A(f"v_and_b32 {v(T+3)}, 31, {v(vLANE)}")
    A(f"v_lshlrev_b32 {v(T+4)}, 4, {v(T+2)}"); A(f"v_sub_u32 {v(T+4)}, {v(T+3)}, {v(T+4)}")
    sel_build(A, SY, T+4, T)
    nib = lambda l: "0x%x" % sum(x << (4*i) for i, x in enumerate(l))
    A(f"v_mov_b32 {v(T+4)}, {nib([0,1,2,3,4,5,6,7])}"); A(f"v_mov_b32 {v(T+5)}, {nib([0,0,2,4,4,4,6,15])}")
    A(f"v_cmp_gt_u32 vcc, 32, {v(vLANE)}"); A(f"v_cmp_gt_u32 s[32:33], 16, {v(T+3)}")
    A(f"v_mov_b32 {v(T)}, {nib([8,14,9,10,11,12,13,0])}")
    A(f"v_cndmask_b32 {v(T+4)}, {v(T+5)}, {v(T+4)}, vcc")
    A(f"v_cndmask_b32 {v(T+4)}, {v(T)}, {v(T+4)}, s[32:33]")
    A(f"v_bfe_u32 {v(T)}, {v(vLANE)}, 3, 1"); A(f"v_and_b32 {v(T+1)}, 3, {v(vLANE)}"); A(f"v_lshl_add_u32 {v(T)}, {v(T)}, 2, {v(T+1)}")
    A(f"v_lshlrev_b32 {v(T)}, 2, {v(T)}"); A(f"v_bfe_u32 {v(T+4)}, {v(T+4)}, {v(T)}, 4")
    A(f"v_bfe_u32 {v(T)}, {v(vLANE)}, 2, 1"); A(f"v_xor_b32 {v(T)}, {v(T)}, {v(T+2)}"); A(f"v_lshl_add_u32 {v(T+4)}, {v(T)}, 4, {v(T+4)}")
    sel_build(A, SX, T+4, T)
    A(f"v_cvt_f32_u32 {v(EH)}, {v(T+2)}"); A(f"v_mul_f32 {v(EH)}, {fl(128.0)}, {v(EH)}")

def kg4_main(A, sD, sT, sKB, hook=None, hook2=None, ph=0):
    P = PRM4; T = WK
    A(f"s_bitcmp1_b32 {s(sD)}, 0")
    A(f"s_cselect_b32 {s(sT+2)}, 0, 16")
    A(f"s_lshl_b32 {s(sT)}, {s(sT)}, {s(sT+2)}"); A(f"s_lshl_b32 {s(sT+1)}, {s(sT+1)}, {s(sT+2)}")
    A(f"s_and_b32 {s(sT)}, {s(sT)}, 0xffff0000"); A(f"s_and_b32 {s(sT+1)}, {s(sT+1)}, 0xffff0000")
    hi = struct.unpack("<f", struct.pack("<f", LOG2E))[0]; lo = LOG2E - hi
    A(f"v_mov_b32 {v(T)}, {fl(hi)}")
    A(f"v_mul_f32 {v(T+1)}, {s(sT)}, {v(T)}")
    A(f"v_fma_f32 {v(T+2)}, {s(sT)}, {v(T)}, -{v(T+1)}")
    A(f"v_mov_b32 {v(T+3)}, {fl(lo)}")
    A(f"v_fma_f32 {v(T+2)}, {s(sT)}, {v(T+3)}, {v(T+2)}")
    A(f"v_exp_f32 {v(T+1)}, {v(T+1)}")
    A(f"v_mul_f32 {v(T+2)}, {fl(0.6931471805599453)}, {v(T+2)}")
    A(f"v_fma_f32 {v(T+1)}, {v(T+1)}, {v(T+2)}, {v(T+1)}")
    A(f"v_cvt_pk_bf16_f32 {v(T+1)}, {v(T+1)}, {v(T+1)}")
    A(f"v_and_b32 {v(DT)}, 0xffff0000, {v(T+1)}")
    w = lambda i: WK + 4 * i
    def cm(*tr): cmul2(A, sum([pairs(d) for d, p, z in tr], []), sum([pairs(p) for d, p, z in tr], []), sum([pairs(z) for d, p, z in tr], []))
    def pack(dw, a, b, neg):
        for u in range(2):
            A(f"v_cvt_pk_bf16_f32 {v(PKD+16*u+dw)}, {v(a+2*u)}, {v(b+2*u)}")
            n = "-" if neg else ""
            A(f"v_cvt_pk_bf16_f32 {v(PKD+16*u+8+dw)}, {n}{v(a+2*u+1)}, {n}{v(b+2*u+1)}")
    def transposes(SEL):
        A("s_setprio 1"); A("s_nop 0")
        for st in range(2):
            for blk in range(4):
                d = v(D + 16*blk, 16)
                A(f"v_mfma_f32_32x32x16_bf16 {d}, {v(PKD+8*blk+4*st,4)}, {v(SEL+4*st,4)}, {'0' if st == 0 else d}")
        A("s_setprio 0")
    def repack(F):
        for k in range(32): A(f"v_cvt_pk_bf16_f32 {v(F+k)}, {v(D+2*k)}, {v(D+2*k+1)}")
    def finish(first):
        repack(WK)
        A("s_setprio 1"); A("s_nop 0")
        for k in range(8): A(f"v_mfma_f32_32x32x16_bf16 {v(ACC,16)}, {v(WK+4*k,4)}, {v(YF+4*k,4)}, {'0' if first and k == 0 else v(ACC,16)}")
        A("s_setprio 0")
    def unp(d, p, u): A(f"v_lshlrev_b32 {v(d)}, 16, {v(p)}" if u == 0 else f"v_and_b32 {v(d)}, 0xffff0000, {v(p)}")
    for ps in range(2):
        for i in range(2):
            for u in range(2): unp(U+2*i+u, P+2*i+ps, u)
        for k in range(4): A(f"v_mul_f32 {v(U+k)}, {v(DT)}, {v(U+k)}")
        for u in range(2):
            A(f"v_mul_f32 {v(U+u)}, {fl(LOG2E)}, {v(U+u)}")
            A(f"v_mul_f32 {v(U+2+u)}, {fl(0.15915494309189535)}, {v(U+2+u)}")
        it = [(Z + 2*u, e, u, WK + 4*(2*k+u)) for k, (Z, e) in enumerate(((Z8, fl(8.0)), (ZH, v(EH)), (Z1, "1.0"), (ZB, fl(512.0)))) for u in range(2)]
        for z, e, u, t in it:
            A(f"v_mul_f32 {v(t)}, {e}, {v(U+u)}"); A(f"v_mul_f32 {v(t+1)}, {e}, {v(U+2+u)}")
        for z, e, u, t in it:
            A(f"v_rndne_f32 {v(t+2)}, {v(t+1)}"); A(f"v_exp_f32 {v(t)}, {v(t)}")
        for z, e, u, t in it: A(f"v_sub_f32 {v(t+1)}, {v(t+1)}, {v(t+2)}")
        for z, e, u, t in it:
            A(f"v_cos_f32 {v(t+2)}, {v(t+1)}"); A(f"v_sin_f32 {v(t+3)}, {v(t+1)}")
        A("s_nop 0")
        for z, e, u, t in it:
            A(f"v_mul_f32 {v(z)}, {v(t+2)}, {v(t)}"); A(f"v_mul_f32 {v(z+1)}, {v(t+3)}, {v(t)}")
        cm((Z16, Z8, Z8), (w(1), ZH, Z8), (Z2, Z1, Z1))
        cur = (ZH, w(1))
        for p in range(1, 8):
            nx = (w(2), w(3)) if p % 2 else (w(0), w(1))
            cm((nx[0], cur[0], Z16), (nx[1], cur[1], Z16))
            pack(p - 1, cur[0], cur[1], False); cur = nx
        pack(7, cur[0], cur[1], False)
        if ps: finish(True)
        transposes(SY)
        if ps == 0 and hook: hook()
        if ps == 1 and ph == 2: hook2()
        for u in range(2):
            for i in range(2): unp(w(6)+2*u+i, P+4+2*i+ps, u); unp(w(7)+2*u+i, P+8+2*i+ps, u)
        for k in range(4): A(f"v_mul_f32 {v(w(6)+k)}, {v(DT)}, {v(w(6)+k)}")
        cm((w(1), w(7), w(6)), (w(2), ZH, ZH))
        a, b, c, d, e, f, g, h = [w(i) for i in range(8)]
        cm((a, b, c))
        cm((b, a, Z1), (c, a, Z2), (f, a, Z8), (g, a, ZB))
        cm((d, b, Z2), (e, c, Z2), (h, f, ZB)); pack(0, a, b, True)
        cm((b, d, Z2), (a, g, ZB)); pack(1, c, d, True); pack(4, g, h, True)
        cm((c, e, Z2), (d, b, Z2), (g, h, ZB)); pack(2, e, b, True)
        cm((b, e, ZB), (h, a, ZB)); pack(3, c, d, True); pack(5, a, g, True)
        cm((c, g, ZB)); pack(7, b, f, True)
        pack(6, h, c, True)
        repack(YF)
        transposes(SX)
        if ps == 0 and ph == 1: hook2()
        if ps == 1 and ph == 3: hook2()
    T = KADR
    A(f"v_and_b32 {v(T)}, 31, {v(vLANE)}"); A(f"v_lshlrev_b32 {v(T)}, 4, {v(T)}")
    A(f"v_lshrrev_b32 {v(T+1)}, 5, {v(vLANE)}"); A(f"v_lshlrev_b32 {v(T+1)}, 9, {v(T+1)}")
    A(f"v_add_u32 {v(T)}, {v(T)}, {v(T+1)}"); A(f"v_sub_u32 {v(T)}, {4080-3072}, {v(T)}"); A(f"v_add_u32 {v(T)}, {s(sKB)}, {v(T)}")
    A(f"v_lshrrev_b32 {v(T+1)}, 2, {v(vLANE)}"); A(f"v_mul_u32_u24 {v(T+1)}, {KCS}, {v(T+1)}")
    A(f"v_and_b32 {v(T+2)}, 3, {v(vLANE)}"); A(f"v_lshlrev_b32 {v(T+2)}, 4, {v(T+2)}")
    A(f"v_add3_u32 {v(T+1)}, {v(T+1)}, {v(T+2)}, {s(sKB)}")
    finish(False)
    for i in range(4): A(f"v_mov_b32 {v(T+4+i)}, 0")
    A(f"v_mov_b32 {v(T+2)}, 0"); A(f"v_writelane_b32 {v(T+2)}, {s(sT+1)}, 0")
    A(f"v_and_b32 {v(T+3)}, 1, {v(vLANE)}"); A(f"v_cmp_eq_u32 vcc, 1, {v(T+3)}")
    A("s_nop 3")
    A(f"v_add_f32 {v(ACC)}, {v(ACC)}, {v(T+2)}")
    C = lambda qq: KO + 16 * qq
    for p in range(4): A(f"v_cvt_pk_bf16_f32 {v(C(0)+p)}, {v(ACC+7-2*p)}, {v(ACC+6-2*p)}")
    for p, (a_, b_) in enumerate(((10,10),(9,9),(9,8),(8,8))): A(f"v_cvt_pk_bf16_f32 {v(C(1)+p)}, {v(ACC+a_)}, {v(ACC+b_)}")
    for qq, lo_ in ((2, 11), (3, 13)):
        c = C(qq)
        A(f"v_cndmask_b32 {v(T+3)}, {v(ACC+lo_)}, {v(ACC+lo_+1)}, vcc")
        A(f"v_cvt_pk_bf16_f32 {v(c)}, {v(ACC+lo_+1)}, {v(ACC+lo_+1)}")
        A(f"v_cvt_pk_bf16_f32 {v(c+1)}, {v(ACC+lo_+1)}, {v(T+3)}")
        A(f"v_cvt_pk_bf16_f32 {v(c+2)}, {v(ACC+lo_)}, {v(ACC+lo_)}")
        A(f"v_cvt_pk_bf16_f32 {v(c+3)}, {v(ACC+lo_)}, {v(ACC+lo_)}")
    N = PKD
    for qq in range(4):
        for k in range(2):
            if qq == 0: A(f"v_mov_b32 {v(N+k)}, 0")
            else: A(f"v_mov_b32_dpp {v(N+2*qq+k)}, {v(C(qq-1)+k)} wave_ror:1 row_mask:0xf bank_mask:0xf")
    for qq in range(4):
        for k in range(2): A(f"v_mov_b32_dpp {v(N+2*qq+k)}, {v(C(qq)+k)} wave_shr:1 row_mask:0xf bank_mask:0xf")
    for qq in range(4):
        R = [C(qq) + k for k in range(4)] + [N + 2*qq, N + 2*qq + 1]
        for k in range(4): A(f"v_alignbit_b32 {v(C(qq)+4+k)}, {v(R[k+1])}, {v(R[k])}, 16")
        for k in range(4): A(f"v_mov_b32 {v(C(qq)+8+k)}, {v(R[k+1])}")
        for k in range(4): A(f"v_alignbit_b32 {v(C(qq)+12+k)}, {v(R[k+2])}, {v(R[k+1])}, 16")

def kg4_store(A):
    T = KADR
    for qq in range(4):
        for cp in range(4): A(f"ds_write_b128 {v(T)}, {v(KO+16*qq+4*cp,4)} offset:{1024*(3-qq) + cp*KCS}")
    A(f"s_mov_b64 exec, 0xffff")
    A(f"ds_write_b128 {v(T+1)}, {v(T+4,4)} offset:4096")
    A(f"s_mov_b64 exec, -1")
```

```python
from asmlib import *
import struct
def fl(x): return "0x%08x" % struct.unpack("<I", struct.pack("<f", x))[0]
LOG2E = 1.4426950408889634

WS_U  = 0x100000; UBLK = 8320
WS_H  = 0x400000
WS_S  = 0xA00000
WS_SIZE = 0x10000000
WSLOT = 12352; NWS = 5; UPOFF = 6176
XSLOT = 16384; NXS = 3
L_W = 0
L_X = L_W + WSLOT * NWS
L_RINGEND = L_X + XSLOT * NXS
KCS = 4160; KROW = 528
L_K = [L_RINGEND, L_RINGEND + 16896]
L_U = [L_RINGEND + 2 * 16896, L_RINGEND + 2 * 16896 + 4608]
L_SSMEND = L_U[1] + 4608
L_ST = L_SSMEND
L_CTL = L_ST + 8192
L_CS = L_CTL + 256
LDS_TOTAL = 163840
sX, sWG, sWU, sWD, sWS, sOUT = 8, 12, 16, 20, 24, 28
KA = 64
P_X, P_ARE, P_AIM, P_BRE, P_BIM, P_CRE, P_CIM, P_LDT, P_DSK, P_BX, P_WG, P_WU, P_WD, P_OUT, P_DBG, P_WS = [KA + 2 * i for i in range(16)]
sWAVE = 3
vLANE = 1

def prologue(A, nwg=256, done="L_done"):
    A(f"s_load_dwordx16 s[64:79], s[0:1], 0")
    A(f"s_load_dwordx16 s[80:95], s[0:1], 64")
    A(f"s_cmp_ge_u32 s2, {nwg}")
    A(f"s_cbranch_scc1 {done}")
    A(f"v_lshrrev_b32 v2, 6, v0")
    A(f"v_and_b32 {v(vLANE)}, 63, v0")
    A(f"v_readfirstlane_b32 {s(sWAVE)}, v2")
    for srd, sz in ((sX, 0x200000), (sWG, 1409024), (sWU, 1409024), (sWD, 1409024), (sWS, WS_SIZE), (sOUT, 0x200000)):
        A(f"s_mov_b32 {s(srd+2)}, {sz}")
        A(f"s_mov_b32 {s(srd+3)}, 0x20000")
    A("s_waitcnt lgkmcnt(0)")
    for srd, p in ((sX, P_X), (sWG, P_WG), (sWU, P_WU), (sWD, P_WD), (sWS, P_WS), (sOUT, P_OUT)):
        A(f"s_mov_b64 {s(srd,2)}, {s(p,2)}")

def ln_loads(A, sB, X=16, vOff=2, sT=32):
    A(f"v_lshlrev_b32 {v(vOff)}, 4, {v(vLANE)}")
    A(f"s_lshl_b32 {s(sT)}, {s(sB)}, 13")
    A(f"s_add_u32 {s(sT+1)}, {s(sT)}, 4096")
    for r in range(8):
        A(f"buffer_load_dwordx4 {v(X+4*r,4)}, {v(vOff)}, {s(sX,4)}, {s(sT + r//4)} offen offset:{(r%4)*1024}")

def reduce8(A, S):
    A("s_nop 2")
    for i in range(4): A(f"v_permlane32_swap_b32 {v(S+i)}, {v(S+i+4)}")
    for i in range(4): A(f"v_add_f32 {v(S+i)}, {v(S+i)}, {v(S+i+4)}")
    A("s_nop 0")
    for i in range(2): A(f"v_permlane16_swap_b32 {v(S+i)}, {v(S+i+2)}")
    for i in range(2): A(f"v_add_f32 {v(S+i)}, {v(S+i)}, {v(S+i+2)}")
    for k in (8, 4, 2, 1):
        A("s_nop 0")
        for i in range(2): A(f"v_add_f32_dpp {v(S+i)}, {v(S+i)}, {v(S+i)} row_ror:{k} row_mask:0xf bank_mask:0xf")

def ln_compute(A, sB, sc, X=16, D=48, T=112, vOff=2, sM=36, sT=32, extra_vm=0):
    S = T; ONE = T + 8; LO = T + 9; HI = T + 10; MU = T + 12; M = T + 14; Q = X
    A(f"v_mov_b32 {v(ONE)}, 0x3f803f80")
    A(f"v_mov_b32 {v(LO)}, 0x3f80")
    A(f"v_mov_b32 {v(HI)}, 0x3f800000")
    for q in range(4):
        for r in range(8):
            if q == 0: A(f"s_waitcnt vmcnt({7-r+extra_vm})")
            A(f"v_dot2_f32_bf16 {v(S+r)}, {v(X+4*r+q)}, {v(ONE)}, {'0' if q == 0 else v(S+r)}")
    reduce8(A, S)
    for i in range(2): A(f"v_mul_f32 {v(MU+i)}, {fl(1/512)}, {v(S+i)}")
    A(f"v_cvt_pk_bf16_f32 {v(S+2)}, {v(MU)}, {v(MU+1)}")
    A(f"v_lshlrev_b32 {v(M)}, 16, {v(S+2)}")
    A(f"v_and_b32 {v(M+1)}, 0xffff0000, {v(S+2)}")
    for i in range(2): A(f"v_xor_b32 {v(S+4+i)}, 0x80000000, {v(M+i)}")
    A("s_nop 0")
    for r in range(8): A(f"v_readlane_b32 {s(sM+r)}, {v(S+4+(r&1))}, {16*(r>>1)}")
    for i in range(2): A(f"v_sub_f32 {v(MU+i)}, {v(MU+i)}, {v(M+i)}")
    for r in range(8):
        for q in range(4):
            A(f"v_dot2_f32_bf16 {v(D+8*r+2*q)}, {v(X+4*r+q)}, {v(LO)}, {s(sM+r)}")
            A(f"v_dot2_f32_bf16 {v(D+8*r+2*q+1)}, {v(X+4*r+q)}, {v(HI)}, {s(sM+r)}")
    for q in range(4):
        for r in range(8):
            d = v(D+8*r+2*q, 2)
            if q == 0: A(f"v_pk_mul_f32 {v(Q+2*r,2)}, {d}, {d}")
            else: A(f"v_pk_fma_f32 {v(Q+2*r,2)}, {d}, {d}, {v(Q+2*r,2)}")
    for r in range(8): A(f"v_add_f32 {v(S+r)}, {v(Q+2*r)}, {v(Q+2*r+1)}")
    reduce8(A, S)
    for i in range(2): A(f"v_mul_f32 {v(S+i)}, {fl(1/512)}, {v(S+i)}")
    for i in range(2): A(f"v_fma_f32 {v(S+i)}, -{v(MU+i)}, {v(MU+i)}, {v(S+i)}")
    for i in range(2): A(f"v_max_f32 {v(S+i)}, 0, {v(S+i)}")
    def rb2():
        A(f"v_cvt_pk_bf16_f32 {v(S+2)}, {v(S)}, {v(S+1)}")
        A(f"v_lshlrev_b32 {v(S)}, 16, {v(S+2)}")
        A(f"v_and_b32 {v(S+1)}, 0xffff0000, {v(S+2)}")
    rb2()
    for i in range(2): A(f"v_add_f32 {v(S+i)}, {fl(1e-5)}, {v(S+i)}")
    rb2()
    for i in range(2): A(f"v_sqrt_f32 {v(S+i)}, {v(S+i)}")
    A("s_nop 0")
    rb2()
    A(f"v_rcp_f32 {v(S+5)}, {v(S)}")
    A(f"v_rcp_f32 {v(S+7)}, {v(S+1)}")
    A(f"v_mov_b32 {v(S+4)}, {v(M)}")
    A(f"v_mov_b32 {v(S+6)}, {v(M+1)}")
    for r in range(8): A(f"v_readlane_b32 {s(sM+r)}, {v(S+5+2*(r&1))}, {16*(r>>1)}")
    A(f"s_mul_i32 {s(sT)}, {s(sB)}, {UBLK}")
    A(f"s_add_u32 {s(sT)}, {s(sT)}, {WS_U}")
    A(f"s_add_u32 {s(sT+1)}, {s(sT)}, 4096")
    A(f"s_add_u32 {s(sT+2)}, {s(sT)}, 8192")
    for r in range(8):
        sel = "op_sel_hi:[1,0]" if r % 2 == 0 else "op_sel:[0,1] op_sel_hi:[1,1]"
        for q in range(4):
            d = v(D+8*r+2*q, 2)
            A(f"v_pk_mul_f32 {d}, {d}, {s(sM+(r&~1),2)} {sel}")
    for e in range(8):
        for p in range(4): A(f"v_cvt_pk_bf16_f32 {v(X+4*e+p)}, {v(D+16*p+e)}, {v(D+16*p+8+e)}")
        A(f"buffer_store_dwordx4 {v(X+4*e,4)}, {v(vOff)}, {s(sWS,4)}, {s(sT+e//4)} offen offset:{(e%4)*1024} {sc}")
    A(f"v_lshlrev_b32 {v(S)}, 6, {v(vLANE)}")
    for k in range(4): A(f"ds_bpermute_b32 {v(S+4+k)}, {v(S)}, {v(S+4+k)}")
    A("s_waitcnt lgkmcnt(0)")
    A(f"s_mov_b64 exec, 15")
    A(f"buffer_store_dwordx4 {v(S+4,4)}, {v(vOff)}, {s(sWS,4)}, {s(sT+2)} offen {sc}")
    A(f"s_mov_b64 exec, -1")

CROWS = [[0,1,2,3,4,5,6,7, 512,516,520, 1024,1032, 1536,1544],
         [256,256,258,260,260,260,262,264, 768,772,776, 1280,1288, 1792,1800]]
def mrow(h, reg): return 8 * (reg >> 2) + 4 * h + (reg & 3)

PLAIN = [True]
def cmul2(A, ds, ps, zs):
    for d, p, z in zip(ds, ps, zs): assert d != p and d != z
    if PLAIN[0]:
        for d, p, z in zip(ds, ps, zs):
            A(f"v_mul_f32 {v(d)}, {v(p)}, {v(z)}")
            A(f"v_mul_f32 {v(d+1)}, {v(p)}, {v(z+1)}")
        for d, p, z in zip(ds, ps, zs):
            A(f"v_fma_f32 {v(d)}, -{v(p+1)}, {v(z+1)}, {v(d)}")
            A(f"v_fmac_f32 {v(d+1)}, {v(p+1)}, {v(z)}")
    else:
        for d, p, z in zip(ds, ps, zs): A(f"v_pk_mul_f32 {v(d,2)}, {v(p,2)}, {v(z,2)} op_sel:[0,0] op_sel_hi:[0,1]")
        for d, p, z in zip(ds, ps, zs): A(f"v_pk_fma_f32 {v(d,2)}, {v(p,2)}, {v(z,2)}, {v(d,2)} op_sel:[1,1,0] op_sel_hi:[1,0,1] neg_lo:[0,1,0]")

def kgen_loads(A, sD, P=8, vOff=2, sT=32):
    A(f"s_lshl_b32 {s(sT+2)}, {s(sD)}, 8")
    A(f"v_lshl_add_u32 {v(vOff)}, {v(vLANE)}, 2, {s(sT+2)}")
    for i, p in enumerate((P_ARE, P_AIM, P_BRE, P_BIM, P_CRE, P_CIM)):
        A(f"global_load_dword {v(P+i)}, {v(vOff)}, {s(p,2)}")
    A(f"s_lshr_b32 {s(sT+2)}, {s(sD)}, 1")
    A(f"s_lshl_b32 {s(sT+2)}, {s(sT+2)}, 2")
    A(f"s_load_dword {s(sT)}, {s(P_LDT,2)}, {s(sT+2)}")
    A(f"s_load_dword {s(sT+1)}, {s(P_DSK,2)}, {s(sT+2)}")

def kgen_compute(A, sD, sKB, P=8, sT=32, extra_vm=0, post_y=None):
    DT = 14; vW = 15; vR = 16
    U = 18
    Z1, Z8, ZB, W = 30, 34, 38, 42
    T = 46
    YF = 64
    XW = 128
    XW2 = 164
    XF = 184
    ACC = 200
    PK = 216
    A("s_waitcnt lgkmcnt(0)")
    A(f"s_bitcmp1_b32 {s(sD)}, 0")
    A(f"s_cselect_b32 {s(sT+2)}, 0, 16")
    A(f"s_lshl_b32 {s(sT)}, {s(sT)}, {s(sT+2)}")
    A(f"s_lshl_b32 {s(sT+1)}, {s(sT+1)}, {s(sT+2)}")
    A(f"s_and_b32 {s(sT)}, {s(sT)}, 0xffff0000")
    A(f"s_and_b32 {s(sT+1)}, {s(sT+1)}, 0xffff0000")
    hi = struct.unpack("<f", struct.pack("<f", LOG2E))[0]; lo = LOG2E - hi
    A(f"v_mov_b32 {v(T)}, {fl(hi)}")
    A(f"v_mul_f32 {v(T+1)}, {s(sT)}, {v(T)}")
    A(f"v_fma_f32 {v(T+2)}, {s(sT)}, {v(T)}, -{v(T+1)}")
    A(f"v_mov_b32 {v(T+3)}, {fl(lo)}")
    A(f"v_fma_f32 {v(T+2)}, {s(sT)}, {v(T+3)}, {v(T+2)}")
    A(f"v_exp_f32 {v(T+1)}, {v(T+1)}")
    A(f"v_mul_f32 {v(T+2)}, {fl(0.6931471805599453)}, {v(T+2)}")
    A(f"v_fma_f32 {v(T+1)}, {v(T+1)}, {v(T+2)}, {v(T+1)}")
    A(f"v_cvt_pk_bf16_f32 {v(T+1)}, {v(T+1)}, {v(T+1)}")
    A(f"v_and_b32 {v(DT)}, 0xffff0000, {v(T+1)}")
    A(f"v_lshl_add_u32 {v(vW)}, {v(vLANE)}, 3, {s(sKB)}")
    A(f"v_and_b32 {v(T)}, 31, {v(vLANE)}")
    A(f"v_mul_u32_u24 {v(T)}, {KROW}, {v(T)}")
    A(f"v_lshrrev_b32 {v(T+1)}, 5, {v(vLANE)}")
    A(f"v_lshlrev_b32 {v(T+1)}, 4, {v(T+1)}")
    A(f"v_add3_u32 {v(vR)}, {v(T)}, {v(T+1)}, {s(sKB)}")
    A(f"v_mov_b32 {v(PK)}, 0x3f80")
    A(f"v_mov_b32 {v(PK+1)}, 0x3f80")
    A(f"ds_write_b64 {v(vW)}, {v(PK,2)}")
    A(f"s_waitcnt vmcnt({extra_vm})")
    for i in range(6):
        A(f"v_lshlrev_b32 {v(U+2*i)}, 16, {v(P+i)}")
        A(f"v_and_b32 {v(U+2*i+1)}, 0xffff0000, {v(P+i)}")
    for u in range(2):
        A(f"v_mul_f32 {v(U+u)}, {v(DT)}, {v(U+u)}")
        A(f"v_mul_f32 {v(U+2+u)}, {v(DT)}, {v(U+2+u)}")
    for u in range(2):
        A(f"v_mul_f32 {v(U+u)}, {fl(LOG2E)}, {v(U+u)}")
        A(f"v_mul_f32 {v(U+2+u)}, {fl(0.15915494309189535)}, {v(U+2+u)}")
    def anchor(Z, e):
        for u in range(2):
            t = T + 4 * u
            A(f"v_mul_f32 {v(t)}, {fl(e)}, {v(U+u)}")
            A(f"v_mul_f32 {v(t+1)}, {fl(e)}, {v(U+2+u)}")
            A(f"v_exp_f32 {v(t)}, {v(t)}")
            A(f"v_rndne_f32 {v(t+2)}, {v(t+1)}")
            A(f"v_sub_f32 {v(t+1)}, {v(t+1)}, {v(t+2)}")
            A(f"v_cos_f32 {v(t+2)}, {v(t+1)}")
            A(f"v_sin_f32 {v(t+3)}, {v(t+1)}")
        A("s_nop 0")
        for u in range(2):
            t = T + 4 * u
            A(f"v_mul_f32 {v(Z+2*u)}, {v(t+2)}, {v(t)}")
            A(f"v_mul_f32 {v(Z+2*u+1)}, {v(t+3)}, {v(t)}")
    anchor(Z8, 8.0)
    pk = [0]
    def emit_row(rows, src, neg):
        b = PK + 2 * (pk[0] % 4); pk[0] += 1
        for u in range(2):
            A(f"v_cvt_pk_bf16_f32 {v(b+u)}, {v(src+2*u)}, {'-' if neg else ''}{v(src+2*u+1)}")
        for r in rows: A(f"ds_write_b64 {v(vW)}, {v(b,2)} offset:{r*KROW}")
    pk[0] = 1
    emit_row([1], Z8, False)
    cur = Z8
    Ya, Yb = T + 8, T + 12
    for j in range(2, 32):
        nxt = Ya if j % 2 == 0 else Yb
        cmul2(A, [nxt, nxt+2], [cur, cur+2], [Z8, Z8+2])
        emit_row([j], nxt, False)
        cur = nxt
    for k in range(16): A(f"ds_read_b128 {v(YF+4*k,4)}, {v(vR)} offset:{32*k}")
    if post_y: post_y()
    anchor(Z1, 1.0)
    anchor(ZB, 256.0)
    for u in range(2):
        A(f"v_mul_f32 {v(T+2*u)}, {v(DT)}, {v(U+4+u)}")
        A(f"v_mul_f32 {v(T+2*u+1)}, {v(DT)}, {v(U+6+u)}")
        A(f"v_mov_b32 {v(T+4+2*u)}, {v(U+8+u)}")
        A(f"v_mov_b32 {v(T+5+2*u)}, {v(U+10+u)}")
    x = lambda i: XW + 4 * i
    cmul2(A, [x(0), x(0)+2], [T+4, T+6], [T, T+2])
    where = {}
    for h in range(2):
        for reg, c in enumerate(CROWS[h]): where.setdefault(c, []).append(mrow(h, reg))
    emit_row(where[0], x(0), True)
    for i in range(1, 8):
        cmul2(A, [x(i), x(i)+2], [x(i-1), x(i-1)+2], [Z1, Z1+2])
        emit_row(where[i], x(i), True)
    cmul2(A, [x(8), x(8)+2], [x(0), x(0)+2], [Z8, Z8+2])
    loc = {i: x(i) for i in (0, 2, 4, 6, 8)}
    alt = {0: XW2, 2: XW2+4, 4: XW2+8, 6: XW2+12, 8: XW2+16}
    for q in range(1, 8):
        offs = (0,2,4,6,8) if q == 1 else (0,4,8) if q < 4 else (0,8)
        for o in offs:
            cmul2(A, [alt[o], alt[o]+2], [loc[o], loc[o]+2], [ZB, ZB+2])
            loc[o], alt[o] = alt[o], loc[o]
            emit_row(where[256*q+o], loc[o], True)
    for k in range(4): A(f"ds_read_b128 {v(XF+4*k,4)}, {v(vR)} offset:{32*k}")
    for k in range(16):
        A(f"s_waitcnt lgkmcnt({min(3, 15-k)})")
        c = "0" if k == 0 else v(ACC, 16)
        A(f"v_mfma_f32_32x32x16_bf16 {v(ACC,16)}, {v(XF+4*(k%4),4)}, {v(YF+4*k,4)}, {c}")
        if k + 4 < 16: A(f"ds_read_b128 {v(XF+4*(k%4),4)}, {v(vR)} offset:{32*(k+4)}")
    A(f"v_and_b32 {v(T)}, 31, {v(vLANE)}")
    A(f"v_lshlrev_b32 {v(T)}, 4, {v(T)}")
    A(f"v_lshrrev_b32 {v(T+1)}, 5, {v(vLANE)}")
    A(f"v_lshlrev_b32 {v(T+1)}, 9, {v(T+1)}")
    A(f"v_add_u32 {v(T)}, {v(T)}, {v(T+1)}")
    A(f"v_sub_u32 {v(T)}, {4080-3072}, {v(T)}")
    A(f"v_add_u32 {v(T)}, {s(sKB)}, {v(T)}")
    A(f"v_and_b32 {v(T+1)}, 1, {v(vLANE)}")
    A(f"v_cmp_eq_u32 vcc, 1, {v(T+1)}")
    A(f"v_mov_b32 {v(T+2)}, 0")
    A(f"v_writelane_b32 {v(T+2)}, {s(sT+1)}, 0")
    for i in range(4): A(f"v_mov_b32 {v(T+12+i)}, 0")
    A(f"v_add_f32 {v(ACC)}, {v(ACC)}, {v(T+2)}")
    C = YF
    for p in range(4): A(f"v_cvt_pk_bf16_f32 {v(C+p)}, {v(ACC+7-2*p)}, {v(ACC+6-2*p)}")
    A(f"ds_write_b128 {v(T)}, {v(C,4)} offset:3072")
    for p, (a_, b_) in enumerate(((10,10),(9,9),(9,8),(8,8))): A(f"v_cvt_pk_bf16_f32 {v(C+4+p)}, {v(ACC+a_)}, {v(ACC+b_)}")
    A(f"ds_write_b128 {v(T)}, {v(C+4,4)} offset:2048")
    for qq, lo_ in ((2, 11), (3, 13)):
        c = C + 4 * qq
        A(f"v_cndmask_b32 {v(T+3)}, {v(ACC+lo_)}, {v(ACC+lo_+1)}, vcc")
        A(f"v_cvt_pk_bf16_f32 {v(c)}, {v(ACC+lo_+1)}, {v(ACC+lo_+1)}")
        A(f"v_cvt_pk_bf16_f32 {v(c+1)}, {v(ACC+lo_+1)}, {v(T+3)}")
        A(f"v_cvt_pk_bf16_f32 {v(c+2)}, {v(ACC+lo_)}, {v(ACC+lo_)}")
        A(f"v_cvt_pk_bf16_f32 {v(c+3)}, {v(ACC+lo_)}, {v(ACC+lo_)}")
        A(f"ds_write_b128 {v(T)}, {v(c,4)} offset:{1024*(3-qq)}")
    A(f"v_lshrrev_b32 {v(T+4)}, 2, {v(vLANE)}")
    A(f"v_mul_u32_u24 {v(T+4)}, {KCS}, {v(T+4)}")
    A(f"v_and_b32 {v(T+5)}, 3, {v(vLANE)}")
    A(f"v_lshlrev_b32 {v(T+5)}, 4, {v(T+5)}")
    A(f"v_add3_u32 {v(T+4)}, {v(T+4)}, {v(T+5)}, {s(sKB)}")
    A(f"s_mov_b64 exec, 0xffff")
    A(f"ds_write_b128 {v(T+4)}, {v(T+12,4)} offset:4096")
    A(f"s_mov_b64 exec, -1")
    A(f"v_lshl_add_u32 {v(T)}, {v(vLANE)}, 4, {s(sKB)}")
    Rr = YF + 16
    for it in range(4):
        A(f"ds_read_b128 {v(Rr+8*it,4)}, {v(T)} offset:{1024*it}")
        A(f"ds_read_b64 {v(Rr+8*it+4,2)}, {v(T)} offset:{1024*it+16}")
    for it in range(4):
        R = Rr + 8 * it; O = XW + 12 * it
        A(f"s_waitcnt lgkmcnt({min(15, 6 - 2*it + 3*it)})")
        for k in range(4): A(f"v_alignbit_b32 {v(O+k)}, {v(R+k+1)}, {v(R+k)}, 16")
        A(f"ds_write_b128 {v(T)}, {v(O,4)} offset:{KCS+1024*it}")
        for k in range(4): A(f"v_mov_b32 {v(O+4+k)}, {v(R+k+1)}")
        A(f"ds_write_b128 {v(T)}, {v(O+4,4)} offset:{2*KCS+1024*it}")
        for k in range(4): A(f"v_alignbit_b32 {v(O+8+k)}, {v(R+k+2)}, {v(R+k+1)}, 16")
        A(f"ds_write_b128 {v(T)}, {v(O+8,4)} offset:{3*KCS+1024*it}")

def u_zero(A, sUB, T=46):
    for i in range(4): A(f"v_mov_b32 {v(T+i)}, 0")
    A(f"v_lshl_add_u32 {v(T+4)}, {v(vLANE)}, 4, {s(sUB)}")
    A(f"s_mov_b64 exec, 0xffffffff")
    A(f"ds_write_b128 {v(T+4)}, {v(T,4)}")
    A(f"s_mov_b64 exec, -1")

def u_gather(A, sD, sUB, sc, vT=46, sT=32):
    A(f"v_mul_u32_u24 {v(vT)}, {UBLK}, {v(vLANE)}")
    A(f"s_and_b32 {s(sT)}, {s(sD)}, 7")
    A(f"s_lshl_b32 {s(sT)}, {s(sT)}, 10")
    A(f"s_lshr_b32 {s(sT+1)}, {s(sD)}, 3")
    A(f"s_lshl_b32 {s(sT+1)}, {s(sT+1)}, 4")
    A(f"s_add_u32 {s(sT)}, {s(sT)}, {s(sT+1)}")
    A(f"s_add_u32 {s(sT)}, {s(sT)}, {WS_U}")
    for i in range(4):
        A(f"s_add_u32 m0, {s(sUB)}, {512+1024*i}")
        if i: A(f"s_add_u32 {s(sT)}, {s(sT)}, {64*UBLK}")
        else: A("s_nop 0")
        A(f"buffer_load_dwordx4 {v(vT)}, {s(sWS,4)}, {s(sT)} offen {sc} lds")

CV_ACC = 32; CV_F = 64
def conv_main(A, sKB, sUB, sNH, filler=None, vA=8, vB=9, T=10, il=False):
    A(f"v_and_b32 {v(T)}, 3, {v(vLANE)}")
    A(f"v_sub_u32 {v(T)}, 3, {v(T)}")
    A(f"v_mul_u32_u24 {v(T)}, {KCS}, {v(T)}")
    A(f"v_bfe_u32 {v(T+1)}, {v(vLANE)}, 2, 2")
    A(f"v_lshlrev_b32 {v(T+1)}, 3, {v(T+1)}")
    A(f"v_sub_u32 {v(T)}, {v(T)}, {v(T+1)}")
    A(f"v_and_b32 {v(T+2)}, 48, {v(vLANE)}")
    A(f"s_lshl_b32 s32, {s(sNH)}, 8")
    A(f"s_sub_u32 s33, {s(sKB)}, s32")
    A(f"s_add_u32 s33, s33, {24+256}")
    A(f"v_add3_u32 {v(vA)}, {v(T)}, {v(T+2)}, s33")
    A(f"v_and_b32 {v(T)}, 15, {v(vLANE)}")
    A(f"v_lshlrev_b32 {v(T)}, 5, {v(T)}")
    m_ = 2 if il else 1
    if il:
        A(f"v_add_u32 {v(T)}, {v(T)}, {v(T+2)}")
        A("s_lshl_b32 s32, s32, 1")
    A(f"s_sub_u32 s33, {s(sUB)}, s32")
    A(f"s_add_u32 s33, s33, {m_*(480-192)}")
    if il: A(f"v_lshl_add_u32 {v(vB)}, {v(T)}, 1, s33")
    else: A(f"v_add3_u32 {v(vB)}, {v(T)}, {v(T+2)}, s33")
    def reads(i):
        F = CV_F + 64 * (i & 1); L = []
        order = [("B", 0), ("A", 0)]
        for k in range(1, 8): order += [("B", k), ("A", k)]
        for kind, k in order:
            if kind == "A":
                o = 64 * (59 - i - 8 * k)
                L.append(f"ds_read_b64 {v(F+4*k,2)}, {v(vA)} offset:{o}")
                L.append(f"ds_read_b64 {v(F+4*k+2,2)}, {v(vA)} offset:{o+8}")
            else:
                L.append(f"ds_read_b128 {v(F+32+4*k,4)}, {v(vB)} offset:{m_*(512*k+64*(3-i))}")
        return L
    for l in reads(0): A(l)
    first = set()
    nm = 0
    for i in range(4):
        F = CV_F + 64 * (i & 1)
        nxt = reads(i + 1) if i < 3 else []
        pairs = sorted([(a, b) for a in range(8) for b in range(8) if a + b <= 7], key=lambda p: (max(p), p[0] + p[1]))
        if i > 0: A("s_waitcnt lgkmcnt(0)")
        lastmax = -1
        for n, (a, b) in enumerate(pairs):
            if i == 0 and max(a, b) > lastmax and lastmax < 4:
                lastmax = max(a, b)
                A(f"s_waitcnt lgkmcnt({0 if lastmax == 4 else min(15, 3*(7-lastmax))})")
            c = a + b
            acc = v(CV_ACC + 4 * c, 4)
            src = acc if c in first else "0"
            first.add(c)
            A(f"v_mfma_f32_16x16x32_bf16 {acc}, {v(F+4*a,4)}, {v(F+32+4*b,4)}, {src}")
            nm += 1
            if nxt and (i > 0 or lastmax == 4):
                A(nxt.pop(0))
                if i == 0 and nxt: A(nxt.pop(0))
            if filler: filler(nm)
        assert not nxt

def conv_finish(A, sD, sNH, sXB, sync, sc, T=10, sT=32, clean=False):
    A(f"v_lshl_add_u32 {v(T)}, {v(vLANE)}, 4, {s(sXB)}")
    A(f"s_lshl_b32 {s(sT)}, {s(sNH)}, 12")
    A(f"v_add_u32 {v(T+1)}, {s(sT)}, {v(T)}")
    A(f"s_xor_b32 {s(sT)}, {s(sT)}, 4096")
    A(f"v_add_u32 {v(T)}, {s(sT)}, {v(T)}")
    l1 = A.new("L_cf"); l2 = A.new("L_cf")
    A(f"s_cmp_eq_u32 {s(sNH)}, 0")
    A("s_nop 4")
    A(f"s_cbranch_scc1 {l1}")
    for k in range(4): A(f"ds_write_b128 {v(T+1)}, {v(CV_ACC+4*k,4)} offset:{1024*k}")
    A("s_nop 1")
    for k in range(16): A(f"v_mov_b32 {v(CV_F+16+k)}, {v(CV_ACC+16+k)}")
    A(f"s_branch {l2}")
    A.label(l1)
    for k in range(4): A(f"ds_write_b128 {v(T+1)}, {v(CV_ACC+16+4*k,4)} offset:{1024*k}")
    for k in range(16): A(f"v_mov_b32 {v(CV_F+16+k)}, {v(CV_ACC+k)}")
    A.label(l2)
    A("s_waitcnt lgkmcnt(0)")
    sync()
    for k in range(4): A(f"ds_read_b128 {v(CV_F+4*k,4)}, {v(T)} offset:{1024*k}")
    A(f"v_and_b32 {v(T+2)}, 15, {v(vLANE)}")
    A(f"v_lshlrev_b32 {v(T+2)}, 5, {v(T+2)}")
    A(f"v_bfe_u32 {v(T+3)}, {v(vLANE)}, 4, 1")
    A(f"v_lshlrev_b32 {v(T+3)}, 9, {v(T+3)}")
    A(f"v_lshrrev_b32 {v(T+4)}, 5, {v(vLANE)}")
    A(f"v_lshlrev_b32 {v(T+4)}, 4, {v(T+4)}")
    A(f"v_add3_u32 {v(T+2)}, {v(T+2)}, {v(T+3)}, {v(T+4)}")
    A(f"s_lshl_b32 {s(sT)}, {s(sD)}, 12")
    A(f"s_lshl_b32 {s(sT+1)}, {s(sNH)}, 11")
    A(f"s_add_u32 {s(sT)}, {s(sT)}, {s(sT+1)}")
    A(f"s_add_u32 {s(sT)}, {s(sT)}, {WS_S}")
    A("s_waitcnt lgkmcnt(0)")
    for k in range(16): A(f"v_add_f32 {v(CV_F+k)}, {v(CV_F+k)}, {v(CV_F+16+k)}")
    O = CV_F + 32
    for k in range(8): A(f"v_cvt_pk_bf16_f32 {v(O+k)}, {v(CV_F+2*k)}, {v(CV_F+2*k+1)}")
    if clean:
        for k in range(8): A(f"v_min_u32 {v(O+k)}, -2, {v(O+k)}")
    A("s_nop 1")
    for pr in range(2):
        A(f"v_permlane16_swap_b32 {v(O+4*pr)}, {v(O+4*pr+2)}")
        A(f"v_permlane16_swap_b32 {v(O+4*pr+1)}, {v(O+4*pr+3)}")
    for pr in range(2):
        A(f"buffer_store_dwordx4 {v(O+4*pr,4)}, {v(T+2)}, {s(sWS,4)}, {s(sT)} offen offset:{1024*pr} {sc}")

C_FULL = L_CTL
C_FREE = L_CTL + 16
L_JUNK = L_CTL + 256
def sig_addr(A, vD, sAddr):
    A(f"v_lshlrev_b32 {v(vD)}, 2, {v(vLANE)}")
    A(f"v_add_u32 {v(vD)}, {L_JUNK}, {v(vD)}")
    A(f"v_writelane_b32 {v(vD)}, {sAddr}, 0")
def poll_addr(A, vD, base, n):
    A(f"v_and_b32 {v(vD)}, {n-1}, {v(vLANE)}")
    A(f"v_lshlrev_b32 {v(vD)}, 2, {v(vD)}")
    A(f"v_add_u32 {v(vD)}, {base}, {v(vD)}")
def lds_spin(A, vAddr, vT, n):
    lp = A.new("L_sp")
    A.label(lp)
    A(f"ds_read_b32 {v(vT)}, {v(vAddr)}")
    A("s_waitcnt lgkmcnt(0)")
    A(f"v_cmp_gt_u32 vcc, {n}, {v(vT)}")
    A(f"s_cbranch_vccnz {lp}")
def ctl_init(A, T=4):
    A(f"v_lshlrev_b32 {v(T)}, 2, {v(vLANE)}")
    A(f"v_add_u32 {v(T)}, {L_CTL}, {v(T)}")
    A(f"v_mov_b32 {v(T+1)}, 0")
    A(f"ds_write_b32 {v(T)}, {v(T+1)}")
NSTAGE = 16
L_CSX = L_ST

def lds_signal(A, vAddr, vTmp, val, off):
    A(f"v_mov_b32 {v(vTmp)}, {val}")
    A(f"ds_write_b32 {v(vAddr)}, {v(vTmp)} offset:{off}")

def g1_loader(A, which, sRT, sFC, sROT, D=13, Vw=8, Vx=12, vZ=16, T=18, sT=40, pre=None, post=None):
    srdW = sWG if which == 0 else sWU
    A(f"s_mov_b32 {s(sT)}, 2752")
    A(f"s_mov_b32 {s(sT+1)}, 0x15555556")
    for j in range(3):
        A(f"v_add_u32 {v(T)}, {64*j}, {v(vLANE)}")
        A(f"v_mul_hi_u32 {v(T+1)}, {v(T)}, {s(sT+1)}")
        A(f"v_mul_u32_u24 {v(T+2)}, 12, {v(T+1)}")
        A(f"v_sub_u32 {v(T+2)}, {v(T)}, {v(T+2)}")
        A(f"v_mul_u32_u24 {v(T+1)}, {s(sT)}, {v(T+1)}")
        A(f"v_lshl_add_u32 {v(Vw+j)}, {v(T+2)}, 4, {v(T+1)}")
        if j: A(f"v_subrev_u32 {v(Vw+j)}, {1024*j}, {v(Vw+j)}")
    A(f"v_lshrrev_b32 {v(T)}, 3, {v(vLANE)}")
    A(f"v_lshlrev_b32 {v(T)}, 10, {v(T)}")
    A(f"v_lshrrev_b32 {v(T+1)}, 4, {v(vLANE)}")
    A(f"v_and_b32 {v(T+2)}, 7, {v(vLANE)}")
    A(f"v_xor_b32 {v(T+1)}, {v(T+1)}, {v(T+2)}")
    A(f"v_lshl_add_u32 {v(Vx)}, {v(T+1)}, 4, {v(T)}")
    A(f"v_xor_b32 {v(Vx+1)}, 64, {v(Vx)}")
    A(f"v_add_u32 {v(Vx+2)}, {2*7168}, {v(Vx)}")
    A(f"v_add_u32 {v(Vx+3)}, {3*7168}, {v(Vx+1)}")
    A(f"v_add_u32 {v(Vx+1)}, {7168}, {v(Vx+1)}")
    A(f"s_mov_b32 {s(sT)}, {C_FULL + 4*which}")
    sig_addr(A, vZ, s(sT))
    poll_addr(A, vZ+1, C_FREE, 4)
    sXB, sWB, sC, sXo, sWo = sT+2, sT+3, sT+4, sT+5, sT+6
    A(f"s_lshl_b32 {s(sXB)}, {s(sRT)}, 17")
    if which: A(f"s_add_u32 {s(sXB)}, {s(sXB)}, 65536")
    A(f"s_mul_i32 {s(sWB)}, {s(sFC)}, 192")
    A(f"s_mov_b32 {s(sC)}, {s(sROT)}")
    npre = (pre() or 0) if pre else 0
    ops = []
    for st in range(NSTAGE):
        if st % 2 == 0:
            for i in range(8): ops.append((st, "x", i))
        for i in range(6): ops.append((st, "w", i))
    last_of = {}
    for n, (st, k, i) in enumerate(ops): last_of[st] = n
    signaled = 0
    for n, (st, k, i) in enumerate(ops):
        firstop = n == 0 or ops[n-1][0] != st
        if firstop and st % 2 == 0:
            A(f"s_lshl_b32 {s(sXo)}, {s(sC)}, 7")
            A(f"s_add_u32 {s(sXo)}, {s(sXo)}, {s(sXB)}")
            A(f"s_mul_i32 {s(sWo)}, {s(sC)}, {64*2752}")
            A(f"s_add_u32 {s(sWo)}, {s(sWo)}, {s(sWB)}")
            A(f"s_add_u32 {s(sC)}, {s(sC)}, 1")
            A(f"s_and_b32 {s(sC)}, {s(sC)}, 7")
        if firstop and st >= NWS:
            lds_spin(A, vZ+1, T, st-NWS+1)
        if n >= D:
            A(f"s_waitcnt vmcnt({D-1})")
            done = n - D
            if done == last_of[signaled]:
                signaled += 1
                lds_signal(A, vZ, T, signaled, 0)
        if k == "x":
            if i % 4 == 0:
                A(f"s_mov_b32 m0, {L_X + ((st//2) % NXS) * XSLOT + (8*which + i) * 1024}")
                if i: A(f"s_add_u32 {s(sXo)}, {s(sXo)}, 32768")
                else: A("s_nop 0")
            A(f"buffer_load_dwordx4 {v(Vx + i%4)}, {s(sX,4)}, {s(sXo)} offen offset:{1024*(i%4)} lds")
        else:
            if i % 3 == 0:
                A(f"s_mov_b32 m0, {L_W + (st % NWS) * WSLOT + which * UPOFF + (i//3) * 3072}")
                if i or st % 2: A(f"s_add_u32 {s(sWo)}, {s(sWo)}, {16*2752}")
                else: A("s_nop 0")
            A(f"buffer_load_dwordx4 {v(Vw + i%3)}, {s(srdW,4)}, {s(sWo)} offen offset:{1024*(i%3)} lds")
    npost = (post() or 0) if post else 0
    while signaled < NSTAGE:
        A(f"s_waitcnt vmcnt({len(ops) - 1 - last_of[signaled] + npost})")
        signaled += 1
        lds_signal(A, vZ, T, signaled, 0)

G_ACC = 64
G_CS = 160
G_SEL = 172
G_F = 176
def g1_setup(A, sMH, sNH, vW=8, vXs=9, vC=13, T=16):
    A(f"v_bfe_u32 {v(T)}, {v(vLANE)}, 4, 1")
    A(f"v_mul_u32_u24 {v(T)}, {UPOFF}, {v(T)}")
    A(f"v_lshrrev_b32 {v(T+1)}, 5, {v(vLANE)}")
    A(f"v_bfe_u32 {v(T+2)}, {v(vLANE)}, 2, 2")
    A(f"v_lshl_add_u32 {v(T+2)}, {v(T+1)}, 3, {v(T+2)}")
    A(f"v_mul_u32_u24 {v(T+2)}, 192, {v(T+2)}")
    A(f"v_and_b32 {v(T+3)}, 3, {v(vLANE)}")
    A(f"v_lshl_add_u32 {v(T+2)}, {v(T+3)}, 3, {v(T+2)}")
    A(f"s_mul_i32 s32, {s(sMH)}, 96")
    A(f"v_add3_u32 {v(vW)}, {v(T)}, {v(T+2)}, s32")
    A(f"v_and_b32 {v(T)}, 31, {v(vLANE)}")
    A(f"v_bfe_u32 {v(T+2)}, {v(vLANE)}, 1, 3")
    A(f"v_xor_b32 {v(T+2)}, {v(T+2)}, {v(T+1)}")
    A(f"v_lshlrev_b32 {v(T+2)}, 4, {v(T+2)}")
    A(f"v_lshl_add_u32 {v(T)}, {v(T)}, 7, {v(T+2)}")
    A(f"s_lshl_b32 s32, {s(sNH)}, 13")
    A(f"s_add_u32 s32, s32, {L_X}")
    for k in range(4):
        A(f"v_xor_b32 {v(T+3)}, {32*k}, {v(T)}")
        A(f"v_add_u32 {v(vXs+k)}, s32, {v(T+3)}")
    poll_addr(A, vC, C_FULL, 2)
    A(f"s_lshl_b32 s32, {s(sWAVE)}, 2")
    A(f"s_add_u32 s32, s32, {C_FREE}")
    sig_addr(A, vC+1, "s32")
    A(f"v_lshrrev_b32 {v(T)}, 2, {v(vLANE)}")
    A(f"v_lshrrev_b32 {v(T+1)}, 4, {v(vLANE)}")
    A(f"v_xor_b32 {v(T)}, {v(T)}, {v(T+1)}")
    A(f"v_and_b32 {v(T)}, 1, {v(T)}")
    A(f"v_cmp_eq_u32 vcc, 0, {v(T)}")
    A(f"v_mov_b32 {v(T+1)}, 0x3f803f80")
    A("s_nop 0")
    for k in range(4): A(f"v_cndmask_b32 {v(G_SEL+k)}, 0, {v(T+1)}, vcc")

def g1_main(A, sNH, vW=8, vXs=9, vC=13, T=16):
    def reads(ks):
        st, i = ks // 2, ks % 2
        F = G_F + 20 * (ks & 1); L = []
        wo = L_W + (st % NWS) * WSLOT + i * 3072
        xo = ((ks // 4) % NXS) * XSLOT
        L.append(f"ds_read_b128 {v(F+12,4)}, {v(vXs + ks%4)} offset:{xo}")
        for mt in range(3):
            for h in range(2): L.append(f"ds_read_b64_tr_b16 {v(F+4*mt+2*h,2)}, {v(vW)} offset:{wo + h*768 + mt*32}")
            if mt == 0: L.append(f"ds_read_b128 {v(F+16,4)}, {v(vXs + ks%4)} offset:{xo+4096}")
        return L
    def wait_full(n, pre_read):
        ok = A.new("L_gk")
        if pre_read:
            A(f"v_cmp_gt_u32 vcc, {n}, {v(T)}")
            A(f"s_cbranch_vccz {ok}")
        lds_spin(A, vC, T, n)
        A.label(ok)
    for k in range(12): A(f"v_mov_b32 {v(G_CS+k)}, 0")
    wait_full(1, False)
    for l in reads(0): A(l)
    for ks in range(32):
        F = G_F + 20 * (ks & 1)
        A("s_waitcnt lgkmcnt(0)")
        if ks % 2 == 1:
            lds_signal(A, vC+1, T+2, ks // 2 + 1, 0)
            if ks < 31: wait_full(ks // 2 + 2, True)
        nxt = reads(ks + 1) if ks < 31 else []
        if ks % 2 == 0 and ks < 30: nxt.append(f"ds_read_b32 {v(T)}, {v(vC)}")
        for mt in range(3):
            for nt in range(2):
                acc = v(G_ACC + 16*(2*mt+nt), 16)
                A(f"v_mfma_f32_32x32x16_bf16 {acc}, {v(F+4*mt,4)}, {v(F+12+4*nt,4)}, {'0' if ks == 0 else acc}")
                for _ in range(2):
                    if nxt: A(nxt.pop(0))
        assert not nxt
        if ks == 30:
            A(f"s_mul_i32 s32, {s(sWAVE)}, 768")
            A(f"s_add_u32 s32, s32, {L_CSX}")
            A(f"v_lshl_add_u32 {v(T+4)}, {v(vLANE)}, 2, s32")
            for mt in range(3): A(f"ds_write_b32 {v(T+4)}, {v(G_CS+4*mt)} offset:{256*mt}")
        sk = None
        if ks < 30:
            sk = A.new("L_cs")
            A(f"s_cmp_lg_u32 {s(sNH)}, {ks & 1}")
            A(f"s_cbranch_scc1 {sk}")
        for mt in range(3):
            A(f"v_mfma_f32_16x16x32_bf16 {v(G_CS+4*mt,4)}, {v(G_SEL,4)}, {v(F+4*mt,4)}, {v(G_CS+4*mt,4)}")
        if sk: A.label(sk)

def g1_stats_load(A, sRT, sNH, sc, ST=20, T=24):
    A(f"v_bfe_u32 {v(T)}, {v(vLANE)}, 3, 2")
    A(f"v_mul_u32_u24 {v(T)}, {UBLK}, {v(T)}")
    A(f"v_and_b32 {v(T+1)}, 7, {v(vLANE)}")
    A(f"v_lshl_add_u32 {v(T)}, {v(T+1)}, 3, {v(T)}")
    A(f"s_lshl_b32 s32, {s(sRT)}, 1")
    A(f"s_add_u32 s32, s32, {s(sNH)}")
    A(f"s_mul_i32 s32, s32, {8*UBLK}")
    A(f"s_add_u32 s32, s32, {WS_U + 8192}")
    A(f"s_add_u32 s33, s32, {4*UBLK}")
    for nt in range(2): A(f"buffer_load_dwordx2 {v(ST+2*nt,2)}, {v(T)}, {s(sWS,4)}, s{32+nt} offen {sc}")

def g1_epilogue(A, sRT, sFC, sMH, sNH, sc, ST=20, vC=13, T=24):
    A(f"s_xor_b32 s32, {s(sWAVE)}, 2")
    A(f"s_lshl_b32 s33, s32, 2")
    A(f"s_add_u32 s33, s33, {C_FREE}")
    A(f"v_mov_b32 {v(T)}, s33")
    A(f"s_mul_i32 s32, s32, 768")
    A(f"s_add_u32 s32, s32, {L_CSX}")
    A(f"v_lshl_add_u32 {v(T+1)}, {v(vLANE)}, 2, s32")
    lp = A.new("L_pw")
    A.label(lp)
    A(f"ds_read_b32 {v(T+2)}, {v(T)}")
    for mt in range(3): A(f"ds_read_b32 {v(T+4+mt)}, {v(T+1)} offset:{256*mt}")
    A("s_waitcnt lgkmcnt(0)")
    A(f"v_cmp_gt_u32 vcc, 16, {v(T+2)}")
    A(f"s_cbranch_vccnz {lp}")
    BF = G_F; AF = G_F + 8
    A(f"v_cmp_gt_u32 vcc, 32, {v(vLANE)}")
    A("s_nop 0")
    for nt in range(2):
        A(f"v_xor_b32 {v(T+8)}, 0x80000000, {v(ST+2*nt)}")
        A(f"v_cndmask_b32 {v(T+8)}, 0, {v(T+8)}, vcc")
        A(f"v_lshrrev_b32 {v(BF+4*nt+1)}, 16, {v(T+8)}")
        A(f"v_or_b32 {v(BF+4*nt)}, {v(T+8)}, {v(BF+4*nt+1)}")
        A(f"v_mov_b32 {v(BF+4*nt+2)}, 0")
        A(f"v_mov_b32 {v(BF+4*nt+3)}, 0")
        A(f"v_mul_f32 {v(ST+2*nt)}, {fl(-LOG2E)}, {v(ST+2*nt+1)}")
    for mt in range(3):
        c = T + 4 + mt; a = AF + 4 * mt
        A(f"v_add_f32 {v(c)}, {v(c)}, {v(G_CS+4*mt)}")
        A(f"v_and_b32 {v(T+8)}, 0xffff0000, {v(c)}")
        A(f"v_sub_f32 {v(c)}, {v(c)}, {v(T+8)}")
        A(f"v_and_b32 {v(T+9)}, 0xffff0000, {v(c)}")
        A(f"v_sub_f32 {v(c)}, {v(c)}, {v(T+9)}")
        A(f"v_lshrrev_b32 {v(T+8)}, 16, {v(T+8)}")
        A(f"v_or_b32 {v(a)}, {v(T+8)}, {v(T+9)}")
        A(f"v_lshrrev_b32 {v(a+1)}, 16, {v(c)}")
        A(f"v_mov_b32 {v(a+2)}, 0")
        A(f"v_mov_b32 {v(a+3)}, 0")
    A("s_nop 1")
    for mt in range(3):
        for nt in range(2):
            acc = v(G_ACC + 16*(2*mt+nt), 16)
            A(f"v_mfma_f32_32x32x16_bf16 {acc}, {v(AF+4*mt,4)}, {v(BF+4*nt,4)}, {acc}")
    A(f"v_lshlrev_b32 {v(T)}, 4, {v(vLANE)}")
    A(f"s_lshl_b32 s32, {s(sRT)}, 2")
    A(f"s_lshl_b32 s33, {s(sNH)}, 1")
    A(f"s_add_u32 s32, s32, s33")
    A(f"s_mul_i32 s32, s32, 86")
    A(f"s_mul_i32 s33, {s(sFC)}, 6")
    A(f"s_mul_i32 s34, {s(sMH)}, 3")
    A(f"s_add_u32 s33, s33, s34")
    A(f"s_add_u32 s32, s32, s33")
    A(f"s_lshl_b32 s32, s32, 10")
    A(f"s_add_u32 s34, s32, {WS_H}")
    A(f"s_add_u32 s35, s34, {86*1024}")
    A(f"v_mov_b32 {v(T+2)}, 1.0")
    end = A.new("L_e1")
    for mt in range(3):
        A(f"s_cmp_ge_u32 s33, {86-mt}")
        A(f"s_cbranch_scc1 {end}")
        for nt in range(2):
            a = G_ACC + 16*(2*mt+nt); O = T + 4 + 4 * nt
            for k in range(4): A(f"v_pk_mul_f32 {v(a+2*k,2)}, {v(a+2*k,2)}, {v(ST+2*nt,2)} op_sel_hi:[1,0]")
            for k in range(8): A(f"v_exp_f32 {v(a+k)}, {v(a+k)}")
            for k in range(4): A(f"v_pk_add_f32 {v(a+2*k,2)}, {v(a+2*k,2)}, {v(T+2,2)} op_sel_hi:[1,0]")
            for k in range(8): A(f"v_rcp_f32 {v(a+k)}, {v(a+k)}")
            for k in range(4): A(f"v_pk_mul_f32 {v(a+2*k,2)}, {v(a+2*k,2)}, {v(a+8+2*k,2)}")
            for k in range(4): A(f"v_cvt_pk_bf16_f32 {v(a+8+k)}, {v(a+2*k)}, {v(a+2*k+1)}")
            A(f"buffer_store_dwordx4 {v(a+8,4)}, {v(T)}, {s(sWS,4)}, s{34+nt} offen offset:{1024*mt} {sc}")
    A.label(end)

G2_P = 16
G2_NA = 27
G2_ACC = 16
G2_PRE = 48
G2_JIT = 176
G2_H = 192; G2_NH = 14
def g2_slot(kq, i):
    j = i if i < G2_NA else i - G2_NA
    return (kq * G2_NA + j) * 2048
L_PART = L_RINGEND; PROW = 272

def wd_addr(A, vA, T):
    A(f"v_lshrrev_b32 {v(T)}, 3, {v(vLANE)}")
    A(f"v_lshlrev_b32 {v(T)}, 10, {v(T)}")
    A(f"v_lshrrev_b32 {v(T+1)}, 2, {v(vLANE)}")
    A(f"v_and_b32 {v(T+1)}, 4, {v(T+1)}")
    A(f"v_and_b32 {v(T+2)}, 7, {v(vLANE)}")
    A(f"v_xor_b32 {v(T+1)}, {v(T+1)}, {v(T+2)}")
    A(f"v_lshl_add_u32 {v(vA)}, {v(T+1)}, 4, {v(T)}")
    A(f"v_add_u32 {v(vA+1)}, 7168, {v(vA)}")

def wd_dma(A, vA, sSoff, ldsexpr):
    A(ldsexpr)
    A("s_nop 0")
    A(f"buffer_load_dwordx4 {v(vA)}, {s(sWD,4)}, {s(sSoff)} offen lds")
    A(f"buffer_load_dwordx4 {v(vA+1)}, {s(sWD,4)}, {s(sSoff)} offen offset:1024 lds")

def g2_setup(A, sKQ, vR=8, T=10):
    A(f"v_bfe_u32 {v(T)}, {v(vLANE)}, 2, 2")
    A(f"v_lshrrev_b32 {v(T+1)}, 5, {v(vLANE)}")
    A(f"v_lshl_add_u32 {v(T+1)}, {v(T+1)}, 2, {v(T)}")
    A(f"v_lshlrev_b32 {v(T+1)}, 7, {v(T+1)}")
    A(f"v_lshrrev_b32 {v(T)}, 1, {v(T)}")
    A(f"v_lshlrev_b32 {v(T)}, 6, {v(T)}")
    A(f"v_bfe_u32 {v(T+2)}, {v(vLANE)}, 4, 1")
    A(f"v_lshlrev_b32 {v(T+2)}, 5, {v(T+2)}")
    A(f"v_and_b32 {v(T+3)}, 3, {v(vLANE)}")
    A(f"v_lshl_add_u32 {v(T+2)}, {v(T+3)}, 3, {v(T+2)}")
    A(f"v_add3_u32 {v(T)}, {v(T)}, {v(T+1)}, {v(T+2)}")
    A(f"s_mul_i32 s32, {s(sKQ)}, {G2_NA*2048}")
    A(f"v_add_u32 {v(vR)}, s32, {v(T)}")
    A(f"v_xor_b32 {v(vR+1)}, 64, {v(vR)}")

def g2_wd_reads(i, F, vR=8):
    o = g2_slot(0, i); L = []
    for dt in range(2):
        for h in range(2): L.append(f"ds_read_b64_tr_b16 {v(F+4*dt+2*h,2)}, {v(vR+dt)} offset:{o + 1024*h}")
    return L

def g2_pull(A, vR=8):
    for i in range(G2_P):
        for l in g2_wd_reads(i, G2_PRE + 8*i, vR): A(l)
    A("s_waitcnt lgkmcnt(0)")

def g2_main(A, sTT, sTB, sKQ, sc, mid=None, vR=8, vH=10, extra_vm=0, mark=None):
    A(f"v_lshlrev_b32 {v(vH)}, 4, {v(vLANE)}")
    A(f"s_lshl_b32 s32, {s(sTT)}, 1")
    A(f"s_add_u32 s32, s32, {s(sTB)}")
    A(f"s_mul_i32 s32, s32, 86")
    A(f"s_mul_i32 s33, {s(sKQ)}, 43")
    A(f"s_add_u32 s32, s32, s33")
    A(f"s_lshl_b32 s32, s32, 10")
    A(f"s_add_u32 s32, s32, {WS_H}")
    def hload(i):
        if i % 4 == 0 and i: A(f"s_add_u32 s32, s32, 4096")
        A(f"buffer_load_dwordx4 {v(G2_H+4*(i%G2_NH),4)}, {v(vH)}, {s(sWS,4)}, s32 offen offset:{1024*(i%4)} {sc}")
    for i in range(G2_NH): hload(i)
    for i in range(43):
        F = G2_PRE + 8*i if i < G2_P else G2_JIT + 8*(i & 1)
        nxt = []
        if G2_P <= i + 1 < 43:
            if i + 1 == G2_NA and mid: mid()
            nxt = g2_wd_reads(i + 1, G2_JIT + 8*((i+1) & 1), vR)
        issued = min(43, i + G2_NH)
        w = f"s_waitcnt vmcnt({issued - i - 1})"
        if i >= G2_P: w += " lgkmcnt(0)"
        A(w)
        for dt in range(2):
            acc = v(G2_ACC + 16*dt, 16)
            A(f"v_mfma_f32_32x32x16_bf16 {acc}, {v(F+4*dt,4)}, {v(G2_H+4*(i%G2_NH),4)}, {'0' if i == 0 else acc}")
            for _ in range(2):
                if nxt: A(nxt.pop(0))
        if i + G2_NH < 43: hload(i + G2_NH)
        if mark: mark(i)

def g2_partials(A, sTB, sKQ, T=10):
    A(f"v_and_b32 {v(T)}, 31, {v(vLANE)}")
    A(f"v_mul_u32_u24 {v(T)}, {PROW}, {v(T)}")
    A(f"v_lshrrev_b32 {v(T+1)}, 5, {v(vLANE)}")
    A(f"v_lshlrev_b32 {v(T+1)}, 4, {v(T+1)}")
    A(f"s_lshl_b32 s32, {s(sKQ)}, 1")
    A(f"s_add_u32 s32, s32, {s(sTB)}")
    A(f"s_mul_i32 s32, s32, {32*PROW}")
    A(f"s_add_u32 s32, s32, {L_PART}")
    A(f"v_add3_u32 {v(T)}, {v(T)}, {v(T+1)}, s32")
    A("s_nop 4")
    for dt in range(2):
        for q in range(4): A(f"ds_write_b128 {v(T)}, {v(G2_ACC+16*dt+4*q,4)} offset:{128*dt+32*q}")

FN = 224
def fin_loads(A, sTT, sDT, sc, X, T):
    A(f"s_lshr_b32 s32, {s(sWAVE)}, 1")
    A(f"s_lshl_b32 s33, {s(sTT)}, 2")
    A(f"s_add_u32 s32, s32, s33")
    A(f"s_and_b32 s33, {s(sWAVE)}, 1")
    A(f"s_lshl_b32 s34, {s(sDT)}, 1")
    A(f"s_add_u32 s33, s33, s34")
    A(f"s_lshl_b32 s33, s33, 6")
    A(f"s_lshl_b32 s34, s32, 14")
    A(f"s_add_u32 s33, s33, s34")
    A(f"v_and_b32 {v(T)}, 15, {v(vLANE)}")
    A(f"v_lshlrev_b32 {v(T)}, 10, {v(T)}")
    A(f"v_and_b32 {v(T+1)}, 48, {v(vLANE)}")
    A(f"v_add3_u32 {v(X+5)}, {v(T)}, {v(T+1)}, s33")
    A(f"buffer_load_dwordx4 {v(X,4)}, {v(X+5)}, {s(sX,4)}, 0 offen")
    A(f"v_bfe_u32 {v(T)}, {v(vLANE)}, 3, 1")
    A(f"v_mul_u32_u24 {v(T)}, {UBLK}, {v(T)}")
    A(f"v_and_b32 {v(T+1)}, 7, {v(vLANE)}")
    A(f"v_lshl_add_u32 {v(T)}, {v(T+1)}, 3, {v(T)}")
    A(f"s_mul_i32 s32, s32, {2*UBLK}")
    A(f"s_add_u32 s32, s32, {WS_U + 8192 + 4}")
    A(f"buffer_load_dword {v(X+4)}, {v(T)}, {s(sWS,4)}, s32 offen {sc}")

def s_tile_dma(A, sTT, sDT, sc, part, nparts, T, chan_soff):
    A(f"v_lshrrev_b32 {v(T)}, 3, {v(vLANE)}")
    A(f"v_lshlrev_b32 {v(T)}, 12, {v(T)}")
    A(f"v_and_b32 {v(T+1)}, 7, {v(vLANE)}")
    A(f"v_lshl_add_u32 {v(T)}, {v(T+1)}, 4, {v(T)}")
    A(f"s_lshl_b32 s32, {s(sDT)}, 18")
    A(f"s_lshl_b32 s33, {s(sTT)}, 7")
    A(f"s_add_u32 s32, s32, s33")
    A(f"s_add_u32 s32, s32, {WS_S}")
    per = 8 // nparts
    A(f"s_mul_i32 s33, {s(part)}, {per*32768}")
    A(f"s_add_u32 s32, s32, s33")
    A(f"s_mul_i32 s33, {s(part)}, {per*1024}")
    for i in range(per):
        A(f"s_add_u32 m0, s33, {L_ST + 1024*i}")
        if i: A(f"s_add_u32 s32, s32, 32768")
        else: A("s_nop 0")
        A(f"buffer_load_dwordx4 {v(T)}, {s(sWS,4)}, s32 offen {sc} lds")

def final(A, X, sc_out, T=16, perm=False):
    P0 = T + 8; P1 = T + 16; SS = T + 24; E = T + 32
    A(f"s_lshr_b32 s32, {s(sWAVE)}, 1")
    A(f"s_and_b32 s33, {s(sWAVE)}, 1")
    A(f"v_and_b32 {v(T)}, 15, {v(vLANE)}")
    A(f"v_mul_u32_u24 {v(T)}, {PROW}, {v(T)}")
    A(f"v_and_b32 {v(T+1)}, 48, {v(vLANE)}")
    A(f"v_lshlrev_b32 {v(T+1)}, 1, {v(T+1)}")
    A(f"s_mul_i32 s34, s32, {16*PROW}")
    A(f"s_lshl_b32 s35, s33, 7")
    A(f"s_add_u32 s34, s34, s35")
    A(f"s_add_u32 s34, s34, {L_PART}")
    A(f"v_add3_u32 {v(T)}, {v(T)}, {v(T+1)}, s34")
    A(f"v_lshlrev_b32 {v(T+1)}, 5, {v(T+1)}")
    A(f"v_bfe_u32 {v(T+2)}, {v(vLANE)}, 2, 2")
    A(f"v_lshl_add_u32 {v(T+1)}, {v(T+2)}, 7, {v(T+1)}")
    if perm:
        A(f"v_and_b32 {v(T+2)}, 1, {v(vLANE)}"); A(f"v_lshl_add_u32 {v(T+1)}, {v(T+2)}, 3, {v(T+1)}")
        A(f"v_bfe_u32 {v(T+2)}, {v(vLANE)}, 1, 1"); A(f"v_lshl_add_u32 {v(T+1)}, {v(T+2)}, 6, {v(T+1)}")
    else:
        A(f"v_and_b32 {v(T+2)}, 3, {v(vLANE)}")
        A(f"v_lshl_add_u32 {v(T+1)}, {v(T+2)}, 3, {v(T+1)}")
    A(f"s_lshl_b32 s34, s33, 12")
    A(f"s_lshl_b32 s35, s32, {4 if perm else 5}")
    A(f"s_add_u32 s34, s34, s35")
    A(f"s_add_u32 s34, s34, {L_ST}")
    A(f"v_add_u32 {v(T+1)}, s34, {v(T+1)}")
    return_point = len(A.lines)
    def body():
        for k in range(2): A(f"ds_read_b128 {v(P0+4*k,4)}, {v(T)} offset:{16*k}")
        for k in range(2): A(f"ds_read_b128 {v(P1+4*k,4)}, {v(T)} offset:{64*PROW+16*k}")
        for k in range(2): A(f"ds_read_b64_tr_b16 {v(SS+2*k,2)}, {v(T+1)} offset:{512*k}")
        A(f"v_mul_f32 {v(T+2)}, {fl(-LOG2E)}, {v(X+4)}")
        A(f"v_mov_b32 {v(T+4)}, 1.0")
        A("s_waitcnt lgkmcnt(2)")
        for k in range(4): A(f"v_pk_add_f32 {v(P0+2*k,2)}, {v(P0+2*k,2)}, {v(P1+2*k,2)}")
        for k in range(4): A(f"v_pk_mul_f32 {v(E+2*k,2)}, {v(P0+2*k,2)}, {v(T+2,2)} op_sel_hi:[1,0]")
        for k in range(8): A(f"v_exp_f32 {v(E+k)}, {v(E+k)}")
        for k in range(4): A(f"v_pk_mul_f32 {v(P0+2*k,2)}, {v(P0+2*k,2)}, {v(X+4,2)} op_sel_hi:[1,0]")
        for k in range(4): A(f"v_pk_add_f32 {v(E+2*k,2)}, {v(E+2*k,2)}, {v(T+4,2)} op_sel_hi:[1,0]")
        for k in range(8): A(f"v_rcp_f32 {v(E+k)}, {v(E+k)}")
        A("s_waitcnt lgkmcnt(0)")
        for k in range(4):
            A(f"v_lshlrev_b32 {v(P1+2*k)}, 16, {v(SS+k)}")
            A(f"v_and_b32 {v(P1+2*k+1)}, 0xffff0000, {v(SS+k)}")
        for k in range(4): A(f"v_pk_mul_f32 {v(P0+2*k,2)}, {v(P0+2*k,2)}, {v(E+2*k,2)}")
        for k in range(4):
            A(f"v_lshlrev_b32 {v(E+2*k)}, 16, {v(X+k)}")
            A(f"v_and_b32 {v(E+2*k+1)}, 0xffff0000, {v(X+k)}")
        for k in range(4): A(f"v_pk_fma_f32 {v(P0+2*k,2)}, {v(P0+2*k,2)}, {v(P1+2*k,2)}, {v(E+2*k,2)}")
        for k in range(4): A(f"v_cvt_pk_bf16_f32 {v(SS+k)}, {v(P0+2*k)}, {v(P0+2*k+1)}")
        A(f"buffer_store_dwordx4 {v(SS,4)}, {v(X+5)}, {s(sOUT,4)}, 0 offen {sc_out}")
    return body

WS_STAMP = 0x1000000
class Stamp:
    on = False
def stamp(A, k):
    if not Stamp.on: return
    A("s_memtime s[96:97]"); A("s_memrealtime s[98:99]"); A("s_waitcnt lgkmcnt(0)")
    A(f"v_writelane_b32 v255, s96, {k}"); A(f"v_writelane_b32 v255, s98, {32+k}")
def stamp_flush(A, kidx):
    if not Stamp.on: return
    A(f"s_lshl_b32 s96, s2, 3"); A(f"s_add_u32 s96, s96, {s(sWAVE)}"); A(f"s_lshl_b32 s96, s96, 8")
    A(f"s_add_u32 s96, s96, {WS_STAMP + kidx*0x80000}")
    A(f"v_lshlrev_b32 v254, 2, {v(vLANE)}")
    A(f"buffer_store_dword v255, v254, {s(sWS,4)}, s96 offen")
    A("s_waitcnt vmcnt(0)")
```

```python
from roles import *
import kgen4
from kgen4 import kg4_pre, kg4_main, kg4_store, PRM4
import roles, sys
KNAME = "recurrent_scan__ssm_conv_s4__glu_gated_glu__prompt_kernel"
HDR = open("recurrent_scan__ssm_conv_s4__glu_gated_glu__prompt.s.ref").read().split("; Override launch")[0]
OPT = dict(D=14, NPF=22, PWAIT=5, PST=0, ROT=0, SCOUT="", ALIGN=1, WTH=16, LATE=-1, XT=2, PFD=2, WT=0, LNPRIO=1, HPRIO=0, ARR2=1,
           FD=11, PP=19, EE=1, PSL=6, PFR=1, WTS=0, CPRIO=0, NOCV=0, NOST=0, NOMF=0, NH=13, KW=0, KPK=0, YPRIO=0, LNW=0, LNLATE=0, PH=2, FF=1, SPF=12, ROT2=0, XFIRST=0)
for a in sys.argv[2:]:
    if "=" in a:
        k, x = a.split("="); assert k in OPT, k; OPT[k] = x if k == "SCOUT" else int(x)
Stamp.on = "--stamp" in sys.argv
SC = "sc1"
roles.PLAIN[0] = not OPT['KPK']
sV = 4
sXCD, sIDX, sRT, sFC, sROT, sB, sD, sTT, sDT, sA, sB2, sKB, sUB, sRG = range(48, 62)
FL_H = 0x4000; FL_S = 0x14000
FL_LN = 0x1000
L_STAT = L_ST + 4096
L_XS = [L_U[0], L_X + 2 * XSLOT]
SPIN_MAX = 30000
def EV(row, col=0): return L_CTL + 32 * row + 4 * col
R_EPI, R_PULL, R_BL, R_LATE = 16, 17, 18, 19
R_WD, R_CV, R_XW, R_XR = 20, 21, 22, 23
R_CS, R_WD2 = 26, 27
E_KRDY, E_URDY, E_XRDY, E_XDONE = EV(24, 0), EV(24, 2), EV(24, 4), EV(24, 6)
E_VRDY, E_SRDY, E_LNOK, E_LND = EV(25, 0), EV(25, 1), EV(25, 2), EV(25, 3)
E_WD = EV(25, 4)
L_V = EV(28, 0)
LNW, TW = OPT['LNW'], OPT['LNW'] + 1
vOOB, vZERO, vEV, vET = 252, 253, 250, 251
PRM = 236
FX = 244
A = Asm(); SLOW = Asm(); SLOW.uid = 100000

def mapping2():
    A(f"s_lshr_b32 s32, {s(sXCD)}, 1")
    A(f"s_and_b32 s33, {s(sXCD)}, 1")
    A(f"s_and_b32 s34, {s(sIDX)}, 3")
    A(f"s_lshr_b32 s35, {s(sIDX)}, 2")
    if OPT["ARR2"] == 0:
        A(f"s_lshl_b32 {s(sDT)}, s33, 2"); A(f"s_add_u32 {s(sDT)}, {s(sDT)}, s34")
        A(f"s_lshl_b32 {s(sTT)}, s32, 3"); A(f"s_add_u32 {s(sTT)}, {s(sTT)}, s35")
    else:
        A(f"s_and_b32 {s(sDT)}, {s(sIDX)}, 7"); A(f"s_lshr_b32 {s(sTT)}, {s(sB)}, 3")
    if OPT["ROT2"]: A(f"s_and_b32 {s(sROT)}, s34, 1"); A(f"s_lshl_b32 {s(sROT)}, {s(sROT)}, 2")
    else: A(f"s_mul_i32 {s(sROT)}, s34, {2*OPT['ROT']}")
    A(f"s_mul_i32 {s(sFC)}, s33, 7")
    A(f"s_add_u32 {s(sFC)}, {s(sFC)}, s35")
    A(f"s_lshl_b32 s36, s33, 1")
    A(f"s_add_u32 s36, s36, s34")
    A(f"s_cmp_ge_u32 {s(sIDX)}, 28")
    A(f"s_cselect_b32 {s(sFC)}, 14, {s(sFC)}")
    A(f"s_cselect_b32 s34, s36, s34")
    A(f"s_and_b32 s34, s34, 3")
    A(f"s_lshl_b32 {s(sRT)}, s32, 2")
    A(f"s_add_u32 {s(sRT)}, {s(sRT)}, s34")
    A(f"s_bfe_u32 {s(sB2)}, {s(sWAVE)}, 0x10001")
    A(f"s_mov_b32 {s(sX+2)}, 0x200000"); A(f"s_mov_b32 {s(sX+3)}, 0x20000")
def mapping3(X=None):
    X = X or A
    X(f"s_mov_b64 {s(sX,2)}, {s(P_X,2)}")
    X(f"s_mul_i32 {s(sKB)}, {s(sA)}, {L_K[1]-L_K[0]}")
    X(f"s_add_u32 {s(sKB)}, {s(sKB)}, {L_K[0]}")
    X(f"s_lshl_b32 {s(sUB)}, {s(sA)}, 4")
    X(f"s_add_u32 {s(sUB)}, {s(sUB)}, {L_U[0]}")
    for srd, p, sz in ((sWD, P_WD, 1409024), (sWS, P_WS, WS_SIZE), (sOUT, P_OUT, 0x200000)):
        X(f"s_mov_b64 {s(srd,2)}, {s(p,2)}"); X(f"s_mov_b32 {s(srd+2)}, {sz}"); X(f"s_mov_b32 {s(srd+3)}, 0x20000")
    X(f"v_mov_b32 {v(vOOB)}, 0x7ff00000")
    X(f"v_mov_b32 {v(vZERO)}, 0")

def ev_addr(base, n, X=None):
    X = X or A
    if n == 1: X(f"v_mov_b32 {v(vEV)}, {base}")
    else:
        X(f"v_and_b32 {v(vEV)}, {n-1}, {v(vLANE)}")
        if isinstance(base, int):
            X(f"v_lshlrev_b32 {v(vEV)}, 2, {v(vEV)}"); X(f"v_add_u32 {v(vEV)}, {base}, {v(vEV)}")
        else: X(f"v_lshl_add_u32 {v(vEV)}, {v(vEV)}, 2, {base}")
def ev_check(X=None):
    X = X or A
    X("s_getpc_b64 s[62:63]"); X("s_cbranch_vccnz L_stub")
def ev_wait(base=None, n=1, X=None):
    X = X or A
    if base is not None: ev_addr(base, n, X)
    X(f"ds_read_b32 {v(vET)}, {v(vEV)}")
    X("s_waitcnt lgkmcnt(0)")
    X(f"v_cmp_ne_u32 vcc, 0, {v(vET)}")
    ev_check(X)
def ev_wait_sm(base=None, n=1):
    if base is not None: ev_addr(base, n)
    A(f"ds_read_b32 {v(vET)}, {v(vEV)}")
    for k in range(4): A(f"ds_read_b32 v14, {v(vEV)}")
    A("s_waitcnt lgkmcnt(4)")
    A(f"v_cmp_ne_u32 vcc, 0, {v(vET)}")
    ev_check()
def spoll_issue(X, sOff):
    X(f"s_load_dwordx16 s[64:79], s[100:101], {sOff} glc"); X(f"s_add_u32 s32, {sOff}, 64"); X(f"s_load_dwordx16 s[80:95], s[100:101], s32 glc")
def spoll(X, sOff, n, issued, tag):
    if not issued: spoll_issue(X, sOff)
    X("s_mov_b32 s46, 0")
    X.label(f"L_sp{tag}")
    X("s_waitcnt lgkmcnt(0)")
    for q in range(n):
        X(f"s_cmp_lg_u64 s[{64+2*q}:{65+2*q}], {s(sV,2)}"); X(f"s_cbranch_scc1 L_sr{tag}")
    X.label(f"L_so{tag}")
    SLOW.label(f"L_sr{tag}")
    if OPT["PSL"]: SLOW(f"s_sleep {OPT['PSL']}")
    SLOW(f"s_load_dwordx16 s[64:79], s[100:101], {sOff} glc"); SLOW(f"s_add_u32 s32, {sOff}, 64"); SLOW(f"s_load_dwordx16 s[80:95], s[100:101], s32 glc")
    SLOW("s_add_u32 s46, s46, 1"); SLOW(f"s_cmp_lt_u32 s46, {SPIN_MAX}"); SLOW(f"s_cbranch_scc1 L_sp{tag}")
    SLOW("s_waitcnt lgkmcnt(0)"); SLOW(f"s_branch L_so{tag}")
def ev_set(addr, X=None):
    X = X or A
    X(f"v_mov_b32 {v(vET)}, {addr}")
    X("s_mov_b64 exec, 1")
    X(f"ds_write_b32 {v(vET)}, {v(vZERO)}")
    X("s_mov_b64 exec, -1")
def ev_dma(off, X=None):
    X = X or A
    X("s_mov_b64 exec, 1")
    X(f"buffer_load_dword {v(vOOB)}, {s(sX,4)}, 0 offen offset:{off} lds")
    X("s_mov_b64 exec, -1")
def wcol(row, sOut):
    A(f"s_and_b32 {sOut}, {s(sWAVE)}, 3")
    A(f"s_lshl_b32 {sOut}, {sOut}, 2"); A(f"s_add_u32 {sOut}, {sOut}, {EV(row, 4)}")
def gflag_store(sOff, T=None):
    A(f"s_mov_b64 s[6:7], {s(sV,2)}")
    A(f"s_atomic_swap_x2 s[6:7], {s(P_WS,2)}, {s(sOff)}")
def get_v(X=None):
    X = X or A
    X(f"v_mov_b32 {v(vEV)}, {L_V}")
    X(f"ds_read_b64 {v(vEV,2)}, {v(vEV)}")
    X("s_waitcnt lgkmcnt(0)")
    X(f"v_readfirstlane_b32 {s(sV)}, {v(vEV)}")
    X(f"v_readfirstlane_b32 {s(sV+1)}, {v(vET)}")
    X("s_nop 1")
def retry_loop(loads, test):
    lp = A.new("L_gp")
    A("s_mov_b32 s46, 0")
    A.label(lp)
    loads()
    A("s_add_u32 s46, s46, 1")
    A(f"s_cmp_lt_u32 s46, {SPIN_MAX}")
    A("s_cselect_b64 s[42:43], -1, 0")
    A("s_waitcnt vmcnt(0)")
    test()
    A("s_nop 0")
    A("s_and_b64 vcc, vcc, s[42:43]")
    A(f"s_cbranch_scc1 {lp}")

def _need(m):
    lo, hi = 4096 * m, 4096 * m + 4096; n = 0
    for w in range(NWS):
        a = L_W + w * WSLOT
        if a < hi and a + WSLOT > lo: n = max(n, max(st for st in range(NSTAGE) if st % NWS == w))
    for x in range(NXS):
        a = L_X + x * XSLOT
        if a < hi and a + XSLOT > lo: n = max(n, max(st for st in range(NSTAGE) if (st // 2) % NXS == x))
    return n
PSLOT = sorted(range(G2_NA), key=lambda m_: (_need(m_), m_))
def pslot(i): return PSLOT[i if i < G2_NA else i - G2_NA]
PRE = [48 + 8*i for i in range(6)] + [176 + 8*i for i in range(5)] + [160] + [96 + 8*i for i in range(4)]
JIT = [128, 136]
HW = [168, 172, 216, 220, 224, 228, 232, 236, 240, 144, 148, 152, 156, 128, 132, 136, 140][:OPT['NH']]
vR = 38
def wd_reads(i, F):
    o = 4096 * pslot(i); b = vR + 2 * (o >> 16); o &= 0xffff
    return [f"ds_read_b64_tr_b16 {v(F+4*dt+2*h,2)}, {v(b+dt)} offset:{o + 1024*h}" for dt in range(2) for h in range(2)]
def wd_piece_addr(X, vD, vT):
    if OPT["ARR2"] == 0:
        X(f"v_lshrrev_b32 {v(vD)}, 2, {v(vLANE)}"); X(f"v_lshlrev_b32 {v(vD)}, 10, {v(vD)}")
        X(f"v_and_b32 {v(vT)}, 3, {v(vLANE)}"); X(f"v_lshl_add_u32 {v(vD)}, {v(vT)}, 7, {v(vD)}")
        X(f"s_and_b32 s41, {s(sXCD)}, 1"); X("s_lshl_b32 s41, s41, 9"); X(f"v_add_u32 {v(vD)}, s41, {v(vD)}")
        return 16384
    X(f"v_lshlrev_b32 {v(vD)}, 7, {v(vLANE)}")
    return 8192

def loader():
    D = OPT["D"]; Vw = 8; Vx = 12; T = 18; sT = 36
    sXB, sWB, sC, sXo, sWo, sLW, sLX, sEF = range(sT+2, sT+10)
    A("s_movk_i32 s36, 2752"); A("s_movk_i32 s37, 0x1556")
    for j in range(3):
        if j: A(f"v_add_u32 v18, {64*j}, {v(vLANE)}")
        src = "v18" if j else v(vLANE)
        A(f"v_mul_u32_u24 v19, s37, {src}"); A("v_lshrrev_b32 v19, 16, v19")
        A(f"v_mad_i32_i24 v{21+j}, v19, -12, {src}")
        A("v_mul_u32_u24 v19, s36, v19")
        A(f"v_lshl_add_u32 v{8+j}, v{21+j}, 4, v19")
        if j: A(f"v_subrev_u32 v{8+j}, {1024*j}, v{8+j}")
    mapping2()
    A(f"s_cmp_eq_u32 {s(sFC)}, 14"); A("s_cselect_b32 s36, 3, 11"); A("v_mov_b32 v18, 0x7ff00000")
    for j in range(3):
        A(f"v_cmp_lt_u32 vcc, s36, v{21+j}"); A("s_nop 1"); A(f"v_cndmask_b32 v{8+j}, v{8+j}, v18, vcc")
    A(f"s_mov_b32 {s(sWG+2)}, 1409024"); A(f"s_mov_b32 {s(sWG+3)}, 0x20000")
    A(f"s_mul_i32 {s(sWB)}, {s(sFC)}, 192")
    A(f"s_mul_i32 {s(sLW)}, {s(sA)}, {UPOFF}")
    A(f"v_lshrrev_b32 {v(T)}, 3, {v(vLANE)}")
    A(f"v_lshlrev_b32 {v(T)}, 10, {v(T)}")
    A(f"v_lshrrev_b32 {v(T+1)}, 4, {v(vLANE)}")
    A(f"v_and_b32 {v(T+2)}, 7, {v(vLANE)}")
    A(f"v_xor_b32 {v(T+1)}, {v(T+1)}, {v(T+2)}")
    A(f"v_lshl_add_u32 {v(Vx)}, {v(T+1)}, 4, {v(T)}")
    A(f"v_xor_b32 {v(Vx+1)}, 64, {v(Vx)}")
    A(f"v_add_u32 {v(Vx+2)}, {2*7168}, {v(Vx)}")
    A(f"v_add_u32 {v(Vx+3)}, {3*7168}, {v(Vx+1)}")
    A(f"v_add_u32 {v(Vx+1)}, {7168}, {v(Vx+1)}")
    A(f"s_lshl_b32 {s(sXB)}, {s(sRT)}, 17")
    A(f"s_lshl_b32 {s(sT)}, {s(sA)}, 16")
    A(f"s_add_u32 {s(sXB)}, {s(sXB)}, {s(sT)}")
    A(f"s_lshl_b32 {s(sLX)}, {s(sA)}, 13")
    A(f"s_lshl_b32 {s(sEF)}, {s(sA)}, 2")
    A(f"s_add_u32 {s(sEF)}, {s(sEF)}, {EV(0)}")
    n = 0
    for st in range(NSTAGE):
        if st % 2 == 0:
            A(f"s_add_u32 {s(sC)}, {s(sROT)}, {st//2}")
            A(f"s_and_b32 {s(sC)}, {s(sC)}, 7")
            A(f"s_mul_i32 {s(sWo)}, {s(sC)}, {64*2752}")
            A(f"s_add_u32 {s(sWo)}, {s(sWo)}, {s(sWB)}")
            A(f"s_lshl_b32 {s(sXo)}, {s(sC)}, 7")
            A(f"s_add_u32 {s(sXo)}, {s(sXo)}, {s(sXB)}")
        if st == 0:
            A(f"s_cmp_eq_u32 {s(sA)}, 0")
            A("s_waitcnt lgkmcnt(0)")
            A(f"s_cselect_b64 {s(sWG,2)}, {s(P_WG,2)}, {s(P_WU,2)}")
            A(f"s_mov_b64 {s(sX,2)}, {s(P_X,2)}")
            stamp(A, 1)
            A(f"s_cmp_ge_u32 {s(sIDX)}, 30")
            A("s_cbranch_scc1 L_spare_ld")
        if st == NWS: ev_addr(EV(0, 4), 4)
        if st > NWS: A(f"v_add_u32 {v(vEV)}, 32, {v(vEV)}")
        if st >= NWS: ev_wait()
        wl = [("w", i) for i in range(6)]; xl = [("x", i) for i in range(8)] if st % 2 == 0 else []
        for k, i in (xl + wl if OPT["XFIRST"] else wl + xl):
            if n >= D: A(f"s_waitcnt vmcnt({D-1})")
            n += 1
            if k == "x":
                if i % 4 == 0:
                    A(f"s_add_u32 m0, {s(sLX)}, {L_X + ((st//2) % NXS) * XSLOT + i * 1024}")
                    if i: A(f"s_add_u32 {s(sXo)}, {s(sXo)}, 32768")
                    else: A("s_nop 0")
                A(f"buffer_load_dwordx4 {v(Vx + i%4)}, {s(sX,4)}, {s(sXo)} offen offset:{1024*(i%4)} lds")
            else:
                if i % 3 == 0:
                    A(f"s_add_u32 m0, {s(sLW)}, {L_W + (st % NWS) * WSLOT + (i//3) * 3072}")
                    if i or st % 2: A(f"s_add_u32 {s(sWo)}, {s(sWo)}, {16*2752}")
                    else: A("s_nop 0")
                A(f"buffer_load_dwordx4 {v(Vw + i%3)}, {s(sWG,4)}, {s(sWo)} offen offset:{1024*(i%3)} lds")
        if st == 0: stamp(A, 2); mapping3(); A("s_barrier")
        A(f"s_mov_b32 m0, {s(sEF)}")
        ev_dma(32 * st); n += 1
        if st in (3, 7, 11): stamp(A, 3 + st // 4)
    stamp(A, 6)
    A.label("L_fetch")
    A(f"v_lshrrev_b32 v8, 2, {v(vLANE)}"); A(f"v_mul_u32_u24 v8, {UBLK}, v8")
    A(f"v_and_b32 v9, 3, {v(vLANE)}"); A("v_lshl_add_u32 v8, v9, 4, v8")
    A(f"v_lshrrev_b32 v10, 1, {v(vLANE)}"); A(f"v_mul_u32_u24 v10, {UBLK}, v10")
    A(f"v_lshrrev_b32 v9, 4, {v(vLANE)}"); A(f"v_xor_b32 v9, v9, {v(vLANE)}"); A("v_and_b32 v9, 1, v9"); A("v_lshl_add_u32 v10, v9, 4, v10")
    A(f"s_mul_i32 s34, {s(sRT)}, {16*UBLK}"); A(f"s_add_u32 s34, s34, {WS_U+8192}")
    A(f"s_and_b32 s32, {s(sD)}, 7"); A("s_lshl_b32 s32, s32, 10"); A(f"s_lshr_b32 s33, {s(sD)}, 4"); A("s_lshl_b32 s33, s33, 5")
    A("s_add_u32 s32, s32, s33"); A(f"s_mul_i32 s33, {s(sA)}, {128*UBLK}"); A("s_add_u32 s32, s32, s33"); A(f"s_add_u32 s32, s32, {WS_U}")
    A(f"s_lshl_b32 s33, {s(sA)}, 12"); A(f"s_add_u32 s33, s33, {L_U[0] + 1024}")
    ev_wait(E_LNOK)
    A(f"s_cmp_eq_u32 {s(sA)}, 1"); A("s_cbranch_scc1 L_nost")
    A(f"s_mov_b32 m0, {L_STAT}"); A("s_nop 0")
    A(f"buffer_load_dwordx4 v8, {s(sWS,4)}, s34 offen {SC} lds")
    A(f"s_mov_b32 m0, {E_SRDY}"); ev_dma(0)
    A.label("L_nost")
    for i in range(4):
        A(f"s_add_u32 m0, s33, {1024*i}")
        if i: A(f"s_add_u32 s32, s32, {32*UBLK}")
        else: A("s_nop 0")
        A(f"buffer_load_dwordx4 v10, {s(sWS,4)}, s32 offen {SC} lds")
    A(f"s_lshl_b32 s33, {s(sA)}, 2"); A(f"s_add_u32 m0, s33, {E_URDY}"); ev_dma(0)
    stamp(A, 7)
    wd_addr(A, 6, 12)
    A(f"s_lshl_b32 s40, {s(sDT)}, 7"); A(f"s_lshl_b32 s41, {s(sA)}, 13"); A("s_add_u32 s40, s40, s41"); A(f"s_add_u32 s42, s40, {43*16384}")
    A(f"s_lshl_b32 s41, {s(sA)}, 10")
    have = -1; n = 0
    for i in range(G2_P):
        if _need(pslot(i)) > have:
            have = _need(pslot(i)); ev_wait(EV(have, 4), 4)
            if i == 0: stamp(A, 8)
        for kq in range(2):
            if n >= OPT["WTH"]: A(f"s_waitcnt vmcnt({OPT['WTH']-1})")
            n += 1
            A(f"s_add_u32 m0, s41, {4096*pslot(i) + 2048*kq}")
            if i: A(f"s_add_u32 s{40+2*kq}, s{40+2*kq}, 16384")
            else: A("s_nop 0")
            A(f"buffer_load_dwordx4 v6, {s(sWD,4)}, s{40+2*kq} offen lds")
    A(f"s_lshl_b32 s33, {s(sA)}, 2"); A(f"s_add_u32 m0, s33, {E_WD}"); ev_dma(0)
    stamp(A, 9)
    get_v()
    S = SLOW
    S.label("L_spare_ld")
    mapping3(S); S("s_barrier")
    PB = wd_piece_addr(S, T, T+2)
    S(f"s_and_b32 s42, {s(sIDX)}, 1"); S(f"s_mul_i32 s42, s42, {43*16384}"); S(f"s_mul_i32 s43, {s(sA)}, {PB}"); S("s_add_u32 s42, s42, s43")
    if OPT["PFR"]: S(f"s_add_u32 s42, s42, {43*16384 - 2*PB}")
    for i in range(OPT["NPF"]):
        S(f"buffer_load_dword {v(T+2)}, {v(T)}, {s(sWD,4)}, s42 offen")
        S(f"s_{'sub' if OPT['PFR'] else 'add'}_u32 s42, s42, {2*PB}"); S(f"s_waitcnt vmcnt({OPT['PFD']-1})")
        if i == OPT["SPF"]:
            S(f"s_lshl_b32 s40, {s(sA)}, 2"); S(f"s_add_u32 s40, s40, {EV(0)}")
            S(f"v_lshl_add_u32 {v(T+4)}, {v(vLANE)}, 5, s40"); S("s_mov_b64 exec, 0x3fff"); S(f"ds_write_b32 {v(T+4)}, {v(vZERO)}"); S("s_mov_b64 exec, -1")
    S("s_waitcnt vmcnt(0)")
    stamp(S, 19)
    S(f"s_lshl_b32 s40, {s(sA)}, 2"); S(f"s_add_u32 s40, s40, {EV(0)}")
    S(f"v_lshl_add_u32 {v(T)}, {v(vLANE)}, 5, s40"); S("s_mov_b64 exec, 0xffff"); S(f"ds_write_b32 {v(T)}, {v(vZERO)}"); S("s_mov_b64 exec, -1")
    S("s_branch L_fetch")

def conv_setup():
    vA = 8; vB = 4; T = 10
    A(f"v_and_b32 {v(T)}, 3, {v(vLANE)}"); A(f"v_sub_u32 {v(T)}, 3, {v(T)}"); A(f"v_mul_u32_u24 {v(T)}, {KCS}, {v(T)}")
    A(f"v_bfe_u32 {v(T+1)}, {v(vLANE)}, 2, 2"); A(f"v_lshlrev_b32 {v(T+1)}, 3, {v(T+1)}"); A(f"v_sub_u32 {v(T)}, {v(T)}, {v(T+1)}")
    A(f"v_and_b32 {v(T+2)}, 48, {v(vLANE)}")
    A(f"s_lshl_b32 s32, {s(sB2)}, 8"); A(f"s_sub_u32 s33, {s(sKB)}, s32"); A(f"s_add_u32 s33, s33, {24+256}")
    A(f"v_add3_u32 {v(vA)}, {v(T)}, {v(T+2)}, s33")
    A(f"v_and_b32 {v(T)}, 15, {v(vLANE)}"); A(f"v_lshrrev_b32 {v(T+1)}, 4, {v(vLANE)}"); A(f"v_lshl_add_u32 {v(T)}, {v(T)}, 1, {v(T+1)}")
    A(f"s_lshl_b32 s32, {s(sB2)}, 4"); A("s_sub_u32 s32, 30, s32"); A(f"v_add_u32 {v(T)}, s32, {v(T)}")
    for i in range(4):
        if i: A(f"v_subrev_u32 {v(T)}, 4, {v(T)}")
        A(f"v_bfe_u32 {v(T+1)}, {v(T)}, 3, 1"); A(f"v_xor_b32 {v(T+1)}, {s(sA)}, {v(T+1)}")
        A(f"v_lshl_add_u32 {v(T+1)}, {v(T)}, 1, {v(T+1)}"); A(f"v_lshlrev_b32 {v(T+1)}, 4, {v(T+1)}"); A(f"v_add_u32 {v(vB+i)}, {L_U[0]}, {v(T+1)}")
def conv_main2(filler):
    vA = 8; vB = 4
    def reads(i):
        F = CV_F + 64 * (i & 1); L = []
        for k in range(8):
            L.append(f"ds_read_b128 {v(F+32+4*k,4)}, {v(vB+i)} offset:{1024*k}")
            o = 64 * (59 - i - 8 * k)
            L.append(f"ds_read_b64 {v(F+4*k,2)}, {v(vA)} offset:{o}"); L.append(f"ds_read_b64 {v(F+4*k+2,2)}, {v(vA)} offset:{o+8}")
        return L
    for l in reads(0): A(l)
    first = set(); nm = 0
    prs = sorted([(a, b) for a in range(8) for b in range(8) if a + b <= 7], key=lambda p: (max(p), p[0] + p[1]))
    for i in range(4):
        F = CV_F + 64 * (i & 1)
        nxt = reads(i + 1) if i < 3 else []
        if i > 0: A("s_waitcnt lgkmcnt(0)")
        lastmax = -1
        for a, b in prs:
            if i == 0 and max(a, b) > lastmax and lastmax < 4:
                lastmax = max(a, b); A(f"s_waitcnt lgkmcnt({0 if lastmax == 4 else min(15, 3*(7-lastmax))})")
            c = a + b; acc = v(CV_ACC + 4 * c, 4)
            A(f"v_mfma_f32_16x16x32_bf16 {acc}, {v(F+4*a,4)}, {v(F+32+4*b,4)}, {acc if c in first else '0'}")
            first.add(c); nm += 1
            if nxt and (i > 0 or lastmax == 4):
                A(nxt.pop(0))
                if i == 0 and nxt: A(nxt.pop(0))
            filler(nm)
        assert not nxt
def h_common():
    A.label("L_conv")
    T = 12; vWD = 6
    if OPT["HPRIO"]: A("s_setprio 1")
    wcol(R_WD, "s38")
    fin_loads(A, sTT, sDT, SC, FX, 20)
    conv_setup()
    ev_wait(E_KRDY, 4)
    ev_wait(EV(R_EPI, 4), 4)
    stamp(A, 10)
    if OPT["CPRIO"]: A("s_setprio 1")
    def filler(nm):
        if nm == 109: A("s_add_u32 s38, s38, 32"); ev_set("s38")
        if nm == 112:
            A(f"s_lshl_b32 s32, {s(sB2)}, 12"); A(f"s_add_u32 s32, s32, {s(sKB)}"); A(f"v_lshl_add_u32 v16, {v(vLANE)}, 4, s32")
        if nm == 114: A(f"s_lshl_b32 s32, {s(sB2)}, 12"); A("s_xor_b32 s32, s32, 4096"); A(f"s_add_u32 s32, s32, {s(sKB)}"); A(f"v_lshl_add_u32 v17, {v(vLANE)}, 4, s32")
        if nm == 116: A(f"s_lshl_b32 s32, {s(sD)}, 12"); A(f"s_lshl_b32 s33, {s(sB2)}, 11"); A("s_add_u32 s32, s32, s33"); A(f"s_add_u32 s34, s32, {WS_S}")
        if nm == 118: A(f"v_lshlrev_b32 v18, 4, {v(vLANE)}"); A(f"s_cmp_eq_u32 {s(sB2)}, 1"); A("s_cselect_b64 s[42:43], -1, 0")
        if nm == 134: A("s_xor_b32 s39, s38, 8"); A(f"v_mov_b32 {v(vEV)}, s39"); A(f"ds_read_b32 {v(vET)}, {v(vEV)}")
    conv_main2(filler)
    stamp(A, 13)
    A("s_waitcnt lgkmcnt(0)"); A(f"v_cmp_ne_u32 vcc, 0, {v(vET)}"); ev_check()
    A("s_nop 2")
    for k in range(16):
        A(f"v_cndmask_b32 {v(CV_F+k)}, {v(CV_ACC+16+k)}, {v(CV_ACC+k)}, s[42:43]")
        if k % 4 == 3: A(f"ds_write_b128 v16, {v(CV_F+k-3,4)} offset:{256*(k-3)}")
    A("s_add_u32 s38, s38, 32"); ev_set("s38")
    for k in range(16): A(f"v_cndmask_b32 {v(CV_F+16+k)}, {v(CV_ACC+k)}, {v(CV_ACC+16+k)}, s[42:43]")
    A("s_xor_b32 s39, s38, 8"); ev_wait("s39")
    for k in range(4): A(f"ds_read_b128 {v(CV_F+32+4*k,4)}, v17 offset:{1024*k}")
    O = CV_F + 48
    for pr in range(2):
        A(f"s_waitcnt lgkmcnt({2-2*pr})")
        for k in range(8): A(f"v_add_f32 {v(CV_F+16+8*pr+k)}, {v(CV_F+16+8*pr+k)}, {v(CV_F+32+8*pr+k)}")
        for k in range(4): A(f"v_cvt_pk_bf16_f32 {v(O+4*pr+k)}, {v(CV_F+16+8*pr+2*k)}, {v(CV_F+17+8*pr+2*k)}")
        A("s_nop 1")
        A(f"v_permlane16_swap_b32 {v(O+4*pr)}, {v(O+4*pr+2)}"); A(f"v_permlane16_swap_b32 {v(O+4*pr+1)}, {v(O+4*pr+3)}")
        A(f"buffer_store_dwordx4 {v(O+4*pr,4)}, v18, {s(sWS,4)}, s34 offen offset:{1024*pr} {SC}")
    if OPT["CPRIO"]: A("s_setprio 0")
    A("s_add_u32 s38, s38, 32"); ev_set("s38")
    stamp(A, 14)
    A(f"s_lshr_b32 s32, {s(sD)}, 6"); A("s_lshl_b32 s32, s32, 1"); A(f"s_add_u32 s32, s32, {s(sB2)}"); A("s_lshl_b32 s32, s32, 6")
    A(f"s_and_b32 s33, {s(sD)}, 63"); A("s_add_u32 s32, s32, s33"); A("s_lshl_b32 s32, s32, 3"); A(f"s_add_u32 s36, s32, {FL_S}")
    A("s_waitcnt vmcnt(0)")
    stamp(A, 11)
    gflag_store(36)
    A(f"s_lshr_b32 s32, {s(sTT)}, 4"); A(f"s_lshl_b32 s33, {s(sDT)}, 1"); A("s_add_u32 s32, s32, s33"); A("s_lshl_b32 s32, s32, 2")
    A(f"s_and_b32 s40, {s(sWAVE)}, 3"); A("s_add_u32 s32, s32, s40"); A("s_lshl_b32 s32, s32, 7"); A(f"s_add_u32 s36, s32, {FL_S}")
    A(f"s_mov_b64 s[100:101], {s(P_WS,2)}")
    A(f"v_lshrrev_b32 v12, 3, {v(vLANE)}"); A("v_lshlrev_b32 v12, 12, v12"); A(f"v_and_b32 v13, 3, {v(vLANE)}"); A("v_lshl_add_u32 v12, v13, 4, v12")
    A(f"v_bfe_u32 v13, {v(vLANE)}, 2, 1"); A("v_lshl_add_u32 v12, v13, 9, v12")
    A(f"s_lshl_b32 s37, {s(sDT)}, 18"); A("s_lshl_b32 s33, s40, 16"); A("s_add_u32 s37, s37, s33")
    A(f"s_lshr_b32 s33, {s(sTT)}, 3"); A("s_lshl_b32 s33, s33, 10"); A("s_add_u32 s37, s37, s33")
    A(f"s_and_b32 s33, {s(sTT)}, 7"); A("s_lshl_b32 s33, s33, 6"); A("s_add_u32 s37, s37, s33"); A(f"s_add_u32 s37, s37, {WS_S}")
    A("s_lshl_b32 s41, s40, 11"); A(f"s_add_u32 s41, s41, {L_ST}")
    if OPT["LATE"] >= 0: ev_wait(EV(R_LATE, 4), 4)
    stamp(A, 15)
    spoll(A, "s36", 16, False, "s")
    stamp(A, 12)
    for i in range(2):
        A(f"s_add_u32 m0, s41, {1024*i}")
        if i: A("s_add_u32 s37, s37, 32768")
        else: A("s_nop 0")
        A(f"buffer_load_dwordx4 v12, {s(sWS,4)}, s37 offen {SC} lds")
    A.label("L_final")
    body = final(A, FX, OPT["SCOUT"], T=48, perm=True)
    A("s_waitcnt vmcnt(0) lgkmcnt(0)"); stamp(A, 20); A("s_barrier"); stamp(A, 21)
    body()
    stamp(A, 22)
    if Stamp.on: A("s_waitcnt vmcnt(0)"); stamp(A, 23); stamp_flush(A, 0)
    A.label("L_done")
    A("s_endpgm")

def kg():
    A(f"s_load_dwordx2 s[6:7], {s(P_WS,2)}, 0")
    mapping2(); mapping3()
    A("s_barrier")
    if OPT["YPRIO"]: A(f"s_setprio {OPT['YPRIO']}")
    kg4_pre(A)
    A("s_waitcnt lgkmcnt(0)")
    A("s_mov_b64 s[44:45], s[100:101]")
    A(f"s_cmp_eq_u32 {s(sA)}, 1"); A("s_cbranch_scc1 L_k1")
    A(f"s_add_u32 {s(sV)}, s6, 0x7f4a7c15"); A(f"s_addc_u32 {s(sV+1)}, s7, 0x9e3779b9")
    for i in range(4): A(f"v_mov_b32 v{8+i}, 0")
    A(f"v_lshlrev_b32 v12, 4, {v(vLANE)}"); A(f"v_add_u32 v12, {L_U[0]}, v12"); A("ds_write_b128 v12, v[8:11]")
    A(f"v_mov_b32 v8, {s(sV)}"); A(f"v_mov_b32 v9, {s(sV+1)}"); A(f"v_mov_b32 v12, {L_V}")
    A("s_mov_b64 exec, 1"); A("ds_write_b64 v12, v[8:9]"); A("s_mov_b64 exec, -1")
    ev_set(E_VRDY)
    A.label("L_k1")
    A("s_waitcnt vmcnt(0)")
    stamp(A, 2)
    def hook():
        A(f"s_cmp_eq_u32 {s(sA)}, 1"); A("s_cbranch_scc1 L_k2")
        ev_wait(E_LND)
        A(f"s_lshl_b32 s32, {s(sB)}, 5"); A(f"s_add_u32 s32, s32, {FL_LN}")
        stamp(A, 3)
        gflag_store(32)
        A.label("L_k2")
    PT = [224, 238, 240, 242]
    def hook2():
        A(f"s_cmp_eq_u32 {s(sA)}, 0"); A("s_cbranch_scc1 L_k5")
        S = SLOW; S.label("L_k5")
        if OPT["WTS"]:
            S(f"s_and_b32 s32, {s(sIDX)}, 30"); S("s_cmp_lg_u32 s32, 28"); S("s_cbranch_scc1 L_k3")
            PBs = wd_piece_addr(S, 244, 245)
            S(f"s_and_b32 s34, {s(sIDX)}, 1"); S(f"s_mul_i32 s34, s34, {43*16384}")
            for i in range(OPT["WTS"]):
                S(f"buffer_load_dword v246, v244, {s(sWD,4)}, s34 offen"); S(f"s_add_u32 s34, s34, {PBs}"); S("s_waitcnt vmcnt(1)")
            S("s_waitcnt vmcnt(0)")
        S("s_branch L_k3")
        ev_wait(E_VRDY); get_v()
        WT = OPT["WT"]
        A(f"s_and_b32 s32, {s(sIDX)}, {OPT['PST']}"); A("s_lshl_b32 s32, s32, 5"); A(f"s_add_u32 s32, s32, {EV(OPT['PWAIT']-1)}")
        PB = wd_piece_addr(A, 244, 245)
        A(f"s_and_b32 s34, {s(sIDX)}, 1"); A(f"s_mul_i32 s34, s34, {43*16384}"); A(f"s_lshr_b32 s35, {s(sIDX)}, 1"); A(f"s_mul_i32 s35, s35, {WT*PB}")
        A("s_add_u32 s34, s34, s35"); A(f"s_add_u32 s34, s34, {16*16384}")
        A(f"v_lshlrev_b32 v245, 5, {v(vLANE)}")
        A(f"s_mov_b32 s36, {FL_LN}"); A(f"s_mov_b32 s37, {FL_LN+4096}")
        ev_wait("s32", 2)
        stamp(A, 5)
        for i in range(WT):
            A(f"buffer_load_dword v{246+i}, v244, {s(sWD,4)}, s34 offen")
            if i + 1 < WT: A(f"s_add_u32 s34, s34, {PB}")
        def loads():
            for i in range(4): A(f"buffer_load_dwordx2 {v(PT[i],2)}, v245, {s(sWS,4)}, s{36+i//2} offen offset:{2048*(i%2)} {SC}")
        def test():
            for i in range(4):
                A(f"v_cmp_ne_u64 {'vcc' if i == 0 else 's[38:39]'}, {s(sV,2)}, {v(PT[i],2)}")
                if i: A("s_nop 0"); A("s_or_b64 vcc, vcc, s[38:39]")
        retry_loop(loads, test)
        A(f"s_mov_b32 m0, {E_LNOK}"); ev_dma(0)
        stamp(A, 6)
        A("s_cmp_lg_u32 s2, 0"); A(f"s_cbranch_scc1 L_k3")
        A("s_mov_b32 s33, 0"); gflag_store(33)
        A.label("L_k3")
    kg4_main(A, sD, 44, sKB, hook=hook, hook2=hook2 if OPT["PH"] else None, ph=OPT["PH"])
    if not OPT["PH"]: hook2()
    if OPT["YPRIO"]: A("s_setprio 0")
    stamp(A, 4)
    if OPT["KW"] == 0: ev_wait(EV(15), 2)
    elif OPT["KW"] == 1: ev_wait(E_WD, 2)
    stamp(A, 7)
    kg4_store(A)
    A(f"s_lshl_b32 s32, {s(sA)}, 2"); A(f"s_add_u32 s32, s32, {E_KRDY}"); ev_set("s32")
    stamp(A, 9)
    ev_wait(E_LNOK)
    A("s_branch L_conv")

def early_g():
    A(f"s_cmp_eq_u32 {s(sWAVE)}, {LNW}"); A("s_cbranch_scc0 L_e2")
    for r in range(8): A(f"global_load_dwordx4 {v(64+4*r,4)}, v2, {s(P_X,2)} offset:{r*1024-4096}")
    A.label("L_e2")
    if OPT["XT"] == 1: xtouch()
def xtouch():
    A(f"s_cmp_eq_u32 {s(sWAVE)}, {TW}"); A("s_cbranch_scc0 L_e3")
    A(f"s_xor_b32 s32, {s(sB)}, 32"); A("s_lshl_b32 s32, s32, 13"); A(f"v_lshl_add_u32 v2, {v(vLANE)}, 7, s32")
    A(f"global_load_dword v243, v2, {s(P_X,2)}")
    A.label("L_e3")
def gwave():
    vW = 4; vXs = 10; T = 24; ST = 20
    sMH, sNH = sA, sB2
    sTB, sKQ = sA, sB2
    stamp(A, 14)
    mapping2(); mapping3()
    A("s_barrier")
    if OPT["LNLATE"]: early_g()
    if OPT["XT"] == 2: xtouch()
    A(f"s_cmp_lg_u32 {s(sWAVE)}, {LNW}"); A("s_cbranch_scc1 L_gsetup")
    if OPT["LNPRIO"]: A("s_setprio 2")
    A(f"v_lshlrev_b32 v2, 4, {v(vLANE)}")
    ln_compute(A, sB, SC, X=64, D=96, T=160)
    A(f"s_mov_b32 m0, {E_LND}"); ev_dma(0)
    if OPT["LNPRIO"]: A("s_setprio 0")
    stamp(A, 17)
    A.label("L_gsetup")
    A(f"v_bfe_u32 {v(T)}, {v(vLANE)}, 4, 1")
    A(f"v_mul_u32_u24 {v(T)}, {UPOFF}, {v(T)}")
    A(f"v_lshrrev_b32 {v(T+1)}, 5, {v(vLANE)}")
    A(f"v_bfe_u32 {v(T+2)}, {v(vLANE)}, 2, 2")
    A(f"v_lshl_add_u32 {v(T+2)}, {v(T+1)}, 3, {v(T+2)}")
    A(f"v_mul_u32_u24 {v(T+2)}, 192, {v(T+2)}")
    A(f"v_and_b32 {v(T+3)}, 3, {v(vLANE)}")
    A(f"v_lshl_add_u32 {v(T+2)}, {v(T+3)}, 3, {v(T+2)}")
    A(f"s_mul_i32 s32, {s(sMH)}, 96")
    A(f"v_add3_u32 {v(T+4)}, {v(T)}, {v(T+2)}, s32")
    A(f"s_lshl_b32 s33, {s(sNH)}, 5"); A("s_xor_b32 s34, s33, 32"); A("s_mov_b32 s35, 64")
    A(f"s_mul_i32 s36, {s(sNH)}, 3072"); A("s_sub_u32 s37, 3072, s36")
    for sl in range(3):
        for i in range(2):
            A(f"s_add_u32 s38, s{33+sl}, s{36+i}")
            A(f"v_add_u32 {v(vW+2*sl+i)}, s38, {v(T+4)}")
    A(f"v_and_b32 {v(T)}, 31, {v(vLANE)}")
    A(f"v_bfe_u32 {v(T+2)}, {v(vLANE)}, 1, 3")
    A(f"v_xor_b32 {v(T+2)}, {v(T+2)}, {v(T+1)}")
    A(f"v_lshlrev_b32 {v(T+2)}, 4, {v(T+2)}")
    A(f"v_lshl_add_u32 {v(T)}, {v(T)}, 7, {v(T+2)}")
    A(f"v_xor_b32 {v(T)}, s33, {v(T)}")
    A(f"s_lshl_b32 s32, {s(sNH)}, 13"); A(f"s_add_u32 s32, s32, {L_X}")
    for k in range(4):
        A(f"v_xor_b32 {v(T+3)}, {32*k}, {v(T)}")
        A(f"v_add_u32 {v(vXs+k)}, s32, {v(T+3)}")
    A(f"v_lshrrev_b32 {v(T)}, 2, {v(vLANE)}")
    A(f"v_lshrrev_b32 {v(T+1)}, 4, {v(vLANE)}")
    A(f"v_xor_b32 {v(T)}, {v(T)}, {v(T+1)}")
    A(f"v_and_b32 {v(T)}, 1, {v(T)}")
    A(f"v_cmp_eq_u32 vcc, 0, {v(T)}")
    A(f"v_mov_b32 {v(T+1)}, 0x3f803f80")
    wcol(0, "s39")
    for k in range(4): A(f"v_cndmask_b32 {v(G_SEL+k)}, 0, {v(T+1)}, vcc")
    A("s_mov_b32 m0, s39")
    ev_addr(EV(0), 2)
    stamp(A, 18)
    BF = G_F + 40; AF = G_F + 48
    LT = []
    X = LT.append
    X(f"s_lshl_b32 s32, {s(sWAVE)}, 9"); X(f"s_add_u32 s32, s32, {L_CSX}"); X(f"v_lshl_add_u32 v16, {v(vLANE)}, 2, s32")
    X(f"s_xor_b32 s33, {s(sWAVE)}, 2"); X("s_lshl_b32 s33, s33, 9"); X(f"s_add_u32 s33, s33, {L_CSX}"); X(f"v_lshl_add_u32 v17, {v(vLANE)}, 2, s33")
    X(f"v_and_b32 {v(T)}, 31, {v(vLANE)}"); X(f"s_lshl_b32 s33, {s(sNH)}, 9"); X(f"s_add_u32 s33, s33, {L_STAT}"); X(f"v_lshl_add_u32 v19, {v(T)}, 3, s33")
    for k in (2, 3, 6, 7): X(f"v_mov_b32 {v(BF+k)}, 0")
    for sl in range(3): X(f"v_mov_b32 {v(AF+4*sl+2)}, 0"); X(f"v_mov_b32 {v(AF+4*sl+3)}, 0")
    X(f"v_cmp_gt_u32 s[42:43], 32, {v(vLANE)}")
    X("s_mov_b32 s41, 0x07060302")
    X("s_xor_b32 s33, s39, 8"); X(f"s_add_u32 s33, s33, {32*R_CS}"); X("v_mov_b32 v18, s33")
    X(f"v_lshlrev_b32 v37, 4, {v(vLANE)}"); X(f"s_lshl_b32 s32, {s(sNH)}, 10"); X("v_add_u32 v14, s32, v37"); X("v_xor_b32 v15, 1024, v14")
    X(f"s_lshl_b32 s32, {s(sRT)}, 2"); X(f"s_lshl_b32 s33, {s(sNH)}, 1"); X("s_add_u32 s32, s32, s33"); X("s_mul_i32 s32, s32, 86")
    X(f"s_lshl_b32 s36, {s(sFC)}, 1"); X(f"s_add_u32 s36, s36, {s(sMH)}")
    X(f"s_lshl_b32 s37, {s(sRT)}, 1"); X(f"s_add_u32 s37, s37, {s(sNH)}"); X("s_lshl_b32 s37, s37, 5"); X("s_add_u32 s37, s37, s36")
    X("s_cmp_gt_u32 s36, 14\ns_cselect_b32 s33, 2, 0"); X("s_add_u32 s37, s37, s33")
    X("s_lshl_b32 s37, s37, 3"); X(f"s_add_u32 s37, s37, {FL_H}")
    X(f"v_mov_b32 {v(T+12)}, {L_V}")
    X("s_mul_i32 s36, s36, 3"); X("s_add_u32 s32, s32, s36"); X("s_lshl_b32 s32, s32, 10")
    X(f"s_add_u32 s34, s32, {WS_H}"); X(f"s_add_u32 s35, s34, {86*1024}")
    X(f"v_mov_b32 {v(T+2)}, 1.0")
    X(f"s_lshr_b32 s32, {s(sWAVE)}, 1"); X(f"s_lshl_b32 s33, {s(sTT)}, 2"); X("s_add_u32 s32, s32, s33")
    X(f"s_mul_i32 s38, s32, {2*UBLK}"); X(f"s_add_u32 s38, s38, {WS_U + 8192 + 4}")
    X(f"s_lshl_b32 s33, {s(sDT)}, 1"); X(f"s_add_u32 s33, s33, {s(sA)}"); X("s_lshl_b32 s33, s33, 6"); X("s_lshl_b32 s32, s32, 14"); X("s_add_u32 s33, s33, s32")
    X(f"v_and_b32 v42, 15, {v(vLANE)}"); X("v_lshlrev_b32 v42, 10, v42"); X(f"v_and_b32 v43, 48, {v(vLANE)}"); X(f"v_add3_u32 {v(FX+5)}, v42, v43, s33")
    X(f"v_bfe_u32 v42, {v(vLANE)}, 3, 1"); X(f"v_mul_u32_u24 v42, {UBLK}, v42"); X(f"v_and_b32 v43, 7, {v(vLANE)}"); X("v_lshl_add_u32 v3, v43, 3, v42")
    nG1 = len(LT)
    X(f"v_and_b32 v2, 3, {v(vLANE)}"); X("v_lshlrev_b32 v2, 2, v2"); X(f"v_add_u32 v2, {EV(15, 4)}, v2")
    X(f"v_lshlrev_b32 v37, 4, {v(vLANE)}")
    t = 42
    X(f"v_bfe_u32 {v(t)}, {v(vLANE)}, 2, 2"); X(f"v_lshrrev_b32 {v(t+1)}, 5, {v(vLANE)}"); X(f"v_lshl_add_u32 {v(t+1)}, {v(t+1)}, 2, {v(t)}")
    X(f"v_lshlrev_b32 {v(t+1)}, 7, {v(t+1)}"); X(f"v_lshrrev_b32 {v(t)}, 1, {v(t)}"); X(f"v_lshlrev_b32 {v(t)}, 6, {v(t)}")
    X(f"v_bfe_u32 {v(t+2)}, {v(vLANE)}, 4, 1"); X(f"v_lshlrev_b32 {v(t+2)}, 5, {v(t+2)}"); X(f"v_and_b32 {v(t+3)}, 3, {v(vLANE)}")
    X(f"v_lshl_add_u32 {v(t+2)}, {v(t+3)}, 3, {v(t+2)}"); X(f"v_add3_u32 {v(t)}, {v(t)}, {v(t+1)}, {v(t+2)}")
    X(f"s_lshl_b32 s32, {s(sKQ)}, 11"); X(f"v_add_u32 {v(vR)}, s32, {v(t)}"); X(f"v_xor_b32 {v(vR+1)}, 64, {v(vR)}")
    X(f"v_add_u32 {v(vR+2)}, 0x10000, {v(vR)}"); X(f"v_add_u32 {v(vR+3)}, 0x10000, {v(vR+1)}")
    X(f"s_lshl_b32 s32, {s(sTT)}, 1"); X(f"s_add_u32 s32, s32, {s(sTB)}"); X("s_mul_i32 s32, s32, 86")
    X(f"s_mul_i32 s33, {s(sKQ)}, 43"); X("s_add_u32 s32, s32, s33"); X("s_lshl_b32 s32, s32, 10"); X(f"s_add_u32 s40, s32, {WS_H}")
    X(f"v_lshrrev_b32 {v(t)}, 3, {v(vLANE)}"); X(f"v_lshlrev_b32 {v(t)}, 10, {v(t)}"); X(f"v_lshrrev_b32 {v(t+1)}, 2, {v(vLANE)}"); X(f"v_and_b32 {v(t+1)}, 4, {v(t+1)}")
    X(f"v_and_b32 {v(t+2)}, 7, {v(vLANE)}"); X(f"v_xor_b32 {v(t+1)}, {v(t+1)}, {v(t+2)}"); X(f"v_lshl_add_u32 v46, {v(t+1)}, 4, {v(t)}")
    X(f"s_mul_i32 s44, {s(sKQ)}, {43*16384}"); X(f"s_lshl_b32 s32, {s(sDT)}, 7"); X("s_add_u32 s44, s44, s32")
    X(f"s_lshl_b32 s32, {s(sTB)}, 13"); X("s_add_u32 s44, s44, s32"); X(f"s_add_u32 s44, s44, {(G2_P-1)*16384}")
    X(f"s_lshl_b32 s45, {s(sKQ)}, 11"); X(f"s_lshl_b32 s32, {s(sTB)}, 10"); X("s_add_u32 s45, s45, s32")
    X(f"s_lshl_b32 s32, {s(sTT)}, 1"); X(f"s_add_u32 s32, s32, {s(sKQ)}"); X("s_lshl_b32 s32, s32, 7"); X(f"s_add_u32 s47, s32, {FL_H}")
    X(f"s_mov_b64 s[100:101], {s(P_WS,2)}")
    A(f"s_cmp_ge_u32 {s(sIDX)}, 30"); A("s_cbranch_scc1 L_spare_g")
    S = SLOW
    S.label("L_spare_g")
    for l in LT[nG1:]: S(l)
    ev_wait(E_SRDY, 1, S)
    get_v(S)
    S(f"s_lshl_b32 s37, {s(sB)}, 2"); S(f"s_add_u32 s37, s37, {s(sWAVE)}"); S("s_lshl_b32 s37, s37, 6"); S(f"s_add_u32 s37, s37, 0x20000"); S("s_mov_b32 s36, 0")
    S(f"v_lshl_add_u32 {v(T)}, {v(vLANE)}, 5, s39")
    S("s_mov_b64 exec, 0xffff"); S(f"ds_write_b32 {v(T)}, {v(vZERO)}"); S("s_mov_b64 exec, -1")
    fin_loads(S, sTT, sDT, SC, FX, 10)
    S("s_branch L_e1end")
    def reads(ks):
        st, i = ks // 2, ks % 2
        F = G_F + 20 * (ks % 2); L = []
        wo = L_W + (st % NWS) * WSLOT
        xo = ((ks // 4) % NXS) * XSLOT
        L.append(f"ds_read_b128 {v(F+12,4)}, {v(vXs + ks%4)} offset:{xo}")
        for sl in range(3):
            for h in range(2): L.append(f"ds_read_b64_tr_b16 {v(F+4*sl+2*h,2)}, {v(vW+2*sl+i)} offset:{wo + h*768}")
            if sl == 0: L.append(f"ds_read_b128 {v(F+16,4)}, {v(vXs + ks%4)} offset:{xo+4096}")
        return L
    def split(c, sl):
        a = AF + 4 * sl
        A(f"v_and_b32 {v(T+8)}, 0xffff0000, {v(c)}")
        A(f"v_sub_f32 {v(T+4)}, {v(c)}, {v(T+8)}")
        A(f"v_and_b32 {v(T+9)}, 0xffff0000, {v(T+4)}")
        A(f"v_sub_f32 {v(T+4)}, {v(T+4)}, {v(T+9)}")
        A(f"v_perm_b32 {v(a)}, {v(T+9)}, {v(T+8)}, s41")
        A(f"v_lshrrev_b32 {v(a+1)}, 16, {v(T+4)}")
    def fold(sl, nt):
        acc = v(G_ACC + 16*(2*sl+nt), 16)
        A(f"v_mfma_f32_32x32x16_bf16 {acc}, {v(AF+4*sl,4)}, {v(BF+4*nt,4)}, {acc}")
    ev_wait()
    stamp(A, 2)
    for l in reads(0): A(l)
    for ks in range(32):
        F = G_F + 20 * (ks % 2)
        A(f"s_waitcnt lgkmcnt(0)")
        nxt = reads(ks + 1) if ks < 31 else []
        if ks % 2 == 0 and ks < 30: nxt += [f"v_add_u32 {v(vEV)}, 32, {v(vEV)}", f"ds_read_b32 {v(vET)}, {v(vEV)}"]
        if ks == 30: nxt += [f"v_mov_b32 {v(vEV)}, {E_SRDY}", f"ds_read_b32 {v(vET)}, {v(vEV)}"]
        cs = [0, 2] if ks % 2 == 0 else [0]
        if ks % 2 == 1: A(f"v_cmp_ne_u32 vcc, 0, {v(vET)}")
        def csm(c): A(f"v_mfma_f32_16x16x32_bf16 {v(G_CS+4*c,4)}, {v(G_SEL,4)}, {v(F+4*c,4)}, {'0' if ks == 0 else v(G_CS+4*c,4)}")
        if ks == 31: csm(cs.pop(0))
        n = 0
        for sl in range(3):
            for nt in range(2):
                acc = v(G_ACC + 16*(2*sl+nt), 16)
                A(f"v_mfma_f32_32x32x16_bf16 {acc}, {v(F+4*sl,4)}, {v(F+12+4*nt,4)}, {'0' if ks == 0 else acc}")
                n += 1
                if n == 1 and ks % 2 == 1:
                    ev_dma(32 * (ks // 2))
                    ev_check()
                    if ks < 31: continue
                if ks == 31:
                    if n == 1:
                        for q in range(2): A(f"ds_read_b64 {v(ST+2*q,2)}, v19 offset:{256*q}")
                        A(f"ds_read_b64 {v(T+10,2)}, {v(T+12)}")
                    if n == 2:
                        A(f"ds_write_b32 v16, {v(G_CS)}"); A(f"ds_write_b32 v16, {v(G_CS+8)} offset:256")
                        A(f"s_add_u32 s32, s39, {32*R_CS}"); ev_set("s32")
                    if n == 3: split(G_CS, 0)
                    if n == 4:
                        A("s_waitcnt lgkmcnt(3)")
                        A(f"v_readfirstlane_b32 {s(sV)}, {v(T+10)}"); A(f"v_readfirstlane_b32 {s(sV+1)}, {v(T+11)}")
                    if n in (4, 5):
                        q = n - 4
                        A(f"v_xor_b32 {v(T+8)}, 0x80000000, {v(ST+2*q)}")
                        A(f"v_cndmask_b32 {v(T+8)}, 0, {v(T+8)}, s[42:43]")
                        A(f"v_lshrrev_b32 {v(BF+4*q+1)}, 16, {v(T+8)}")
                        A(f"v_or_b32 {v(BF+4*q)}, {v(T+8)}, {v(BF+4*q+1)}")
                    continue
                for _ in range(3 if (n < 3 or ks % 2 == 1) else 2):
                    if nxt: A(nxt.pop(0))
                if n >= 3 and n < 6 and cs and not (len(cs) < 6 - n): csm(cs.pop(0))
                if n == 6 or (n == 5 and ks % 2 == 1):
                    for _ in range(4 if ks < 8 else 3):
                        if LT: A(LT.pop(0))
        assert not nxt and not cs, (ks, nxt, cs)
        if ks in (7, 15, 23): stamp(A, 3 + ks // 8)
    assert not LT
    stamp(A, 6)
    A("s_nop 0")
    fold(0, 0); fold(0, 1)
    for nt in range(2): A(f"v_mul_f32 {v(ST+2*nt)}, {fl(-LOG2E)}, {v(ST+2*nt+1)}")
    A(f"v_mov_b32 {v(vEV)}, v18")
    A(f"buffer_load_dwordx4 {v(FX,4)}, {v(FX+5)}, {s(sX,4)}, 0 offen")
    A(f"buffer_load_dword {v(FX+4)}, v3, {s(sWS,4)}, s38 offen {SC}")
    A("s_cmp_ge_u32 s36, 85"); A("s_cbranch_scc1 L_e1end")
    A("s_nop 3")
    stamp(A, 7)
    def tile(sl, nt, fill, mid=None, mf=()):
        a = G_ACC + 16*(2*sl+nt)
        va, off = ((14, 0), (15, 0), (37, 2048))[sl]
        L = [f"v_pk_mul_f32 {v(a+2*k,2)}, {v(a+2*k,2)}, {v(ST+2*nt,2)} op_sel_hi:[1,0]" for k in range(4)]
        L += [f"v_exp_f32 {v(a+k)}, {v(a+k)}" for k in range(8)]
        L += [f"v_pk_add_f32 {v(a+2*k,2)}, {v(a+2*k,2)}, {v(T+2,2)} op_sel_hi:[1,0]" for k in range(4)]
        L += [f"v_rcp_f32 {v(a+k)}, {v(a+k)}" for k in range(8)]
        L += [f"v_pk_mul_f32 {v(a+2*k,2)}, {v(a+2*k,2)}, {v(a+8+2*k,2)}" for k in range(4)]
        L += [f"v_cvt_pk_bf16_f32 {v(a+8+k)}, {v(a+2*k)}, {v(a+2*k+1)}" for k in range(4)]
        mf = list(mf)
        for n, l in enumerate(L):
            if n == 4 and mid: mid()
            A(l)
            if fill and l.startswith(("v_exp", "v_rcp")): A(fill.pop(0))
            if mf and n in (5, 8, 16, 19): fold(*mf.pop(0))
        if not OPT["NOST"]: A(f"buffer_store_dwordx4 {v(a+8,4)}, {v(va)}, {s(sWS,4)}, s{34+nt} offen offset:{off} {SC}")
    tile(0, 0, [f"ds_read_b32 {v(vET)}, {v(vEV)}"])
    A("s_waitcnt lgkmcnt(0)"); A(f"v_cmp_ne_u32 vcc, 0, {v(vET)}"); ev_check()
    A(f"ds_read_b32 {v(T+5)}, v17"); A(f"ds_read_b32 {v(T+6)}, v17 offset:256")
    def folds():
        A("s_waitcnt lgkmcnt(0)")
        split(T+5, 1)
        A(f"v_add_f32 {v(T+6)}, {v(T+6)}, {v(G_CS+8)}")
        split(T+6, 2)
    tile(0, 1, [], mid=folds, mf=[(1, 0), (1, 1), (2, 0), (2, 1)])
    tile(1, 0, []); tile(1, 1, [])
    A("s_cmp_ge_u32 s36, 84"); A("s_cbranch_scc1 L_e1end")
    tile(2, 0, []); tile(2, 1, [f"v_mov_b32 {v(vEV)}, v2", f"ds_read_b32 {v(vET)}, {v(vEV)}"])
    S.label("L_e1end"); S(f"v_mov_b32 {v(vEV)}, v2"); S(f"ds_read_b32 {v(vET)}, {v(vEV)}"); S("s_nop 7"); S("s_branch L_e2end")
    A.label("L_e2end")
    stamp(A, 8)
    A("s_waitcnt lgkmcnt(0)"); A(f"v_cmp_ne_u32 vcc, 0, {v(vET)}"); ev_check()
    if OPT["EE"]: A(f"s_add_u32 s32, s39, {32*R_EPI}"); ev_set("s32")
    ev_addr(E_WD, 2)
    nv = 0
    for i in range(G2_P, 43):
        k = i - G2_P
        if k == OPT["FD"]:
            A(f"s_waitcnt vmcnt({nv})")
            stamp(A, 9)
            gflag_store(37)
            A("s_cmp_lg_u32 s36, 42"); A("s_cbranch_scc1 L_f2")
            A("s_add_u32 s37, s37, 16"); A(f"s_mov_b64 s[34:35], {s(sV,2)}"); A(f"s_atomic_swap_x2 s[34:35], {s(P_WS,2)}, s37")
            A.label("L_f2")
        if i == G2_NA:
            A("s_mov_b32 m0, s39"); ev_dma(32 * R_WD2)
            ev_wait_sm()
            for p in range(G2_P):
                for l in wd_reads(p, PRE[p]): A(l)
            A(f"s_add_u32 s32, s39, {32*(R_PULL if OPT['EE'] else R_EPI)}"); ev_set("s32")
            A("s_xor_b32 s32, s32, 4"); ev_wait_sm("s32")
        if k == OPT["PP"]:
            spoll_issue(A, "s47")
        A(f"s_add_u32 m0, s45, {4096*pslot(i)}")
        A("s_add_u32 s44, s44, 16384")
        A(f"buffer_load_dwordx4 v46, {s(sWD,4)}, s44 offen lds"); nv += 1
    A("s_mov_b32 m0, s39"); ev_dma(32 * R_BL); nv += 1
    for k in range(4): A(f"v_mov_b32 {v(4+k)}, {v(vR+k)}")
    globals()["vR"] = 4
    vH = 8
    A(f"v_lshlrev_b32 {v(vH)}, 4, {v(vLANE)}")
    stamp(A, 11)
    spoll(A, "s47", 15, True, "h")
    if Stamp.on: A("v_writelane_b32 v255, s46, 31")
    stamp(A, 12)
    NH = len(HW)
    def hload(i):
        if i % 4 == 0 and i: A(f"s_add_u32 s40, s40, 4096")
        A(f"buffer_load_dwordx4 {v(HW[i%NH],4)}, {v(vH)}, {s(sWS,4)}, s40 offen offset:{1024*(i%4)} {SC}")
    def mid(row):
        A(f"s_lshl_b32 s33, {s(sKQ)}, 3"); A(f"s_add_u32 s33, s33, {EV(row, 4)}"); ev_wait("s33", 2)
    for i in range(NH): hload(i)
    LA = 3
    lg = []
    for i in range(43):
        F = PRE[i % G2_P]
        nxt = []
        if G2_P <= i + LA < 43:
            if i + LA == G2_P: mid(R_WD2); lg = []
            if i + LA == G2_NA: mid(R_BL); lg = []
            nxt = wd_reads(i + LA, PRE[(i + LA) % G2_P])
        w = f"s_waitcnt vmcnt({min(43, i + NH) - i - 1})"
        if i in lg: w += f" lgkmcnt({len(lg) - 1 - max(n for n, x in enumerate(lg) if x == i)})"
        A(w)
        lg += [i + LA] * len(nxt)
        for dt in range(2):
            acc = v(G2_ACC + 16*dt, 16)
            if not OPT["NOMF"]: A(f"v_mfma_f32_32x32x16_bf16 {acc}, {v(F+4*dt,4)}, {v(HW[i%NH],4)}, {'0' if i == 0 else acc}")
            for _ in range(2):
                if nxt: A(nxt.pop(0))
        if i == OPT["LATE"]: lg.append(-1)
        if Stamp.on and i in (0, 14, 28): stamp(A, {0: 15, 14: 16, 28: 19}[i]); lg = []
        if i + NH < 43: hload(i + NH)
        if i == OPT["LATE"]:
            A(f"s_add_u32 s33, s39, {32*R_LATE}"); ev_set("s33")
    stamp(A, 13)
    ev_wait(EV(R_XR, 4), 4)
    g2_partials(A, sTB, sKQ)
    A("s_branch L_final")

if Stamp.on: A("v_mov_b32 v255, 0"); stamp(A, 0)
A("s_load_dwordx16 s[64:79], s[0:1], 0")
A("s_load_dwordx16 s[80:95], s[0:1], 64")
A("s_cmp_ge_u32 s2, 256"); A("s_cbranch_scc1 L_done")
A("s_getpc_b64 s[32:33]"); A.label("L_pcref")
A(f"s_lshr_b32 {s(sIDX)}, s2, 3")
A(f"s_lshl_b32 s34, {s(sIDX)}, 11")
A("v_lshl_add_u32 v2, v0, 2, s34")
A("v_min_u32 v2, L_codeend-L_pcref-4, v2")
A("global_load_dword v242, v2, s[32:33]")
A("v_lshrrev_b32 v2, 6, v0")
A(f"v_and_b32 {v(vLANE)}, 63, v0")
A(f"v_readfirstlane_b32 {s(sWAVE)}, v2")
A("v_and_b32 v2, 255, v0"); A("v_lshlrev_b32 v2, 2, v2"); A(f"v_add_u32 v2, {L_CTL}, v2"); A("v_mov_b32 v3, 1"); A("ds_write_b32 v2, v3")
A(f"s_and_b32 {s(sXCD)}, s2, 7")
A(f"s_lshl_b32 {s(sB)}, {s(sXCD)}, 5"); A(f"s_add_u32 {s(sB)}, {s(sB)}, {s(sIDX)}")
A(f"s_and_b32 {s(sA)}, {s(sWAVE)}, 1")
A(f"s_and_b32 s34, {s(sIDX)}, 3"); A("s_lshl_b32 s34, s34, 1"); A(f"s_add_u32 s34, s34, {s(sA)}")
A(f"s_lshl_b32 s35, {s(sXCD)}, 3"); A("s_add_u32 s34, s34, s35"); A("s_lshl_b32 s34, s34, 3")
A(f"s_lshr_b32 s35, {s(sIDX)}, 2"); A(f"s_add_u32 {s(sD)}, s34, s35")
A(f"s_lshr_b32 s34, {s(sWAVE)}, 1"); A("s_cmp_eq_u32 s34, 2"); A("s_cbranch_scc1 L_ld")
A(f"s_lshl_b32 s34, {s(sD)}, 8"); A(f"v_and_b32 v3, 31, v0"); A(f"v_lshl_add_u32 v3, v3, 3, s34")
A(f"s_lshr_b32 s35, {s(sD)}, 1"); A("s_lshl_b32 s35, s35, 2")
A(f"s_lshl_b32 s34, {s(sB)}, 13"); A("s_add_u32 s34, s34, 4096"); A(f"v_lshl_add_u32 v2, {v(vLANE)}, 4, s34")
A("s_waitcnt lgkmcnt(0)")
stamp(A, 1)
A(f"s_cmp_lt_u32 {s(sWAVE)}, 4"); A("s_cbranch_scc1 L_e1")
A(f"s_load_dword s100, {s(P_LDT,2)}, s35")
A(f"s_load_dword s101, {s(P_DSK,2)}, s35")
for i, p in enumerate((P_ARE, P_AIM, P_BRE, P_BIM, P_CRE, P_CIM)): A(f"global_load_dwordx2 {v(PRM4+2*i,2)}, v3, {s(p,2)}")
A("s_branch L_kg")
A.label("L_e1")
if not OPT["LNLATE"]: early_g()
A("s_branch L_g")
A.label("L_ld")
loader(); h_common()
A.label("L_stub")
A("s_sleep 1")
A(f"ds_read_b32 {v(vET)}, {v(vEV)}"); A("s_waitcnt lgkmcnt(0)"); A(f"v_cmp_ne_u32 vcc, 0, {v(vET)}")
A("s_cbranch_vccnz L_stub"); A("s_setpc_b64 s[62:63]")
A(".p2align 6"); A.label("L_kg"); kg()
A(".p2align 6"); A.label("L_g"); gwave()
lines = A.lines + ["    .p2align 6"] + SLOW.lines + ["L_codeend:"]
if OPT["ALIGN"]:
    lines, npm, nn = align8([KNAME + ":"] + lines); lines = lines[1:]; print("align: promoted", npm, "nops", nn)
body = "\n".join(lines) + "\n"
out = HDR + f"; @launch grid=(256,1,1) block=(512,1,1) lds={LDS_TOTAL}\n"
out += f'.amdgcn_target "amdgcn-amd-amdhsa--gfx950"\n.text\n.globl {KNAME}\n.p2align 8\n.type {KNAME},@function\n{KNAME}:\n' + body
out += f""".section .rodata,"a"
.p2align 6
.amdhsa_kernel {KNAME}
  .amdhsa_next_free_vgpr 256
  .amdhsa_next_free_sgpr 102
  .amdhsa_accum_offset 256
  .amdhsa_group_segment_fixed_size 0
  .amdhsa_kernarg_size 128
  .amdhsa_user_sgpr_count 2
  .amdhsa_user_sgpr_kernarg_segment_ptr 1
  .amdhsa_system_sgpr_workgroup_id_x 1
.end_amdhsa_kernel
"""
open(sys.argv[1], "w").write(out)
print("hazards:", check(body))
```

```python
from roles import *
import roles
def pairs(x): return [x, x + 2]
PRM4 = 226
DT, EH, U = 2, 3, 4
Z8, Z1, ZB, ZH, Z16, Z2 = 8, 12, 16, 20, 24, 28
WK, D, PKD, YF, SX, SY, ACC = 32, 64, 128, 160, 192, 200, 208
KO = 64; KADR = 16
def sel_build(A, Dst, vd, T):
    A(f"v_and_b32 {v(T)}, 1, {v(vd)}"); A(f"v_lshlrev_b32 {v(T)}, 4, {v(T)}")
    A(f"v_mov_b32 {v(T+1)}, 0x3f80"); A(f"v_lshlrev_b32 {v(T)}, {v(T)}, {v(T+1)}")
    A(f"v_lshrrev_b32 {v(T+1)}, 1, {v(vd)}")
    for p in range(0, 8, 2):
        A(f"v_cmp_eq_u32 vcc, {p}, {v(T+1)}"); A(f"v_cmp_eq_u32 s[32:33], {p+1}, {v(T+1)}"); A("s_nop 0")
        A(f"v_cndmask_b32 {v(Dst+p)}, 0, {v(T)}, vcc"); A(f"v_cndmask_b32 {v(Dst+p+1)}, 0, {v(T)}, s[32:33]")
def kg4_pre(A):
    T = WK
    A(f"v_lshrrev_b32 {v(T+2)}, 5, {v(vLANE)}")
    A(f"v_and_b32 {v(T+3)}, 31, {v(vLANE)}")
    A(f"v_lshlrev_b32 {v(T+4)}, 4, {v(T+2)}"); A(f"v_sub_u32 {v(T+4)}, {v(T+3)}, {v(T+4)}")
    sel_build(A, SY, T+4, T)
    nib = lambda l: "0x%x" % sum(x << (4*i) for i, x in enumerate(l))
    A(f"v_mov_b32 {v(T+4)}, {nib([0,1,2,3,4,5,6,7])}"); A(f"v_mov_b32 {v(T+5)}, {nib([0,0,2,4,4,4,6,15])}")
    A(f"v_cmp_gt_u32 vcc, 32, {v(vLANE)}"); A(f"v_cmp_gt_u32 s[32:33], 16, {v(T+3)}")
    A(f"v_mov_b32 {v(T)}, {nib([8,14,9,10,11,12,13,0])}")
    A(f"v_cndmask_b32 {v(T+4)}, {v(T+5)}, {v(T+4)}, vcc")
    A(f"v_cndmask_b32 {v(T+4)}, {v(T)}, {v(T+4)}, s[32:33]")
    A(f"v_bfe_u32 {v(T)}, {v(vLANE)}, 3, 1"); A(f"v_and_b32 {v(T+1)}, 3, {v(vLANE)}"); A(f"v_lshl_add_u32 {v(T)}, {v(T)}, 2, {v(T+1)}")
    A(f"v_lshlrev_b32 {v(T)}, 2, {v(T)}"); A(f"v_bfe_u32 {v(T+4)}, {v(T+4)}, {v(T)}, 4")
    A(f"v_bfe_u32 {v(T)}, {v(vLANE)}, 2, 1"); A(f"v_xor_b32 {v(T)}, {v(T)}, {v(T+2)}"); A(f"v_lshl_add_u32 {v(T+4)}, {v(T)}, 4, {v(T+4)}")
    sel_build(A, SX, T+4, T)
    A(f"v_cvt_f32_u32 {v(EH)}, {v(T+2)}"); A(f"v_mul_f32 {v(EH)}, {fl(128.0)}, {v(EH)}")

def kg5_pass(A, sD, sT):
    P = PRM4; T = WK
    A(f"s_bitcmp1_b32 {s(sD)}, 0")
    A(f"s_cselect_b32 {s(sT+2)}, 0, 16")
    A(f"s_lshl_b32 {s(sT)}, {s(sT)}, {s(sT+2)}"); A(f"s_lshl_b32 {s(sT+1)}, {s(sT+1)}, {s(sT+2)}")
    A(f"s_and_b32 {s(sT)}, {s(sT)}, 0xffff0000"); A(f"s_and_b32 {s(sT+1)}, {s(sT+1)}, 0xffff0000")
    hi = struct.unpack("<f", struct.pack("<f", LOG2E))[0]; lo = LOG2E - hi
    A(f"v_mov_b32 {v(T)}, {fl(hi)}")
    A(f"v_mul_f32 {v(T+1)}, {s(sT)}, {v(T)}")
    A(f"v_fma_f32 {v(T+2)}, {s(sT)}, {v(T)}, -{v(T+1)}")
    A(f"v_mov_b32 {v(T+3)}, {fl(lo)}")
    A(f"v_fma_f32 {v(T+2)}, {s(sT)}, {v(T+3)}, {v(T+2)}")
    A(f"v_exp_f32 {v(T+1)}, {v(T+1)}")
    A(f"v_mul_f32 {v(T+2)}, {fl(0.6931471805599453)}, {v(T+2)}")
    A(f"v_fma_f32 {v(T+1)}, {v(T+1)}, {v(T+2)}, {v(T+1)}")
    A(f"v_cvt_pk_bf16_f32 {v(T+1)}, {v(T+1)}, {v(T+1)}")
    A(f"v_and_b32 {v(DT)}, 0xffff0000, {v(T+1)}")
    w = lambda i: WK + 4 * i
    def cm(*tr): cmul2(A, sum([pairs(d) for d, p, z in tr], []), sum([pairs(p) for d, p, z in tr], []), sum([pairs(z) for d, p, z in tr], []))
    def pack(dw, a, b, neg):
        for u in range(2):
            A(f"v_cvt_pk_bf16_f32 {v(PKD+16*u+dw)}, {v(a+2*u)}, {v(b+2*u)}")
            n = "-" if neg else ""
            A(f"v_cvt_pk_bf16_f32 {v(PKD+16*u+8+dw)}, {n}{v(a+2*u+1)}, {n}{v(b+2*u+1)}")
    def transposes(SEL):
        A("s_nop 1")
        for st in range(2):
            for blk in range(4):
                d = v(D + 16*blk, 16)
                A(f"v_mfma_f32_32x32x16_bf16 {d}, {v(PKD+8*blk+4*st,4)}, {v(SEL+4*st,4)}, {'0' if st == 0 else d}")
    def repack(F):
        for k in range(32): A(f"v_cvt_pk_bf16_f32 {v(F+k)}, {v(D+2*k)}, {v(D+2*k+1)}")
    def finish(first):
        repack(WK)
        A("s_nop 1")
        for k in range(8): A(f"v_mfma_f32_32x32x16_bf16 {v(ACC,16)}, {v(WK+4*k,4)}, {v(YF+4*k,4)}, {'0' if first and k == 0 else v(ACC,16)}")
    def unp(d, p, u): A(f"v_lshlrev_b32 {v(d)}, 16, {v(p)}" if u == 0 else f"v_and_b32 {v(d)}, 0xffff0000, {v(p)}")
    for ps in range(1):
        for i in range(2):
            for u in range(2): unp(U+2*i+u, P+i, u)
        for k in range(4): A(f"v_mul_f32 {v(U+k)}, {v(DT)}, {v(U+k)}")
        for u in range(2):
            A(f"v_mul_f32 {v(U+u)}, {fl(LOG2E)}, {v(U+u)}")
            A(f"v_mul_f32 {v(U+2+u)}, {fl(0.15915494309189535)}, {v(U+2+u)}")
        it = [(Z + 2*u, e, u, WK + 4*(2*k+u)) for k, (Z, e) in enumerate(((Z8, fl(8.0)), (ZH, v(EH)), (Z1, "1.0"), (ZB, fl(512.0)))) for u in range(2)]
        for z, e, u, t in it:
            A(f"v_mul_f32 {v(t)}, {e}, {v(U+u)}"); A(f"v_mul_f32 {v(t+1)}, {e}, {v(U+2+u)}")
        for z, e, u, t in it:
            A(f"v_rndne_f32 {v(t+2)}, {v(t+1)}"); A(f"v_exp_f32 {v(t)}, {v(t)}")
        for z, e, u, t in it: A(f"v_sub_f32 {v(t+1)}, {v(t+1)}, {v(t+2)}")
        for z, e, u, t in it:
            A(f"v_cos_f32 {v(t+2)}, {v(t+1)}"); A(f"v_sin_f32 {v(t+3)}, {v(t+1)}")
        A("s_nop 0")
        for z, e, u, t in it:
            A(f"v_mul_f32 {v(z)}, {v(t+2)}, {v(t)}"); A(f"v_mul_f32 {v(z+1)}, {v(t+3)}, {v(t)}")
        cm((Z16, Z8, Z8), (w(1), ZH, Z8), (Z2, Z1, Z1))
        cur = (ZH, w(1))
        for p in range(1, 8):
            nx = (w(2), w(3)) if p % 2 else (w(0), w(1))
            cm((nx[0], cur[0], Z16), (nx[1], cur[1], Z16))
            pack(p - 1, cur[0], cur[1], False); cur = nx
        pack(7, cur[0], cur[1], False)
        transposes(SY)
        for u in range(2):
            for i in range(2): unp(w(6)+2*u+i, P+2+i, u); unp(w(7)+2*u+i, P+4+i, u)
        for k in range(4): A(f"v_mul_f32 {v(w(6)+k)}, {v(DT)}, {v(w(6)+k)}")
        cm((w(1), w(7), w(6)), (w(2), ZH, ZH))
        a, b, c, d, e, f, g, h = [w(i) for i in range(8)]
        cm((a, b, c))
        cm((b, a, Z1), (c, a, Z2), (f, a, Z8), (g, a, ZB))
        cm((d, b, Z2), (e, c, Z2), (h, f, ZB)); pack(0, a, b, True)
        cm((b, d, Z2), (a, g, ZB)); pack(1, c, d, True); pack(4, g, h, True)
        cm((c, e, Z2), (d, b, Z2), (g, h, ZB)); pack(2, e, b, True)
        cm((b, e, ZB), (h, a, ZB)); pack(3, c, d, True); pack(5, a, g, True)
        cm((c, g, ZB)); pack(7, b, f, True)
        pack(6, h, c, True)
        repack(YF)
        transposes(SX)
    A("s_nop 7")
    finish(True)

def kg5_expand(A, sT, sKB, partial):
    T = KADR
    A(f"v_and_b32 {v(T)}, 31, {v(vLANE)}"); A(f"v_lshlrev_b32 {v(T)}, 4, {v(T)}")
    A(f"v_lshrrev_b32 {v(T+1)}, 5, {v(vLANE)}"); A(f"v_lshlrev_b32 {v(T+1)}, 9, {v(T+1)}")
    A(f"v_add_u32 {v(T)}, {v(T)}, {v(T+1)}"); A(f"v_sub_u32 {v(T)}, {4080-3072}, {v(T)}"); A(f"v_add_u32 {v(T)}, {s(sKB)}, {v(T)}")
    A(f"v_lshrrev_b32 {v(T+1)}, 2, {v(vLANE)}"); A(f"v_mul_u32_u24 {v(T+1)}, {KCS}, {v(T+1)}")
    A(f"v_and_b32 {v(T+2)}, 3, {v(vLANE)}"); A(f"v_lshlrev_b32 {v(T+2)}, 4, {v(T+2)}")
    A(f"v_add3_u32 {v(T+1)}, {v(T+1)}, {v(T+2)}, {s(sKB)}")
    for i in range(4): A(f"v_mov_b32 {v(T+4+i)}, 0")
    A(f"v_mov_b32 {v(T+2)}, 0"); A(f"v_writelane_b32 {v(T+2)}, {s(sT+1)}, 0")
    partial()
    A(f"v_and_b32 {v(T+3)}, 1, {v(vLANE)}"); A(f"v_cmp_eq_u32 vcc, 1, {v(T+3)}")
    A(f"v_add_f32 {v(ACC)}, {v(ACC)}, {v(T+2)}")
    C = lambda qq: KO + 16 * qq
    for p in range(4): A(f"v_cvt_pk_bf16_f32 {v(C(0)+p)}, {v(ACC+7-2*p)}, {v(ACC+6-2*p)}")
    for p, (a_, b_) in enumerate(((10,10),(9,9),(9,8),(8,8))): A(f"v_cvt_pk_bf16_f32 {v(C(1)+p)}, {v(ACC+a_)}, {v(ACC+b_)}")
    for qq, lo_ in ((2, 11), (3, 13)):
        c = C(qq)
        A(f"v_cndmask_b32 {v(T+3)}, {v(ACC+lo_)}, {v(ACC+lo_+1)}, vcc")
        A(f"v_cvt_pk_bf16_f32 {v(c)}, {v(ACC+lo_+1)}, {v(ACC+lo_+1)}")
        A(f"v_cvt_pk_bf16_f32 {v(c+1)}, {v(ACC+lo_+1)}, {v(T+3)}")
        A(f"v_cvt_pk_bf16_f32 {v(c+2)}, {v(ACC+lo_)}, {v(ACC+lo_)}")
        A(f"v_cvt_pk_bf16_f32 {v(c+3)}, {v(ACC+lo_)}, {v(ACC+lo_)}")
    N = PKD
    for qq in range(4):
        for k in range(2):
            if qq == 0: A(f"v_mov_b32 {v(N+k)}, 0")
            else: A(f"v_mov_b32_dpp {v(N+2*qq+k)}, {v(C(qq-1)+k)} wave_ror:1 row_mask:0xf bank_mask:0xf")
    for qq in range(4):
        for k in range(2): A(f"v_mov_b32_dpp {v(N+2*qq+k)}, {v(C(qq)+k)} wave_shr:1 row_mask:0xf bank_mask:0xf")
    for qq in range(4):
        R = [C(qq) + k for k in range(4)] + [N + 2*qq, N + 2*qq + 1]
        for k in range(4): A(f"v_alignbit_b32 {v(C(qq)+4+k)}, {v(R[k+1])}, {v(R[k])}, 16")
        for k in range(4): A(f"v_mov_b32 {v(C(qq)+8+k)}, {v(R[k+1])}")
        for k in range(4): A(f"v_alignbit_b32 {v(C(qq)+12+k)}, {v(R[k+2])}, {v(R[k+1])}, 16")

def kg4_store(A):
    T = KADR
    for qq in range(4):
        for cp in range(4): A(f"ds_write_b128 {v(T)}, {v(KO+16*qq+4*cp,4)} offset:{1024*(3-qq) + cp*KCS}")
    A(f"s_mov_b64 exec, 0xffff")
    A(f"ds_write_b128 {v(T+1)}, {v(T+4,4)} offset:4096")
    A(f"s_mov_b64 exec, -1")
```

```python
from asmlib import *
import struct
def fl(x): return "0x%08x" % struct.unpack("<I", struct.pack("<f", x))[0]
LOG2E = 1.4426950408889634

WS_U  = 0x100000; UBLK = 8320
WS_H  = 0x400000
WS_S  = 0xA00000
WS_SIZE = 0x10000000
WSLOT = 12352; NWS = 5; UPOFF = 6176
XSLOT = 16384; NXS = 3
L_W = 0
L_X = L_W + WSLOT * NWS
L_RINGEND = L_X + XSLOT * NXS
KCS = 4160; KROW = 528
L_K = [L_RINGEND, L_RINGEND + 16896]
L_U = [L_RINGEND + 2 * 16896, L_RINGEND + 2 * 16896 + 4608]
L_SSMEND = L_U[1] + 4608
L_ST = L_SSMEND
L_CTL = L_ST + 8192
L_CS = L_CTL + 256
LDS_TOTAL = 163840
sX, sWG, sWU, sWD, sWS, sOUT = 8, 12, 16, 20, 24, 28
KA = 64
P_X, P_ARE, P_AIM, P_BRE, P_BIM, P_CRE, P_CIM, P_LDT, P_DSK, P_BX, P_WG, P_WU, P_WD, P_OUT, P_DBG, P_WS = [KA + 2 * i for i in range(16)]
sWAVE = 3
vLANE = 1

def prologue(A, nwg=256, done="L_done"):
    A(f"s_load_dwordx16 s[64:79], s[0:1], 0")
    A(f"s_load_dwordx16 s[80:95], s[0:1], 64")
    A(f"s_cmp_ge_u32 s2, {nwg}")
    A(f"s_cbranch_scc1 {done}")
    A(f"v_lshrrev_b32 v2, 6, v0")
    A(f"v_and_b32 {v(vLANE)}, 63, v0")
    A(f"v_readfirstlane_b32 {s(sWAVE)}, v2")
    for srd, sz in ((sX, 0x200000), (sWG, 1409024), (sWU, 1409024), (sWD, 1409024), (sWS, WS_SIZE), (sOUT, 0x200000)):
        A(f"s_mov_b32 {s(srd+2)}, {sz}")
        A(f"s_mov_b32 {s(srd+3)}, 0x20000")
    A("s_waitcnt lgkmcnt(0)")
    for srd, p in ((sX, P_X), (sWG, P_WG), (sWU, P_WU), (sWD, P_WD), (sWS, P_WS), (sOUT, P_OUT)):
        A(f"s_mov_b64 {s(srd,2)}, {s(p,2)}")

def ln_loads(A, sB, X=16, vOff=2, sT=32):
    A(f"v_lshlrev_b32 {v(vOff)}, 4, {v(vLANE)}")
    A(f"s_lshl_b32 {s(sT)}, {s(sB)}, 13")
    A(f"s_add_u32 {s(sT+1)}, {s(sT)}, 4096")
    for r in range(8):
        A(f"buffer_load_dwordx4 {v(X+4*r,4)}, {v(vOff)}, {s(sX,4)}, {s(sT + r//4)} offen offset:{(r%4)*1024}")

def reduce8(A, S):
    A("s_nop 2")
    for i in range(4): A(f"v_permlane32_swap_b32 {v(S+i)}, {v(S+i+4)}")
    for i in range(4): A(f"v_add_f32 {v(S+i)}, {v(S+i)}, {v(S+i+4)}")
    A("s_nop 0")
    for i in range(2): A(f"v_permlane16_swap_b32 {v(S+i)}, {v(S+i+2)}")
    for i in range(2): A(f"v_add_f32 {v(S+i)}, {v(S+i)}, {v(S+i+2)}")
    for k in (8, 4, 2, 1):
        A("s_nop 0")
        for i in range(2): A(f"v_add_f32_dpp {v(S+i)}, {v(S+i)}, {v(S+i)} row_ror:{k} row_mask:0xf bank_mask:0xf")

def ln_compute(A, sB, sc, X=16, D=48, T=112, vOff=2, sM=36, sT=32, extra_vm=0, nost=False):
    S = T; ONE = T + 8; LO = T + 9; HI = T + 10; MU = T + 12; M = T + 14; Q = X
    A(f"v_mov_b32 {v(ONE)}, 0x3f803f80")
    A(f"v_mov_b32 {v(LO)}, 0x3f80")
    A(f"v_mov_b32 {v(HI)}, 0x3f800000")
    for q in range(4):
        for r in range(8):
            if q == 0: A(f"s_waitcnt vmcnt({7-r+extra_vm})")
            A(f"v_dot2_f32_bf16 {v(S+r)}, {v(X+4*r+q)}, {v(ONE)}, {'0' if q == 0 else v(S+r)}")
    reduce8(A, S)
    for i in range(2): A(f"v_mul_f32 {v(MU+i)}, {fl(1/512)}, {v(S+i)}")
    A(f"v_cvt_pk_bf16_f32 {v(S+2)}, {v(MU)}, {v(MU+1)}")
    A(f"v_lshlrev_b32 {v(M)}, 16, {v(S+2)}")
    A(f"v_and_b32 {v(M+1)}, 0xffff0000, {v(S+2)}")
    for i in range(2): A(f"v_xor_b32 {v(S+4+i)}, 0x80000000, {v(M+i)}")
    A("s_nop 0")
    for r in range(8): A(f"v_readlane_b32 {s(sM+r)}, {v(S+4+(r&1))}, {16*(r>>1)}")
    for i in range(2): A(f"v_sub_f32 {v(MU+i)}, {v(MU+i)}, {v(M+i)}")
    for r in range(8):
        for q in range(4):
            A(f"v_dot2_f32_bf16 {v(D+8*r+2*q)}, {v(X+4*r+q)}, {v(LO)}, {s(sM+r)}")
            A(f"v_dot2_f32_bf16 {v(D+8*r+2*q+1)}, {v(X+4*r+q)}, {v(HI)}, {s(sM+r)}")
    for q in range(4):
        for r in range(8):
            d = v(D+8*r+2*q, 2)
            if q == 0: A(f"v_pk_mul_f32 {v(Q+2*r,2)}, {d}, {d}")
            else: A(f"v_pk_fma_f32 {v(Q+2*r,2)}, {d}, {d}, {v(Q+2*r,2)}")
    for r in range(8): A(f"v_add_f32 {v(S+r)}, {v(Q+2*r)}, {v(Q+2*r+1)}")
    reduce8(A, S)
    for i in range(2): A(f"v_mul_f32 {v(S+i)}, {fl(1/512)}, {v(S+i)}")
    for i in range(2): A(f"v_fma_f32 {v(S+i)}, -{v(MU+i)}, {v(MU+i)}, {v(S+i)}")
    for i in range(2): A(f"v_max_f32 {v(S+i)}, 0, {v(S+i)}")
    def rb2():
        A(f"v_cvt_pk_bf16_f32 {v(S+2)}, {v(S)}, {v(S+1)}")
        A(f"v_lshlrev_b32 {v(S)}, 16, {v(S+2)}")
        A(f"v_and_b32 {v(S+1)}, 0xffff0000, {v(S+2)}")
    rb2()
    for i in range(2): A(f"v_add_f32 {v(S+i)}, {fl(1e-5)}, {v(S+i)}")
    rb2()
    for i in range(2): A(f"v_sqrt_f32 {v(S+i)}, {v(S+i)}")
    A("s_nop 0")
    rb2()
    A(f"v_rcp_f32 {v(S+5)}, {v(S)}")
    A(f"v_rcp_f32 {v(S+7)}, {v(S+1)}")
    A(f"v_mov_b32 {v(S+4)}, {v(M)}")
    A(f"v_mov_b32 {v(S+6)}, {v(M+1)}")
    for r in range(8): A(f"v_readlane_b32 {s(sM+r)}, {v(S+5+2*(r&1))}, {16*(r>>1)}")
    A(f"s_mul_i32 {s(sT)}, {s(sB)}, {UBLK}")
    A(f"s_add_u32 {s(sT)}, {s(sT)}, {WS_U}")
    A(f"s_add_u32 {s(sT+1)}, {s(sT)}, 4096")
    A(f"s_add_u32 {s(sT+2)}, {s(sT)}, 8192")
    for r in range(8):
        sel = "op_sel_hi:[1,0]" if r % 2 == 0 else "op_sel:[0,1] op_sel_hi:[1,1]"
        for q in range(4):
            d = v(D+8*r+2*q, 2)
            A(f"v_pk_mul_f32 {d}, {d}, {s(sM+(r&~1),2)} {sel}")
    for e in range(8):
        for p in range(4): A(f"v_cvt_pk_bf16_f32 {v(X+4*e+p)}, {v(D+16*p+e)}, {v(D+16*p+8+e)}")
        if not nost: A(f"buffer_store_dwordx4 {v(X+4*e,4)}, {v(vOff)}, {s(sWS,4)}, {s(sT+e//4)} offen offset:{(e%4)*1024} {sc}")
    A(f"v_lshlrev_b32 {v(S)}, 6, {v(vLANE)}")
    for k in range(4): A(f"ds_bpermute_b32 {v(S+4+k)}, {v(S)}, {v(S+4+k)}")
    A("s_waitcnt lgkmcnt(0)")
    A(f"s_mov_b64 exec, 15")
    if not nost: A(f"buffer_store_dwordx4 {v(S+4,4)}, {v(vOff)}, {s(sWS,4)}, {s(sT+2)} offen {sc}")
    A(f"s_mov_b64 exec, -1")

CROWS = [[0,1,2,3,4,5,6,7, 512,516,520, 1024,1032, 1536,1544],
         [256,256,258,260,260,260,262,264, 768,772,776, 1280,1288, 1792,1800]]
def mrow(h, reg): return 8 * (reg >> 2) + 4 * h + (reg & 3)

PLAIN = [True]
def cmul2(A, ds, ps, zs):
    for d, p, z in zip(ds, ps, zs): assert d != p and d != z
    if PLAIN[0]:
        for d, p, z in zip(ds, ps, zs):
            A(f"v_mul_f32 {v(d)}, {v(p)}, {v(z)}")
            A(f"v_mul_f32 {v(d+1)}, {v(p)}, {v(z+1)}")
        for d, p, z in zip(ds, ps, zs):
            A(f"v_fma_f32 {v(d)}, -{v(p+1)}, {v(z+1)}, {v(d)}")
            A(f"v_fmac_f32 {v(d+1)}, {v(p+1)}, {v(z)}")
    else:
        for d, p, z in zip(ds, ps, zs): A(f"v_pk_mul_f32 {v(d,2)}, {v(p,2)}, {v(z,2)} op_sel:[0,0] op_sel_hi:[0,1]")
        for d, p, z in zip(ds, ps, zs): A(f"v_pk_fma_f32 {v(d,2)}, {v(p,2)}, {v(z,2)}, {v(d,2)} op_sel:[1,1,0] op_sel_hi:[1,0,1] neg_lo:[0,1,0]")

def kgen_loads(A, sD, P=8, vOff=2, sT=32):
    A(f"s_lshl_b32 {s(sT+2)}, {s(sD)}, 8")
    A(f"v_lshl_add_u32 {v(vOff)}, {v(vLANE)}, 2, {s(sT+2)}")
    for i, p in enumerate((P_ARE, P_AIM, P_BRE, P_BIM, P_CRE, P_CIM)):
        A(f"global_load_dword {v(P+i)}, {v(vOff)}, {s(p,2)}")
    A(f"s_lshr_b32 {s(sT+2)}, {s(sD)}, 1")
    A(f"s_lshl_b32 {s(sT+2)}, {s(sT+2)}, 2")
    A(f"s_load_dword {s(sT)}, {s(P_LDT,2)}, {s(sT+2)}")
    A(f"s_load_dword {s(sT+1)}, {s(P_DSK,2)}, {s(sT+2)}")

def kgen_compute(A, sD, sKB, P=8, sT=32, extra_vm=0, post_y=None):
    DT = 14; vW = 15; vR = 16
    U = 18
    Z1, Z8, ZB, W = 30, 34, 38, 42
    T = 46
    YF = 64
    XW = 128
    XW2 = 164
    XF = 184
    ACC = 200
    PK = 216
    A("s_waitcnt lgkmcnt(0)")
    A(f"s_bitcmp1_b32 {s(sD)}, 0")
    A(f"s_cselect_b32 {s(sT+2)}, 0, 16")
    A(f"s_lshl_b32 {s(sT)}, {s(sT)}, {s(sT+2)}")
    A(f"s_lshl_b32 {s(sT+1)}, {s(sT+1)}, {s(sT+2)}")
    A(f"s_and_b32 {s(sT)}, {s(sT)}, 0xffff0000")
    A(f"s_and_b32 {s(sT+1)}, {s(sT+1)}, 0xffff0000")
    hi = struct.unpack("<f", struct.pack("<f", LOG2E))[0]; lo = LOG2E - hi
    A(f"v_mov_b32 {v(T)}, {fl(hi)}")
    A(f"v_mul_f32 {v(T+1)}, {s(sT)}, {v(T)}")
    A(f"v_fma_f32 {v(T+2)}, {s(sT)}, {v(T)}, -{v(T+1)}")
    A(f"v_mov_b32 {v(T+3)}, {fl(lo)}")
    A(f"v_fma_f32 {v(T+2)}, {s(sT)}, {v(T+3)}, {v(T+2)}")
    A(f"v_exp_f32 {v(T+1)}, {v(T+1)}")
    A(f"v_mul_f32 {v(T+2)}, {fl(0.6931471805599453)}, {v(T+2)}")
    A(f"v_fma_f32 {v(T+1)}, {v(T+1)}, {v(T+2)}, {v(T+1)}")
    A(f"v_cvt_pk_bf16_f32 {v(T+1)}, {v(T+1)}, {v(T+1)}")
    A(f"v_and_b32 {v(DT)}, 0xffff0000, {v(T+1)}")
    A(f"v_lshl_add_u32 {v(vW)}, {v(vLANE)}, 3, {s(sKB)}")
    A(f"v_and_b32 {v(T)}, 31, {v(vLANE)}")
    A(f"v_mul_u32_u24 {v(T)}, {KROW}, {v(T)}")
    A(f"v_lshrrev_b32 {v(T+1)}, 5, {v(vLANE)}")
    A(f"v_lshlrev_b32 {v(T+1)}, 4, {v(T+1)}")
    A(f"v_add3_u32 {v(vR)}, {v(T)}, {v(T+1)}, {s(sKB)}")
    A(f"v_mov_b32 {v(PK)}, 0x3f80")
    A(f"v_mov_b32 {v(PK+1)}, 0x3f80")
    A(f"ds_write_b64 {v(vW)}, {v(PK,2)}")
    A(f"s_waitcnt vmcnt({extra_vm})")
    for i in range(6):
        A(f"v_lshlrev_b32 {v(U+2*i)}, 16, {v(P+i)}")
        A(f"v_and_b32 {v(U+2*i+1)}, 0xffff0000, {v(P+i)}")
    for u in range(2):
        A(f"v_mul_f32 {v(U+u)}, {v(DT)}, {v(U+u)}")
        A(f"v_mul_f32 {v(U+2+u)}, {v(DT)}, {v(U+2+u)}")
    for u in range(2):
        A(f"v_mul_f32 {v(U+u)}, {fl(LOG2E)}, {v(U+u)}")
        A(f"v_mul_f32 {v(U+2+u)}, {fl(0.15915494309189535)}, {v(U+2+u)}")
    def anchor(Z, e):
        for u in range(2):
            t = T + 4 * u
            A(f"v_mul_f32 {v(t)}, {fl(e)}, {v(U+u)}")
            A(f"v_mul_f32 {v(t+1)}, {fl(e)}, {v(U+2+u)}")
            A(f"v_exp_f32 {v(t)}, {v(t)}")
            A(f"v_rndne_f32 {v(t+2)}, {v(t+1)}")
            A(f"v_sub_f32 {v(t+1)}, {v(t+1)}, {v(t+2)}")
            A(f"v_cos_f32 {v(t+2)}, {v(t+1)}")
            A(f"v_sin_f32 {v(t+3)}, {v(t+1)}")
        A("s_nop 0")
        for u in range(2):
            t = T + 4 * u
            A(f"v_mul_f32 {v(Z+2*u)}, {v(t+2)}, {v(t)}")
            A(f"v_mul_f32 {v(Z+2*u+1)}, {v(t+3)}, {v(t)}")
    anchor(Z8, 8.0)
    pk = [0]
    def emit_row(rows, src, neg):
        b = PK + 2 * (pk[0] % 4); pk[0] += 1
        for u in range(2):
            A(f"v_cvt_pk_bf16_f32 {v(b+u)}, {v(src+2*u)}, {'-' if neg else ''}{v(src+2*u+1)}")
        for r in rows: A(f"ds_write_b64 {v(vW)}, {v(b,2)} offset:{r*KROW}")
    pk[0] = 1
    emit_row([1], Z8, False)
    cur = Z8
    Ya, Yb = T + 8, T + 12
    for j in range(2, 32):
        nxt = Ya if j % 2 == 0 else Yb
        cmul2(A, [nxt, nxt+2], [cur, cur+2], [Z8, Z8+2])
        emit_row([j], nxt, False)
        cur = nxt
    for k in range(16): A(f"ds_read_b128 {v(YF+4*k,4)}, {v(vR)} offset:{32*k}")
    if post_y: post_y()
    anchor(Z1, 1.0)
    anchor(ZB, 256.0)
    for u in range(2):
        A(f"v_mul_f32 {v(T+2*u)}, {v(DT)}, {v(U+4+u)}")
        A(f"v_mul_f32 {v(T+2*u+1)}, {v(DT)}, {v(U+6+u)}")
        A(f"v_mov_b32 {v(T+4+2*u)}, {v(U+8+u)}")
        A(f"v_mov_b32 {v(T+5+2*u)}, {v(U+10+u)}")
    x = lambda i: XW + 4 * i
    cmul2(A, [x(0), x(0)+2], [T+4, T+6], [T, T+2])
    where = {}
    for h in range(2):
        for reg, c in enumerate(CROWS[h]): where.setdefault(c, []).append(mrow(h, reg))
    emit_row(where[0], x(0), True)
    for i in range(1, 8):
        cmul2(A, [x(i), x(i)+2], [x(i-1), x(i-1)+2], [Z1, Z1+2])
        emit_row(where[i], x(i), True)
    cmul2(A, [x(8), x(8)+2], [x(0), x(0)+2], [Z8, Z8+2])
    loc = {i: x(i) for i in (0, 2, 4, 6, 8)}
    alt = {0: XW2, 2: XW2+4, 4: XW2+8, 6: XW2+12, 8: XW2+16}
    for q in range(1, 8):
        offs = (0,2,4,6,8) if q == 1 else (0,4,8) if q < 4 else (0,8)
        for o in offs:
            cmul2(A, [alt[o], alt[o]+2], [loc[o], loc[o]+2], [ZB, ZB+2])
            loc[o], alt[o] = alt[o], loc[o]
            emit_row(where[256*q+o], loc[o], True)
    for k in range(4): A(f"ds_read_b128 {v(XF+4*k,4)}, {v(vR)} offset:{32*k}")
    for k in range(16):
        A(f"s_waitcnt lgkmcnt({min(3, 15-k)})")
        c = "0" if k == 0 else v(ACC, 16)
        A(f"v_mfma_f32_32x32x16_bf16 {v(ACC,16)}, {v(XF+4*(k%4),4)}, {v(YF+4*k,4)}, {c}")
        if k + 4 < 16: A(f"ds_read_b128 {v(XF+4*(k%4),4)}, {v(vR)} offset:{32*(k+4)}")
    A(f"v_and_b32 {v(T)}, 31, {v(vLANE)}")
    A(f"v_lshlrev_b32 {v(T)}, 4, {v(T)}")
    A(f"v_lshrrev_b32 {v(T+1)}, 5, {v(vLANE)}")
    A(f"v_lshlrev_b32 {v(T+1)}, 9, {v(T+1)}")
    A(f"v_add_u32 {v(T)}, {v(T)}, {v(T+1)}")
    A(f"v_sub_u32 {v(T)}, {4080-3072}, {v(T)}")
    A(f"v_add_u32 {v(T)}, {s(sKB)}, {v(T)}")
    A(f"v_and_b32 {v(T+1)}, 1, {v(vLANE)}")
    A(f"v_cmp_eq_u32 vcc, 1, {v(T+1)}")
    A(f"v_mov_b32 {v(T+2)}, 0")
    A(f"v_writelane_b32 {v(T+2)}, {s(sT+1)}, 0")
    for i in range(4): A(f"v_mov_b32 {v(T+12+i)}, 0")
    A(f"v_add_f32 {v(ACC)}, {v(ACC)}, {v(T+2)}")
    C = YF
    for p in range(4): A(f"v_cvt_pk_bf16_f32 {v(C+p)}, {v(ACC+7-2*p)}, {v(ACC+6-2*p)}")
    A(f"ds_write_b128 {v(T)}, {v(C,4)} offset:3072")
    for p, (a_, b_) in enumerate(((10,10),(9,9),(9,8),(8,8))): A(f"v_cvt_pk_bf16_f32 {v(C+4+p)}, {v(ACC+a_)}, {v(ACC+b_)}")
    A(f"ds_write_b128 {v(T)}, {v(C+4,4)} offset:2048")
    for qq, lo_ in ((2, 11), (3, 13)):
        c = C + 4 * qq
        A(f"v_cndmask_b32 {v(T+3)}, {v(ACC+lo_)}, {v(ACC+lo_+1)}, vcc")
        A(f"v_cvt_pk_bf16_f32 {v(c)}, {v(ACC+lo_+1)}, {v(ACC+lo_+1)}")
        A(f"v_cvt_pk_bf16_f32 {v(c+1)}, {v(ACC+lo_+1)}, {v(T+3)}")
        A(f"v_cvt_pk_bf16_f32 {v(c+2)}, {v(ACC+lo_)}, {v(ACC+lo_)}")
        A(f"v_cvt_pk_bf16_f32 {v(c+3)}, {v(ACC+lo_)}, {v(ACC+lo_)}")
        A(f"ds_write_b128 {v(T)}, {v(c,4)} offset:{1024*(3-qq)}")
    A(f"v_lshrrev_b32 {v(T+4)}, 2, {v(vLANE)}")
    A(f"v_mul_u32_u24 {v(T+4)}, {KCS}, {v(T+4)}")
    A(f"v_and_b32 {v(T+5)}, 3, {v(vLANE)}")
    A(f"v_lshlrev_b32 {v(T+5)}, 4, {v(T+5)}")
    A(f"v_add3_u32 {v(T+4)}, {v(T+4)}, {v(T+5)}, {s(sKB)}")
    A(f"s_mov_b64 exec, 0xffff")
    A(f"ds_write_b128 {v(T+4)}, {v(T+12,4)} offset:4096")
    A(f"s_mov_b64 exec, -1")
    A(f"v_lshl_add_u32 {v(T)}, {v(vLANE)}, 4, {s(sKB)}")
    Rr = YF + 16
    for it in range(4):
        A(f"ds_read_b128 {v(Rr+8*it,4)}, {v(T)} offset:{1024*it}")
        A(f"ds_read_b64 {v(Rr+8*it+4,2)}, {v(T)} offset:{1024*it+16}")
    for it in range(4):
        R = Rr + 8 * it; O = XW + 12 * it
        A(f"s_waitcnt lgkmcnt({min(15, 6 - 2*it + 3*it)})")
        for k in range(4): A(f"v_alignbit_b32 {v(O+k)}, {v(R+k+1)}, {v(R+k)}, 16")
        A(f"ds_write_b128 {v(T)}, {v(O,4)} offset:{KCS+1024*it}")
        for k in range(4): A(f"v_mov_b32 {v(O+4+k)}, {v(R+k+1)}")
        A(f"ds_write_b128 {v(T)}, {v(O+4,4)} offset:{2*KCS+1024*it}")
        for k in range(4): A(f"v_alignbit_b32 {v(O+8+k)}, {v(R+k+2)}, {v(R+k+1)}, 16")
        A(f"ds_write_b128 {v(T)}, {v(O+8,4)} offset:{3*KCS+1024*it}")

def u_zero(A, sUB, T=46):
    for i in range(4): A(f"v_mov_b32 {v(T+i)}, 0")
    A(f"v_lshl_add_u32 {v(T+4)}, {v(vLANE)}, 4, {s(sUB)}")
    A(f"s_mov_b64 exec, 0xffffffff")
    A(f"ds_write_b128 {v(T+4)}, {v(T,4)}")
    A(f"s_mov_b64 exec, -1")

def u_gather(A, sD, sUB, sc, vT=46, sT=32):
    A(f"v_mul_u32_u24 {v(vT)}, {UBLK}, {v(vLANE)}")
    A(f"s_and_b32 {s(sT)}, {s(sD)}, 7")
    A(f"s_lshl_b32 {s(sT)}, {s(sT)}, 10")
    A(f"s_lshr_b32 {s(sT+1)}, {s(sD)}, 3")
    A(f"s_lshl_b32 {s(sT+1)}, {s(sT+1)}, 4")
    A(f"s_add_u32 {s(sT)}, {s(sT)}, {s(sT+1)}")
    A(f"s_add_u32 {s(sT)}, {s(sT)}, {WS_U}")
    for i in range(4):
        A(f"s_add_u32 m0, {s(sUB)}, {512+1024*i}")
        if i: A(f"s_add_u32 {s(sT)}, {s(sT)}, {64*UBLK}")
        else: A("s_nop 0")
        A(f"buffer_load_dwordx4 {v(vT)}, {s(sWS,4)}, {s(sT)} offen {sc} lds")

CV_ACC = 32; CV_F = 64
def conv_main(A, sKB, sUB, sNH, filler=None, vA=8, vB=9, T=10, il=False):
    A(f"v_and_b32 {v(T)}, 3, {v(vLANE)}")
    A(f"v_sub_u32 {v(T)}, 3, {v(T)}")
    A(f"v_mul_u32_u24 {v(T)}, {KCS}, {v(T)}")
    A(f"v_bfe_u32 {v(T+1)}, {v(vLANE)}, 2, 2")
    A(f"v_lshlrev_b32 {v(T+1)}, 3, {v(T+1)}")
    A(f"v_sub_u32 {v(T)}, {v(T)}, {v(T+1)}")
    A(f"v_and_b32 {v(T+2)}, 48, {v(vLANE)}")
    A(f"s_lshl_b32 s32, {s(sNH)}, 8")
    A(f"s_sub_u32 s33, {s(sKB)}, s32")
    A(f"s_add_u32 s33, s33, {24+256}")
    A(f"v_add3_u32 {v(vA)}, {v(T)}, {v(T+2)}, s33")
    A(f"v_and_b32 {v(T)}, 15, {v(vLANE)}")
    A(f"v_lshlrev_b32 {v(T)}, 5, {v(T)}")
    m_ = 2 if il else 1
    if il:
        A(f"v_add_u32 {v(T)}, {v(T)}, {v(T+2)}")
        A("s_lshl_b32 s32, s32, 1")
    A(f"s_sub_u32 s33, {s(sUB)}, s32")
    A(f"s_add_u32 s33, s33, {m_*(480-192)}")
    if il: A(f"v_lshl_add_u32 {v(vB)}, {v(T)}, 1, s33")
    else: A(f"v_add3_u32 {v(vB)}, {v(T)}, {v(T+2)}, s33")
    def reads(i):
        F = CV_F + 64 * (i & 1); L = []
        order = [("B", 0), ("A", 0)]
        for k in range(1, 8): order += [("B", k), ("A", k)]
        for kind, k in order:
            if kind == "A":
                o = 64 * (59 - i - 8 * k)
                L.append(f"ds_read_b64 {v(F+4*k,2)}, {v(vA)} offset:{o}")
                L.append(f"ds_read_b64 {v(F+4*k+2,2)}, {v(vA)} offset:{o+8}")
            else:
                L.append(f"ds_read_b128 {v(F+32+4*k,4)}, {v(vB)} offset:{m_*(512*k+64*(3-i))}")
        return L
    for l in reads(0): A(l)
    first = set()
    nm = 0
    for i in range(4):
        F = CV_F + 64 * (i & 1)
        nxt = reads(i + 1) if i < 3 else []
        pairs = sorted([(a, b) for a in range(8) for b in range(8) if a + b <= 7], key=lambda p: (max(p), p[0] + p[1]))
        if i > 0: A("s_waitcnt lgkmcnt(0)")
        lastmax = -1
        for n, (a, b) in enumerate(pairs):
            if i == 0 and max(a, b) > lastmax and lastmax < 4:
                lastmax = max(a, b)
                A(f"s_waitcnt lgkmcnt({0 if lastmax == 4 else min(15, 3*(7-lastmax))})")
            c = a + b
            acc = v(CV_ACC + 4 * c, 4)
            src = acc if c in first else "0"
            first.add(c)
            A(f"v_mfma_f32_16x16x32_bf16 {acc}, {v(F+4*a,4)}, {v(F+32+4*b,4)}, {src}")
            nm += 1
            if nxt and (i > 0 or lastmax == 4):
                A(nxt.pop(0))
                if i == 0 and nxt: A(nxt.pop(0))
            if filler: filler(nm)
        assert not nxt

def conv_finish(A, sD, sNH, sXB, sync, sc, T=10, sT=32, clean=False):
    A(f"v_lshl_add_u32 {v(T)}, {v(vLANE)}, 4, {s(sXB)}")
    A(f"s_lshl_b32 {s(sT)}, {s(sNH)}, 12")
    A(f"v_add_u32 {v(T+1)}, {s(sT)}, {v(T)}")
    A(f"s_xor_b32 {s(sT)}, {s(sT)}, 4096")
    A(f"v_add_u32 {v(T)}, {s(sT)}, {v(T)}")
    l1 = A.new("L_cf"); l2 = A.new("L_cf")
    A(f"s_cmp_eq_u32 {s(sNH)}, 0")
    A("s_nop 4")
    A(f"s_cbranch_scc1 {l1}")
    for k in range(4): A(f"ds_write_b128 {v(T+1)}, {v(CV_ACC+4*k,4)} offset:{1024*k}")
    A("s_nop 1")
    for k in range(16): A(f"v_mov_b32 {v(CV_F+16+k)}, {v(CV_ACC+16+k)}")
    A(f"s_branch {l2}")
    A.label(l1)
    for k in range(4): A(f"ds_write_b128 {v(T+1)}, {v(CV_ACC+16+4*k,4)} offset:{1024*k}")
    for k in range(16): A(f"v_mov_b32 {v(CV_F+16+k)}, {v(CV_ACC+k)}")
    A.label(l2)
    A("s_waitcnt lgkmcnt(0)")
    sync()
    for k in range(4): A(f"ds_read_b128 {v(CV_F+4*k,4)}, {v(T)} offset:{1024*k}")
    A(f"v_and_b32 {v(T+2)}, 15, {v(vLANE)}")
    A(f"v_lshlrev_b32 {v(T+2)}, 5, {v(T+2)}")
    A(f"v_bfe_u32 {v(T+3)}, {v(vLANE)}, 4, 1")
    A(f"v_lshlrev_b32 {v(T+3)}, 9, {v(T+3)}")
    A(f"v_lshrrev_b32 {v(T+4)}, 5, {v(vLANE)}")
    A(f"v_lshlrev_b32 {v(T+4)}, 4, {v(T+4)}")
    A(f"v_add3_u32 {v(T+2)}, {v(T+2)}, {v(T+3)}, {v(T+4)}")
    A(f"s_lshl_b32 {s(sT)}, {s(sD)}, 12")
    A(f"s_lshl_b32 {s(sT+1)}, {s(sNH)}, 11")
    A(f"s_add_u32 {s(sT)}, {s(sT)}, {s(sT+1)}")
    A(f"s_add_u32 {s(sT)}, {s(sT)}, {WS_S}")
    A("s_waitcnt lgkmcnt(0)")
    for k in range(16): A(f"v_add_f32 {v(CV_F+k)}, {v(CV_F+k)}, {v(CV_F+16+k)}")
    O = CV_F + 32
    for k in range(8): A(f"v_cvt_pk_bf16_f32 {v(O+k)}, {v(CV_F+2*k)}, {v(CV_F+2*k+1)}")
    if clean:
        for k in range(8): A(f"v_min_u32 {v(O+k)}, -2, {v(O+k)}")
    A("s_nop 1")
    for pr in range(2):
        A(f"v_permlane16_swap_b32 {v(O+4*pr)}, {v(O+4*pr+2)}")
        A(f"v_permlane16_swap_b32 {v(O+4*pr+1)}, {v(O+4*pr+3)}")
    for pr in range(2):
        A(f"buffer_store_dwordx4 {v(O+4*pr,4)}, {v(T+2)}, {s(sWS,4)}, {s(sT)} offen offset:{1024*pr} {sc}")

C_FULL = L_CTL
C_FREE = L_CTL + 16
L_JUNK = L_CTL + 256
def sig_addr(A, vD, sAddr):
    A(f"v_lshlrev_b32 {v(vD)}, 2, {v(vLANE)}")
    A(f"v_add_u32 {v(vD)}, {L_JUNK}, {v(vD)}")
    A(f"v_writelane_b32 {v(vD)}, {sAddr}, 0")
def poll_addr(A, vD, base, n):
    A(f"v_and_b32 {v(vD)}, {n-1}, {v(vLANE)}")
    A(f"v_lshlrev_b32 {v(vD)}, 2, {v(vD)}")
    A(f"v_add_u32 {v(vD)}, {base}, {v(vD)}")
def lds_spin(A, vAddr, vT, n):
    lp = A.new("L_sp")
    A.label(lp)
    A(f"ds_read_b32 {v(vT)}, {v(vAddr)}")
    A("s_waitcnt lgkmcnt(0)")
    A(f"v_cmp_gt_u32 vcc, {n}, {v(vT)}")
    A(f"s_cbranch_vccnz {lp}")
def ctl_init(A, T=4):
    A(f"v_lshlrev_b32 {v(T)}, 2, {v(vLANE)}")
    A(f"v_add_u32 {v(T)}, {L_CTL}, {v(T)}")
    A(f"v_mov_b32 {v(T+1)}, 0")
    A(f"ds_write_b32 {v(T)}, {v(T+1)}")
NSTAGE = 16
L_CSX = L_ST

def lds_signal(A, vAddr, vTmp, val, off):
    A(f"v_mov_b32 {v(vTmp)}, {val}")
    A(f"ds_write_b32 {v(vAddr)}, {v(vTmp)} offset:{off}")

def g1_loader(A, which, sRT, sFC, sROT, D=13, Vw=8, Vx=12, vZ=16, T=18, sT=40, pre=None, post=None):
    srdW = sWG if which == 0 else sWU
    A(f"s_mov_b32 {s(sT)}, 2752")
    A(f"s_mov_b32 {s(sT+1)}, 0x15555556")
    for j in range(3):
        A(f"v_add_u32 {v(T)}, {64*j}, {v(vLANE)}")
        A(f"v_mul_hi_u32 {v(T+1)}, {v(T)}, {s(sT+1)}")
        A(f"v_mul_u32_u24 {v(T+2)}, 12, {v(T+1)}")
        A(f"v_sub_u32 {v(T+2)}, {v(T)}, {v(T+2)}")
        A(f"v_mul_u32_u24 {v(T+1)}, {s(sT)}, {v(T+1)}")
        A(f"v_lshl_add_u32 {v(Vw+j)}, {v(T+2)}, 4, {v(T+1)}")
        if j: A(f"v_subrev_u32 {v(Vw+j)}, {1024*j}, {v(Vw+j)}")
    A(f"v_lshrrev_b32 {v(T)}, 3, {v(vLANE)}")
    A(f"v_lshlrev_b32 {v(T)}, 10, {v(T)}")
    A(f"v_lshrrev_b32 {v(T+1)}, 4, {v(vLANE)}")
    A(f"v_and_b32 {v(T+2)}, 7, {v(vLANE)}")
    A(f"v_xor_b32 {v(T+1)}, {v(T+1)}, {v(T+2)}")
    A(f"v_lshl_add_u32 {v(Vx)}, {v(T+1)}, 4, {v(T)}")
    A(f"v_xor_b32 {v(Vx+1)}, 64, {v(Vx)}")
    A(f"v_add_u32 {v(Vx+2)}, {2*7168}, {v(Vx)}")
    A(f"v_add_u32 {v(Vx+3)}, {3*7168}, {v(Vx+1)}")
    A(f"v_add_u32 {v(Vx+1)}, {7168}, {v(Vx+1)}")
    A(f"s_mov_b32 {s(sT)}, {C_FULL + 4*which}")
    sig_addr(A, vZ, s(sT))
    poll_addr(A, vZ+1, C_FREE, 4)
    sXB, sWB, sC, sXo, sWo = sT+2, sT+3, sT+4, sT+5, sT+6
    A(f"s_lshl_b32 {s(sXB)}, {s(sRT)}, 17")
    if which: A(f"s_add_u32 {s(sXB)}, {s(sXB)}, 65536")
    A(f"s_mul_i32 {s(sWB)}, {s(sFC)}, 192")
    A(f"s_mov_b32 {s(sC)}, {s(sROT)}")
    npre = (pre() or 0) if pre else 0
    ops = []
    for st in range(NSTAGE):
        if st % 2 == 0:
            for i in range(8): ops.append((st, "x", i))
        for i in range(6): ops.append((st, "w", i))
    last_of = {}
    for n, (st, k, i) in enumerate(ops): last_of[st] = n
    signaled = 0
    for n, (st, k, i) in enumerate(ops):
        firstop = n == 0 or ops[n-1][0] != st
        if firstop and st % 2 == 0:
            A(f"s_lshl_b32 {s(sXo)}, {s(sC)}, 7")
            A(f"s_add_u32 {s(sXo)}, {s(sXo)}, {s(sXB)}")
            A(f"s_mul_i32 {s(sWo)}, {s(sC)}, {64*2752}")
            A(f"s_add_u32 {s(sWo)}, {s(sWo)}, {s(sWB)}")
            A(f"s_add_u32 {s(sC)}, {s(sC)}, 1")
            A(f"s_and_b32 {s(sC)}, {s(sC)}, 7")
        if firstop and st >= NWS:
            lds_spin(A, vZ+1, T, st-NWS+1)
        if n >= D:
            A(f"s_waitcnt vmcnt({D-1})")
            done = n - D
            if done == last_of[signaled]:
                signaled += 1
                lds_signal(A, vZ, T, signaled, 0)
        if k == "x":
            if i % 4 == 0:
                A(f"s_mov_b32 m0, {L_X + ((st//2) % NXS) * XSLOT + (8*which + i) * 1024}")
                if i: A(f"s_add_u32 {s(sXo)}, {s(sXo)}, 32768")
                else: A("s_nop 0")
            A(f"buffer_load_dwordx4 {v(Vx + i%4)}, {s(sX,4)}, {s(sXo)} offen offset:{1024*(i%4)} lds")
        else:
            if i % 3 == 0:
                A(f"s_mov_b32 m0, {L_W + (st % NWS) * WSLOT + which * UPOFF + (i//3) * 3072}")
                if i or st % 2: A(f"s_add_u32 {s(sWo)}, {s(sWo)}, {16*2752}")
                else: A("s_nop 0")
            A(f"buffer_load_dwordx4 {v(Vw + i%3)}, {s(srdW,4)}, {s(sWo)} offen offset:{1024*(i%3)} lds")
    npost = (post() or 0) if post else 0
    while signaled < NSTAGE:
        A(f"s_waitcnt vmcnt({len(ops) - 1 - last_of[signaled] + npost})")
        signaled += 1
        lds_signal(A, vZ, T, signaled, 0)

G_ACC = 64
G_CS = 160
G_SEL = 172
G_F = 176
def g1_setup(A, sMH, sNH, vW=8, vXs=9, vC=13, T=16):
    A(f"v_bfe_u32 {v(T)}, {v(vLANE)}, 4, 1")
    A(f"v_mul_u32_u24 {v(T)}, {UPOFF}, {v(T)}")
    A(f"v_lshrrev_b32 {v(T+1)}, 5, {v(vLANE)}")
    A(f"v_bfe_u32 {v(T+2)}, {v(vLANE)}, 2, 2")
    A(f"v_lshl_add_u32 {v(T+2)}, {v(T+1)}, 3, {v(T+2)}")
    A(f"v_mul_u32_u24 {v(T+2)}, 192, {v(T+2)}")
    A(f"v_and_b32 {v(T+3)}, 3, {v(vLANE)}")
    A(f"v_lshl_add_u32 {v(T+2)}, {v(T+3)}, 3, {v(T+2)}")
    A(f"s_mul_i32 s32, {s(sMH)}, 96")
    A(f"v_add3_u32 {v(vW)}, {v(T)}, {v(T+2)}, s32")
    A(f"v_and_b32 {v(T)}, 31, {v(vLANE)}")
    A(f"v_bfe_u32 {v(T+2)}, {v(vLANE)}, 1, 3")
    A(f"v_xor_b32 {v(T+2)}, {v(T+2)}, {v(T+1)}")
    A(f"v_lshlrev_b32 {v(T+2)}, 4, {v(T+2)}")
    A(f"v_lshl_add_u32 {v(T)}, {v(T)}, 7, {v(T+2)}")
    A(f"s_lshl_b32 s32, {s(sNH)}, 13")
    A(f"s_add_u32 s32, s32, {L_X}")
    for k in range(4):
        A(f"v_xor_b32 {v(T+3)}, {32*k}, {v(T)}")
        A(f"v_add_u32 {v(vXs+k)}, s32, {v(T+3)}")
    poll_addr(A, vC, C_FULL, 2)
    A(f"s_lshl_b32 s32, {s(sWAVE)}, 2")
    A(f"s_add_u32 s32, s32, {C_FREE}")
    sig_addr(A, vC+1, "s32")
    A(f"v_lshrrev_b32 {v(T)}, 2, {v(vLANE)}")
    A(f"v_lshrrev_b32 {v(T+1)}, 4, {v(vLANE)}")
    A(f"v_xor_b32 {v(T)}, {v(T)}, {v(T+1)}")
    A(f"v_and_b32 {v(T)}, 1, {v(T)}")
    A(f"v_cmp_eq_u32 vcc, 0, {v(T)}")
    A(f"v_mov_b32 {v(T+1)}, 0x3f803f80")
    A("s_nop 0")
    for k in range(4): A(f"v_cndmask_b32 {v(G_SEL+k)}, 0, {v(T+1)}, vcc")

def g1_main(A, sNH, vW=8, vXs=9, vC=13, T=16):
    def reads(ks):
        st, i = ks // 2, ks % 2
        F = G_F + 20 * (ks & 1); L = []
        wo = L_W + (st % NWS) * WSLOT + i * 3072
        xo = ((ks // 4) % NXS) * XSLOT
        L.append(f"ds_read_b128 {v(F+12,4)}, {v(vXs + ks%4)} offset:{xo}")
        for mt in range(3):
            for h in range(2): L.append(f"ds_read_b64_tr_b16 {v(F+4*mt+2*h,2)}, {v(vW)} offset:{wo + h*768 + mt*32}")
            if mt == 0: L.append(f"ds_read_b128 {v(F+16,4)}, {v(vXs + ks%4)} offset:{xo+4096}")
        return L
    def wait_full(n, pre_read):
        ok = A.new("L_gk")
        if pre_read:
            A(f"v_cmp_gt_u32 vcc, {n}, {v(T)}")
            A(f"s_cbranch_vccz {ok}")
        lds_spin(A, vC, T, n)
        A.label(ok)
    for k in range(12): A(f"v_mov_b32 {v(G_CS+k)}, 0")
    wait_full(1, False)
    for l in reads(0): A(l)
    for ks in range(32):
        F = G_F + 20 * (ks & 1)
        A("s_waitcnt lgkmcnt(0)")
        if ks % 2 == 1:
            lds_signal(A, vC+1, T+2, ks // 2 + 1, 0)
            if ks < 31: wait_full(ks // 2 + 2, True)
        nxt = reads(ks + 1) if ks < 31 else []
        if ks % 2 == 0 and ks < 30: nxt.append(f"ds_read_b32 {v(T)}, {v(vC)}")
        for mt in range(3):
            for nt in range(2):
                acc = v(G_ACC + 16*(2*mt+nt), 16)
                A(f"v_mfma_f32_32x32x16_bf16 {acc}, {v(F+4*mt,4)}, {v(F+12+4*nt,4)}, {'0' if ks == 0 else acc}")
                for _ in range(2):
                    if nxt: A(nxt.pop(0))
        assert not nxt
        if ks == 30:
            A(f"s_mul_i32 s32, {s(sWAVE)}, 768")
            A(f"s_add_u32 s32, s32, {L_CSX}")
            A(f"v_lshl_add_u32 {v(T+4)}, {v(vLANE)}, 2, s32")
            for mt in range(3): A(f"ds_write_b32 {v(T+4)}, {v(G_CS+4*mt)} offset:{256*mt}")
        sk = None
        if ks < 30:
            sk = A.new("L_cs")
            A(f"s_cmp_lg_u32 {s(sNH)}, {ks & 1}")
            A(f"s_cbranch_scc1 {sk}")
        for mt in range(3):
            A(f"v_mfma_f32_16x16x32_bf16 {v(G_CS+4*mt,4)}, {v(G_SEL,4)}, {v(F+4*mt,4)}, {v(G_CS+4*mt,4)}")
        if sk: A.label(sk)

def g1_stats_load(A, sRT, sNH, sc, ST=20, T=24):
    A(f"v_bfe_u32 {v(T)}, {v(vLANE)}, 3, 2")
    A(f"v_mul_u32_u24 {v(T)}, {UBLK}, {v(T)}")
    A(f"v_and_b32 {v(T+1)}, 7, {v(vLANE)}")
    A(f"v_lshl_add_u32 {v(T)}, {v(T+1)}, 3, {v(T)}")
    A(f"s_lshl_b32 s32, {s(sRT)}, 1")
    A(f"s_add_u32 s32, s32, {s(sNH)}")
    A(f"s_mul_i32 s32, s32, {8*UBLK}")
    A(f"s_add_u32 s32, s32, {WS_U + 8192}")
    A(f"s_add_u32 s33, s32, {4*UBLK}")
    for nt in range(2): A(f"buffer_load_dwordx2 {v(ST+2*nt,2)}, {v(T)}, {s(sWS,4)}, s{32+nt} offen {sc}")

def g1_epilogue(A, sRT, sFC, sMH, sNH, sc, ST=20, vC=13, T=24):
    A(f"s_xor_b32 s32, {s(sWAVE)}, 2")
    A(f"s_lshl_b32 s33, s32, 2")
    A(f"s_add_u32 s33, s33, {C_FREE}")
    A(f"v_mov_b32 {v(T)}, s33")
    A(f"s_mul_i32 s32, s32, 768")
    A(f"s_add_u32 s32, s32, {L_CSX}")
    A(f"v_lshl_add_u32 {v(T+1)}, {v(vLANE)}, 2, s32")
    lp = A.new("L_pw")
    A.label(lp)
    A(f"ds_read_b32 {v(T+2)}, {v(T)}")
    for mt in range(3): A(f"ds_read_b32 {v(T+4+mt)}, {v(T+1)} offset:{256*mt}")
    A("s_waitcnt lgkmcnt(0)")
    A(f"v_cmp_gt_u32 vcc, 16, {v(T+2)}")
    A(f"s_cbranch_vccnz {lp}")
    BF = G_F; AF = G_F + 8
    A(f"v_cmp_gt_u32 vcc, 32, {v(vLANE)}")
    A("s_nop 0")
    for nt in range(2):
        A(f"v_xor_b32 {v(T+8)}, 0x80000000, {v(ST+2*nt)}")
        A(f"v_cndmask_b32 {v(T+8)}, 0, {v(T+8)}, vcc")
        A(f"v_lshrrev_b32 {v(BF+4*nt+1)}, 16, {v(T+8)}")
        A(f"v_or_b32 {v(BF+4*nt)}, {v(T+8)}, {v(BF+4*nt+1)}")
        A(f"v_mov_b32 {v(BF+4*nt+2)}, 0")
        A(f"v_mov_b32 {v(BF+4*nt+3)}, 0")
        A(f"v_mul_f32 {v(ST+2*nt)}, {fl(-LOG2E)}, {v(ST+2*nt+1)}")
    for mt in range(3):
        c = T + 4 + mt; a = AF + 4 * mt
        A(f"v_add_f32 {v(c)}, {v(c)}, {v(G_CS+4*mt)}")
        A(f"v_and_b32 {v(T+8)}, 0xffff0000, {v(c)}")
        A(f"v_sub_f32 {v(c)}, {v(c)}, {v(T+8)}")
        A(f"v_and_b32 {v(T+9)}, 0xffff0000, {v(c)}")
        A(f"v_sub_f32 {v(c)}, {v(c)}, {v(T+9)}")
        A(f"v_lshrrev_b32 {v(T+8)}, 16, {v(T+8)}")
        A(f"v_or_b32 {v(a)}, {v(T+8)}, {v(T+9)}")
        A(f"v_lshrrev_b32 {v(a+1)}, 16, {v(c)}")
        A(f"v_mov_b32 {v(a+2)}, 0")
        A(f"v_mov_b32 {v(a+3)}, 0")
    A("s_nop 1")
    for mt in range(3):
        for nt in range(2):
            acc = v(G_ACC + 16*(2*mt+nt), 16)
            A(f"v_mfma_f32_32x32x16_bf16 {acc}, {v(AF+4*mt,4)}, {v(BF+4*nt,4)}, {acc}")
    A(f"v_lshlrev_b32 {v(T)}, 4, {v(vLANE)}")
    A(f"s_lshl_b32 s32, {s(sRT)}, 2")
    A(f"s_lshl_b32 s33, {s(sNH)}, 1")
    A(f"s_add_u32 s32, s32, s33")
    A(f"s_mul_i32 s32, s32, 86")
    A(f"s_mul_i32 s33, {s(sFC)}, 6")
    A(f"s_mul_i32 s34, {s(sMH)}, 3")
    A(f"s_add_u32 s33, s33, s34")
    A(f"s_add_u32 s32, s32, s33")
    A(f"s_lshl_b32 s32, s32, 10")
    A(f"s_add_u32 s34, s32, {WS_H}")
    A(f"s_add_u32 s35, s34, {86*1024}")
    A(f"v_mov_b32 {v(T+2)}, 1.0")
    end = A.new("L_e1")
    for mt in range(3):
        A(f"s_cmp_ge_u32 s33, {86-mt}")
        A(f"s_cbranch_scc1 {end}")
        for nt in range(2):
            a = G_ACC + 16*(2*mt+nt); O = T + 4 + 4 * nt
            for k in range(4): A(f"v_pk_mul_f32 {v(a+2*k,2)}, {v(a+2*k,2)}, {v(ST+2*nt,2)} op_sel_hi:[1,0]")
            for k in range(8): A(f"v_exp_f32 {v(a+k)}, {v(a+k)}")
            for k in range(4): A(f"v_pk_add_f32 {v(a+2*k,2)}, {v(a+2*k,2)}, {v(T+2,2)} op_sel_hi:[1,0]")
            for k in range(8): A(f"v_rcp_f32 {v(a+k)}, {v(a+k)}")
            for k in range(4): A(f"v_pk_mul_f32 {v(a+2*k,2)}, {v(a+2*k,2)}, {v(a+8+2*k,2)}")
            for k in range(4): A(f"v_cvt_pk_bf16_f32 {v(a+8+k)}, {v(a+2*k)}, {v(a+2*k+1)}")
            A(f"buffer_store_dwordx4 {v(a+8,4)}, {v(T)}, {s(sWS,4)}, s{34+nt} offen offset:{1024*mt} {sc}")
    A.label(end)

G2_P = 16
G2_NA = 27
G2_ACC = 16
G2_PRE = 48
G2_JIT = 176
G2_H = 192; G2_NH = 14
def g2_slot(kq, i):
    j = i if i < G2_NA else i - G2_NA
    return (kq * G2_NA + j) * 2048
L_PART = L_RINGEND; PROW = 272

def wd_addr(A, vA, T):
    A(f"v_lshrrev_b32 {v(T)}, 3, {v(vLANE)}")
    A(f"v_lshlrev_b32 {v(T)}, 10, {v(T)}")
    A(f"v_lshrrev_b32 {v(T+1)}, 2, {v(vLANE)}")
    A(f"v_and_b32 {v(T+1)}, 4, {v(T+1)}")
    A(f"v_and_b32 {v(T+2)}, 7, {v(vLANE)}")
    A(f"v_xor_b32 {v(T+1)}, {v(T+1)}, {v(T+2)}")
    A(f"v_lshl_add_u32 {v(vA)}, {v(T+1)}, 4, {v(T)}")
    A(f"v_add_u32 {v(vA+1)}, 7168, {v(vA)}")

def wd_dma(A, vA, sSoff, ldsexpr):
    A(ldsexpr)
    A("s_nop 0")
    A(f"buffer_load_dwordx4 {v(vA)}, {s(sWD,4)}, {s(sSoff)} offen lds")
    A(f"buffer_load_dwordx4 {v(vA+1)}, {s(sWD,4)}, {s(sSoff)} offen offset:1024 lds")

def g2_setup(A, sKQ, vR=8, T=10):
    A(f"v_bfe_u32 {v(T)}, {v(vLANE)}, 2, 2")
    A(f"v_lshrrev_b32 {v(T+1)}, 5, {v(vLANE)}")
    A(f"v_lshl_add_u32 {v(T+1)}, {v(T+1)}, 2, {v(T)}")
    A(f"v_lshlrev_b32 {v(T+1)}, 7, {v(T+1)}")
    A(f"v_lshrrev_b32 {v(T)}, 1, {v(T)}")
    A(f"v_lshlrev_b32 {v(T)}, 6, {v(T)}")
    A(f"v_bfe_u32 {v(T+2)}, {v(vLANE)}, 4, 1")
    A(f"v_lshlrev_b32 {v(T+2)}, 5, {v(T+2)}")
    A(f"v_and_b32 {v(T+3)}, 3, {v(vLANE)}")
    A(f"v_lshl_add_u32 {v(T+2)}, {v(T+3)}, 3, {v(T+2)}")
    A(f"v_add3_u32 {v(T)}, {v(T)}, {v(T+1)}, {v(T+2)}")
    A(f"s_mul_i32 s32, {s(sKQ)}, {G2_NA*2048}")
    A(f"v_add_u32 {v(vR)}, s32, {v(T)}")
    A(f"v_xor_b32 {v(vR+1)}, 64, {v(vR)}")

def g2_wd_reads(i, F, vR=8):
    o = g2_slot(0, i); L = []
    for dt in range(2):
        for h in range(2): L.append(f"ds_read_b64_tr_b16 {v(F+4*dt+2*h,2)}, {v(vR+dt)} offset:{o + 1024*h}")
    return L

def g2_pull(A, vR=8):
    for i in range(G2_P):
        for l in g2_wd_reads(i, G2_PRE + 8*i, vR): A(l)
    A("s_waitcnt lgkmcnt(0)")

def g2_main(A, sTT, sTB, sKQ, sc, mid=None, vR=8, vH=10, extra_vm=0, mark=None):
    A(f"v_lshlrev_b32 {v(vH)}, 4, {v(vLANE)}")
    A(f"s_lshl_b32 s32, {s(sTT)}, 1")
    A(f"s_add_u32 s32, s32, {s(sTB)}")
    A(f"s_mul_i32 s32, s32, 86")
    A(f"s_mul_i32 s33, {s(sKQ)}, 43")
    A(f"s_add_u32 s32, s32, s33")
    A(f"s_lshl_b32 s32, s32, 10")
    A(f"s_add_u32 s32, s32, {WS_H}")
    def hload(i):
        if i % 4 == 0 and i: A(f"s_add_u32 s32, s32, 4096")
        A(f"buffer_load_dwordx4 {v(G2_H+4*(i%G2_NH),4)}, {v(vH)}, {s(sWS,4)}, s32 offen offset:{1024*(i%4)} {sc}")
    for i in range(G2_NH): hload(i)
    for i in range(43):
        F = G2_PRE + 8*i if i < G2_P else G2_JIT + 8*(i & 1)
        nxt = []
        if G2_P <= i + 1 < 43:
            if i + 1 == G2_NA and mid: mid()
            nxt = g2_wd_reads(i + 1, G2_JIT + 8*((i+1) & 1), vR)
        issued = min(43, i + G2_NH)
        w = f"s_waitcnt vmcnt({issued - i - 1})"
        if i >= G2_P: w += " lgkmcnt(0)"
        A(w)
        for dt in range(2):
            acc = v(G2_ACC + 16*dt, 16)
            A(f"v_mfma_f32_32x32x16_bf16 {acc}, {v(F+4*dt,4)}, {v(G2_H+4*(i%G2_NH),4)}, {'0' if i == 0 else acc}")
            for _ in range(2):
                if nxt: A(nxt.pop(0))
        if i + G2_NH < 43: hload(i + G2_NH)
        if mark: mark(i)

def g2_partials(A, sTB, sKQ, T=10):
    A(f"v_and_b32 {v(T)}, 31, {v(vLANE)}")
    A(f"v_mul_u32_u24 {v(T)}, {PROW}, {v(T)}")
    A(f"v_lshrrev_b32 {v(T+1)}, 5, {v(vLANE)}")
    A(f"v_lshlrev_b32 {v(T+1)}, 4, {v(T+1)}")
    A(f"s_lshl_b32 s32, {s(sKQ)}, 1")
    A(f"s_add_u32 s32, s32, {s(sTB)}")
    A(f"s_mul_i32 s32, s32, {32*PROW}")
    A(f"s_add_u32 s32, s32, {L_PART}")
    A(f"v_add3_u32 {v(T)}, {v(T)}, {v(T+1)}, s32")
    A("s_nop 4")
    for dt in range(2):
        for q in range(4): A(f"ds_write_b128 {v(T)}, {v(G2_ACC+16*dt+4*q,4)} offset:{128*dt+32*q}")

FN = 224
def fin_loads(A, sTT, sDT, sc, X, T):
    A(f"s_lshr_b32 s32, {s(sWAVE)}, 1")
    A(f"s_lshl_b32 s33, {s(sTT)}, 2")
    A(f"s_add_u32 s32, s32, s33")
    A(f"s_and_b32 s33, {s(sWAVE)}, 1")
    A(f"s_lshl_b32 s34, {s(sDT)}, 1")
    A(f"s_add_u32 s33, s33, s34")
    A(f"s_lshl_b32 s33, s33, 6")
    A(f"s_lshl_b32 s34, s32, 14")
    A(f"s_add_u32 s33, s33, s34")
    A(f"v_and_b32 {v(T)}, 15, {v(vLANE)}")
    A(f"v_lshlrev_b32 {v(T)}, 10, {v(T)}")
    A(f"v_and_b32 {v(T+1)}, 48, {v(vLANE)}")
    A(f"v_add3_u32 {v(X+5)}, {v(T)}, {v(T+1)}, s33")
    A(f"buffer_load_dwordx4 {v(X,4)}, {v(X+5)}, {s(sX,4)}, 0 offen")
    A(f"v_bfe_u32 {v(T)}, {v(vLANE)}, 3, 1")
    A(f"v_mul_u32_u24 {v(T)}, {UBLK}, {v(T)}")
    A(f"v_and_b32 {v(T+1)}, 7, {v(vLANE)}")
    A(f"v_lshl_add_u32 {v(T)}, {v(T+1)}, 3, {v(T)}")
    A(f"s_mul_i32 s32, s32, {2*UBLK}")
    A(f"s_add_u32 s32, s32, {WS_U + 8192 + 4}")
    A(f"buffer_load_dword {v(X+4)}, {v(T)}, {s(sWS,4)}, s32 offen {sc}")

def s_tile_dma(A, sTT, sDT, sc, part, nparts, T, chan_soff):
    A(f"v_lshrrev_b32 {v(T)}, 3, {v(vLANE)}")
    A(f"v_lshlrev_b32 {v(T)}, 12, {v(T)}")
    A(f"v_and_b32 {v(T+1)}, 7, {v(vLANE)}")
    A(f"v_lshl_add_u32 {v(T)}, {v(T+1)}, 4, {v(T)}")
    A(f"s_lshl_b32 s32, {s(sDT)}, 18")
    A(f"s_lshl_b32 s33, {s(sTT)}, 7")
    A(f"s_add_u32 s32, s32, s33")
    A(f"s_add_u32 s32, s32, {WS_S}")
    per = 8 // nparts
    A(f"s_mul_i32 s33, {s(part)}, {per*32768}")
    A(f"s_add_u32 s32, s32, s33")
    A(f"s_mul_i32 s33, {s(part)}, {per*1024}")
    for i in range(per):
        A(f"s_add_u32 m0, s33, {L_ST + 1024*i}")
        if i: A(f"s_add_u32 s32, s32, 32768")
        else: A("s_nop 0")
        A(f"buffer_load_dwordx4 {v(T)}, {s(sWS,4)}, s32 offen {sc} lds")

def final(A, X, sc_out, T=16, perm=False):
    P0 = T + 8; P1 = T + 16; SS = T + 24; E = T + 32
    A(f"s_lshr_b32 s32, {s(sWAVE)}, 1")
    A(f"s_and_b32 s33, {s(sWAVE)}, 1")
    A(f"v_and_b32 {v(T)}, 15, {v(vLANE)}")
    A(f"v_mul_u32_u24 {v(T)}, {PROW}, {v(T)}")
    A(f"v_and_b32 {v(T+1)}, 48, {v(vLANE)}")
    A(f"v_lshlrev_b32 {v(T+1)}, 1, {v(T+1)}")
    A(f"s_mul_i32 s34, s32, {16*PROW}")
    A(f"s_lshl_b32 s35, s33, 7")
    A(f"s_add_u32 s34, s34, s35")
    A(f"s_add_u32 s34, s34, {L_PART}")
    A(f"v_add3_u32 {v(T)}, {v(T)}, {v(T+1)}, s34")
    A(f"v_lshlrev_b32 {v(T+1)}, 5, {v(T+1)}")
    A(f"v_bfe_u32 {v(T+2)}, {v(vLANE)}, 2, 2")
    A(f"v_lshl_add_u32 {v(T+1)}, {v(T+2)}, 7, {v(T+1)}")
    if perm:
        A(f"v_and_b32 {v(T+2)}, 1, {v(vLANE)}"); A(f"v_lshl_add_u32 {v(T+1)}, {v(T+2)}, 3, {v(T+1)}")
        A(f"v_bfe_u32 {v(T+2)}, {v(vLANE)}, 1, 1"); A(f"v_lshl_add_u32 {v(T+1)}, {v(T+2)}, 6, {v(T+1)}")
    else:
        A(f"v_and_b32 {v(T+2)}, 3, {v(vLANE)}")
        A(f"v_lshl_add_u32 {v(T+1)}, {v(T+2)}, 3, {v(T+1)}")
    A(f"s_lshl_b32 s34, s33, 12")
    A(f"s_lshl_b32 s35, s32, {4 if perm else 5}")
    A(f"s_add_u32 s34, s34, s35")
    A(f"s_add_u32 s34, s34, {L_ST}")
    A(f"v_add_u32 {v(T+1)}, s34, {v(T+1)}")
    return_point = len(A.lines)
    def body():
        for k in range(2): A(f"ds_read_b128 {v(P0+4*k,4)}, {v(T)} offset:{16*k}")
        for k in range(2): A(f"ds_read_b128 {v(P1+4*k,4)}, {v(T)} offset:{64*PROW+16*k}")
        for k in range(2): A(f"ds_read_b64_tr_b16 {v(SS+2*k,2)}, {v(T+1)} offset:{512*k}")
        A(f"v_mul_f32 {v(T+2)}, {fl(-LOG2E)}, {v(X+4)}")
        A(f"v_mov_b32 {v(T+4)}, 1.0")
        A("s_waitcnt lgkmcnt(2)")
        for k in range(4): A(f"v_pk_add_f32 {v(P0+2*k,2)}, {v(P0+2*k,2)}, {v(P1+2*k,2)}")
        for k in range(4): A(f"v_pk_mul_f32 {v(E+2*k,2)}, {v(P0+2*k,2)}, {v(T+2,2)} op_sel_hi:[1,0]")
        for k in range(8): A(f"v_exp_f32 {v(E+k)}, {v(E+k)}")
        for k in range(4): A(f"v_pk_mul_f32 {v(P0+2*k,2)}, {v(P0+2*k,2)}, {v(X+4,2)} op_sel_hi:[1,0]")
        for k in range(4): A(f"v_pk_add_f32 {v(E+2*k,2)}, {v(E+2*k,2)}, {v(T+4,2)} op_sel_hi:[1,0]")
        for k in range(8): A(f"v_rcp_f32 {v(E+k)}, {v(E+k)}")
        A("s_waitcnt lgkmcnt(0)")
        for k in range(4):
            A(f"v_lshlrev_b32 {v(P1+2*k)}, 16, {v(SS+k)}")
            A(f"v_and_b32 {v(P1+2*k+1)}, 0xffff0000, {v(SS+k)}")
        for k in range(4): A(f"v_pk_mul_f32 {v(P0+2*k,2)}, {v(P0+2*k,2)}, {v(E+2*k,2)}")
        for k in range(4):
            A(f"v_lshlrev_b32 {v(E+2*k)}, 16, {v(X+k)}")
            A(f"v_and_b32 {v(E+2*k+1)}, 0xffff0000, {v(X+k)}")
        for k in range(4): A(f"v_pk_fma_f32 {v(P0+2*k,2)}, {v(P0+2*k,2)}, {v(P1+2*k,2)}, {v(E+2*k,2)}")
        for k in range(4): A(f"v_cvt_pk_bf16_f32 {v(SS+k)}, {v(P0+2*k)}, {v(P0+2*k+1)}")
        A(f"buffer_store_dwordx4 {v(SS,4)}, {v(X+5)}, {s(sOUT,4)}, 0 offen {sc_out}")
    return body

WS_STAMP = 0x1000000
class Stamp:
    on = False
    only = None
def stamp(A, k):
    if not Stamp.on: return
    if Stamp.only is not None and k not in Stamp.only: return
    A("s_memtime s[96:97]"); A("s_memrealtime s[98:99]"); A("s_waitcnt lgkmcnt(0)")
    A(f"v_writelane_b32 v255, s96, {k}"); A(f"v_writelane_b32 v255, s98, {32+k}")
def stamp_flush(A, kidx):
    if not Stamp.on: return
    A(f"s_lshl_b32 s96, s2, 3"); A(f"s_add_u32 s96, s96, {s(sWAVE)}"); A(f"s_lshl_b32 s96, s96, 8")
    A(f"s_add_u32 s96, s96, {WS_STAMP + kidx*0x80000}")
    A(f"v_lshlrev_b32 v254, 2, {v(vLANE)}")
    A(f"buffer_store_dword v255, v254, {s(sWS,4)}, s96 offen")
    A("s_waitcnt vmcnt(0)")
```

```python
from roles import *
import kgen5
from kgen5 import kg4_pre, kg5_pass, kg5_expand, kg4_store, PRM4
import roles, sys
KNAME = "recurrent_scan__ssm_conv_s4__glu_gated_glu__prompt_kernel"
HDR = open("recurrent_scan__ssm_conv_s4__glu_gated_glu__prompt.s.ref").read().split("; Override launch")[0]
OPT = dict(D=20, NPF=22, PWAIT=8, PST=0, ROT=0, SCOUT="sc1", ALIGN=1, WTH=16, LATE=20, XT=0, PFD=2, WT=0, LNPRIO=1, HPRIO=0, ARR2=1,
           FD=11, PP=19, EE=1, PSL=6, PFR=1, WTS=-2, CPRIO=1, TS=0, TD=2, SLP=1, KOFF=0, GPRIO=1, KNOST=0, LNOST=0, LS=5, NOCV=0, NOST=0, NOMF=0, NH=13, KW=0, KPK=1, YPRIO=1, LNW=0, LNLATE=0, PH=2, FF=1, SPF=12, ROT2=0, XFIRST=0)
for a in sys.argv[2:]:
    if "=" in a:
        k, x = a.split("="); assert k in OPT, k; OPT[k] = x if k == "SCOUT" else int(x)
Stamp.on = any(a.startswith("--stamp") for a in sys.argv)
for a in sys.argv:
    if a.startswith("--stamp:"): Stamp.only = {0, 23} | {int(x) for x in a[8:].split(",") if x}
SC = "sc1"
roles.PLAIN[0] = not OPT['KPK']
sV = 4
sXCD, sIDX, sRT, sFC, sROT, sB, sD, sTT, sDT, sA, sB2, sKB, sUB, sRG = range(48, 62)
FL_H = 0x4000; FL_S = 0x14000
FL_LN = 0x1000
L_STAT = L_ST + 4096
L_XS = [L_U[0], L_X + 2 * XSLOT]
SPIN_MAX = 30000
def EV(row, col=0): return L_CTL + 32 * row + 4 * col
R_EPI, R_PULL, R_BL, R_LATE = 16, 17, 18, 19
R_WD, R_CV, R_XW, R_XR = 20, 21, 22, 23
R_CS, R_WD2 = 26, 27
E_KRDY, E_URDY, E_XRDY, E_XDONE = EV(24, 0), EV(24, 2), EV(24, 4), EV(24, 6)
E_VRDY, E_SRDY, E_LNOK, E_LND = EV(25, 0), EV(25, 1), EV(25, 2), EV(25, 3)
E_WD = EV(25, 4)
R_LNX, R_LND = 29, 30
L_LNX = L_K[0] + 4096
L_V = EV(28, 0)
LNW, TW = OPT['LNW'], OPT['LNW'] + 1
vOOB, vZERO, vEV, vET = 252, 253, 250, 251
PRM = 236
FX = 244
A = Asm(); SLOW = Asm(); SLOW.uid = 100000

def mapping2():
    A(f"s_lshr_b32 s32, {s(sXCD)}, 1")
    A(f"s_and_b32 s33, {s(sXCD)}, 1")
    A(f"s_and_b32 s34, {s(sIDX)}, 3")
    A(f"s_lshr_b32 s35, {s(sIDX)}, 2")
    if OPT["ARR2"] == 0:
        A(f"s_lshl_b32 {s(sDT)}, s33, 2"); A(f"s_add_u32 {s(sDT)}, {s(sDT)}, s34")
        A(f"s_lshl_b32 {s(sTT)}, s32, 3"); A(f"s_add_u32 {s(sTT)}, {s(sTT)}, s35")
    else:
        A(f"s_and_b32 {s(sDT)}, {s(sIDX)}, 7"); A(f"s_lshr_b32 {s(sTT)}, {s(sB)}, 3")
    if OPT["ROT2"]: A(f"s_and_b32 {s(sROT)}, s34, 1"); A(f"s_lshl_b32 {s(sROT)}, {s(sROT)}, 2")
    else: A(f"s_mul_i32 {s(sROT)}, s34, {2*OPT['ROT']}")
    A(f"s_mul_i32 {s(sFC)}, s33, 7")
    A(f"s_add_u32 {s(sFC)}, {s(sFC)}, s35")
    A(f"s_lshl_b32 s36, s33, 1")
    A(f"s_add_u32 s36, s36, s34")
    A(f"s_cmp_ge_u32 {s(sIDX)}, 28")
    A(f"s_cselect_b32 {s(sFC)}, 14, {s(sFC)}")
    A(f"s_cselect_b32 s34, s36, s34")
    A(f"s_and_b32 s34, s34, 3")
    A(f"s_lshl_b32 {s(sRT)}, s32, 2")
    A(f"s_add_u32 {s(sRT)}, {s(sRT)}, s34")
    A(f"s_bfe_u32 {s(sB2)}, {s(sWAVE)}, 0x10001")
    A(f"s_mov_b32 {s(sX+2)}, 0x200000"); A(f"s_mov_b32 {s(sX+3)}, 0x20000")
def mapping3(X=None):
    X = X or A
    X(f"s_mov_b64 {s(sX,2)}, {s(P_X,2)}")
    X(f"s_mul_i32 {s(sKB)}, {s(sA)}, {L_K[1]-L_K[0]}")
    X(f"s_add_u32 {s(sKB)}, {s(sKB)}, {L_K[0]}")
    X(f"s_lshl_b32 {s(sUB)}, {s(sA)}, 4")
    X(f"s_add_u32 {s(sUB)}, {s(sUB)}, {L_U[0]}")
    for srd, p, sz in ((sWD, P_WD, 1409024), (sWS, P_WS, WS_SIZE), (sOUT, P_OUT, 0x200000)):
        X(f"s_mov_b64 {s(srd,2)}, {s(p,2)}"); X(f"s_mov_b32 {s(srd+2)}, {sz}"); X(f"s_mov_b32 {s(srd+3)}, 0x20000")
    X(f"v_mov_b32 {v(vOOB)}, 0x7ff00000")
    X(f"v_mov_b32 {v(vZERO)}, 0")

def ev_addr(base, n, X=None):
    X = X or A
    if n == 1: X(f"v_mov_b32 {v(vEV)}, {base}")
    else:
        X(f"v_and_b32 {v(vEV)}, {n-1}, {v(vLANE)}")
        if isinstance(base, int):
            X(f"v_lshlrev_b32 {v(vEV)}, 2, {v(vEV)}"); X(f"v_add_u32 {v(vEV)}, {base}, {v(vEV)}")
        else: X(f"v_lshl_add_u32 {v(vEV)}, {v(vEV)}, 2, {base}")
def ev_check(X=None):
    X = X or A
    X("s_getpc_b64 s[62:63]"); X("s_cbranch_vccnz L_stub")
def ev_wait(base=None, n=1, X=None):
    X = X or A
    if base is not None: ev_addr(base, n, X)
    X(f"ds_read_b32 {v(vET)}, {v(vEV)}")
    X("s_waitcnt lgkmcnt(0)")
    X(f"v_cmp_ne_u32 vcc, 0, {v(vET)}")
    ev_check(X)
def ev_wait_sm(base=None, n=1):
    if base is not None: ev_addr(base, n)
    A(f"ds_read_b32 {v(vET)}, {v(vEV)}")
    for k in range(4): A(f"ds_read_b32 v14, {v(vEV)}")
    A("s_waitcnt lgkmcnt(4)")
    A(f"v_cmp_ne_u32 vcc, 0, {v(vET)}")
    ev_check()
def spoll_issue(X, sOff):
    X(f"s_load_dwordx16 s[64:79], s[100:101], {sOff} glc"); X(f"s_add_u32 s32, {sOff}, 64"); X(f"s_load_dwordx16 s[80:95], s[100:101], s32 glc")
def spoll(X, sOff, n, issued, tag):
    if not issued: spoll_issue(X, sOff)
    X("s_mov_b32 s46, 0")
    X.label(f"L_sp{tag}")
    X("s_waitcnt lgkmcnt(0)")
    for q in range(n):
        X(f"s_cmp_lg_u64 s[{64+2*q}:{65+2*q}], {s(sV,2)}"); X(f"s_cbranch_scc1 L_sr{tag}")
    X.label(f"L_so{tag}")
    SLOW.label(f"L_sr{tag}")
    if OPT["PSL"]: SLOW(f"s_sleep {OPT['PSL']}")
    SLOW(f"s_load_dwordx16 s[64:79], s[100:101], {sOff} glc"); SLOW(f"s_add_u32 s32, {sOff}, 64"); SLOW(f"s_load_dwordx16 s[80:95], s[100:101], s32 glc")
    SLOW("s_add_u32 s46, s46, 1"); SLOW(f"s_cmp_lt_u32 s46, {SPIN_MAX}"); SLOW(f"s_cbranch_scc1 L_sp{tag}")
    SLOW("s_waitcnt lgkmcnt(0)"); SLOW(f"s_branch L_so{tag}")
def ev_set(addr, X=None):
    X = X or A
    X(f"v_mov_b32 {v(vET)}, {addr}")
    X("s_mov_b64 exec, 1")
    X(f"ds_write_b32 {v(vET)}, {v(vZERO)}")
    X("s_mov_b64 exec, -1")
def ev_dma(off, X=None):
    X = X or A
    X("s_mov_b64 exec, 1")
    X(f"buffer_load_dword {v(vOOB)}, {s(sX,4)}, 0 offen offset:{off} lds")
    X("s_mov_b64 exec, -1")
def wcol(row, sOut):
    A(f"s_and_b32 {sOut}, {s(sWAVE)}, 3")
    A(f"s_lshl_b32 {sOut}, {sOut}, 2"); A(f"s_add_u32 {sOut}, {sOut}, {EV(row, 4)}")
def gflag_store(sOff, T=None):
    A(f"s_mov_b64 s[6:7], {s(sV,2)}")
    A(f"s_atomic_swap_x2 s[6:7], {s(P_WS,2)}, {s(sOff)}")
def get_v(X=None):
    X = X or A
    X(f"v_mov_b32 {v(vEV)}, {L_V}")
    X(f"ds_read_b64 {v(vEV,2)}, {v(vEV)}")
    X("s_waitcnt lgkmcnt(0)")
    X(f"v_readfirstlane_b32 {s(sV)}, {v(vEV)}")
    X(f"v_readfirstlane_b32 {s(sV+1)}, {v(vET)}")
    X("s_nop 1")
def retry_loop(loads, test):
    lp = A.new("L_gp")
    A("s_mov_b32 s46, 0")
    A.label(lp)
    loads()
    A("s_add_u32 s46, s46, 1")
    A(f"s_cmp_lt_u32 s46, {SPIN_MAX}")
    A("s_cselect_b64 s[42:43], -1, 0")
    A("s_waitcnt vmcnt(0)")
    test()
    A("s_nop 0")
    A("s_and_b64 vcc, vcc, s[42:43]")
    A(f"s_cbranch_scc1 {lp}")

def _need(m):
    lo, hi = 4096 * m, 4096 * m + 4096; n = 0
    for w in range(NWS):
        a = L_W + w * WSLOT
        if a < hi and a + WSLOT > lo: n = max(n, max(st for st in range(NSTAGE) if st % NWS == w))
    for x in range(NXS):
        a = L_X + x * XSLOT
        if a < hi and a + XSLOT > lo: n = max(n, max(st for st in range(NSTAGE) if (st // 2) % NXS == x))
    return n
PSLOT = sorted(range(G2_NA), key=lambda m_: (_need(m_), m_))
def pslot(i): return PSLOT[i if i < G2_NA else i - G2_NA]
PRE = [48 + 8*i for i in range(6)] + [176 + 8*i for i in range(5)] + [160] + [96 + 8*i for i in range(4)]
JIT = [128, 136]
HW = [168, 172, 216, 220, 224, 228, 232, 236, 240, 144, 148, 152, 156, 128, 132, 136, 140][:OPT['NH']]
vR = 38
def wd_reads(i, F):
    o = 4096 * pslot(i); b = vR + 2 * (o >> 16); o &= 0xffff
    return [f"ds_read_b64_tr_b16 {v(F+4*dt+2*h,2)}, {v(b+dt)} offset:{o + 1024*h}" for dt in range(2) for h in range(2)]
def wd_piece_addr(X, vD, vT):
    if OPT["ARR2"] == 0:
        X(f"v_lshrrev_b32 {v(vD)}, 2, {v(vLANE)}"); X(f"v_lshlrev_b32 {v(vD)}, 10, {v(vD)}")
        X(f"v_and_b32 {v(vT)}, 3, {v(vLANE)}"); X(f"v_lshl_add_u32 {v(vD)}, {v(vT)}, 7, {v(vD)}")
        X(f"s_and_b32 s41, {s(sXCD)}, 1"); X("s_lshl_b32 s41, s41, 9"); X(f"v_add_u32 {v(vD)}, s41, {v(vD)}")
        return 16384
    X(f"v_lshlrev_b32 {v(vD)}, 7, {v(vLANE)}")
    return 8192

def loader():
    D = OPT["D"]; Vw = 8; Vx = 12; T = 18; sT = 36
    sXB, sWB, sC, sXo, sWo, sLW, sLX, sEF = range(sT+2, sT+10)
    A("s_movk_i32 s36, 2752"); A("s_movk_i32 s37, 0x1556")
    for j in range(3):
        if j: A(f"v_add_u32 v18, {64*j}, {v(vLANE)}")
        src = "v18" if j else v(vLANE)
        A(f"v_mul_u32_u24 v19, s37, {src}"); A("v_lshrrev_b32 v19, 16, v19")
        A(f"v_mad_i32_i24 v{21+j}, v19, -12, {src}")
        A("v_mul_u32_u24 v19, s36, v19")
        A(f"v_lshl_add_u32 v{8+j}, v{21+j}, 4, v19")
        if j: A(f"v_subrev_u32 v{8+j}, {1024*j}, v{8+j}")
    mapping2()
    A(f"s_cmp_eq_u32 {s(sFC)}, 14"); A("s_cselect_b32 s36, 3, 11"); A("v_mov_b32 v18, 0x7ff00000")
    for j in range(3):
        A(f"v_cmp_lt_u32 vcc, s36, v{21+j}"); A("s_nop 1"); A(f"v_cndmask_b32 v{8+j}, v{8+j}, v18, vcc")
    A(f"s_mov_b32 {s(sWG+2)}, 1409024"); A(f"s_mov_b32 {s(sWG+3)}, 0x20000")
    A(f"s_mul_i32 {s(sWB)}, {s(sFC)}, 192")
    A(f"s_mul_i32 {s(sLW)}, {s(sA)}, {UPOFF}")
    A(f"v_lshrrev_b32 {v(T)}, 3, {v(vLANE)}")
    A(f"v_lshlrev_b32 {v(T)}, 10, {v(T)}")
    A(f"v_lshrrev_b32 {v(T+1)}, 4, {v(vLANE)}")
    A(f"v_and_b32 {v(T+2)}, 7, {v(vLANE)}")
    A(f"v_xor_b32 {v(T+1)}, {v(T+1)}, {v(T+2)}")
    A(f"v_lshl_add_u32 {v(Vx)}, {v(T+1)}, 4, {v(T)}")
    A(f"v_xor_b32 {v(Vx+1)}, 64, {v(Vx)}")
    A(f"v_add_u32 {v(Vx+2)}, {2*7168}, {v(Vx)}")
    A(f"v_add_u32 {v(Vx+3)}, {3*7168}, {v(Vx+1)}")
    A(f"v_add_u32 {v(Vx+1)}, {7168}, {v(Vx+1)}")
    A(f"s_lshl_b32 {s(sXB)}, {s(sRT)}, 17")
    A(f"s_lshl_b32 {s(sT)}, {s(sA)}, 16")
    A(f"s_add_u32 {s(sXB)}, {s(sXB)}, {s(sT)}")
    A(f"s_lshl_b32 {s(sLX)}, {s(sA)}, 13")
    A(f"s_lshl_b32 {s(sEF)}, {s(sA)}, 2")
    A(f"s_add_u32 {s(sEF)}, {s(sEF)}, {EV(0)}")
    def wtouch(X):
        X(f"v_mul_u32_u24 v24, 0x1556, {v(vLANE)}"); X("v_lshrrev_b32 v24, 16, v24"); X("v_mul_u32_u24 v24, 2752, v24"); X("v_lshl_add_u32 v24, v21, 7, v24")
        X(f"s_and_b32 s32, {s(sXCD)}, 1"); X("s_mul_i32 s32, s32, 1344"); X(f"s_lshl_b32 s33, {s(sIDX)}, 2"); X(f"s_lshr_b32 s34, {s(sXCD)}, 1")
        X("s_add_u32 s33, s33, s34"); X(f"s_mul_i32 s33, s33, {4*2752}"); X("s_add_u32 s32, s32, s33")
        X("s_mov_b32 exec_hi, 0xffff")
        X(f"buffer_load_dword v25, v24, {s(sWG,4)}, s32 offen")
        X("s_mov_b64 exec, -1")
    def dtouch(X):
        X(f"v_lshlrev_b32 v24, 7, {v(vLANE)}"); X(f"s_lshl_b32 s32, {s(sB)}, 1"); X(f"s_add_u32 s32, s32, {s(sA)}"); X(f"s_mul_i32 s32, s32, {22*128}")
        X("s_mov_b64 exec, 0x3fffff")
        X(f"buffer_load_dword v26, v24, {s(sWD,4)}, s32 offen")
        X("s_mov_b64 exec, -1")
    n = 0
    for st in range(NSTAGE):
        if st % 2 == 0:
            A(f"s_add_u32 {s(sC)}, {s(sROT)}, {st//2}")
            A(f"s_and_b32 {s(sC)}, {s(sC)}, 7")
            A(f"s_mul_i32 {s(sWo)}, {s(sC)}, {64*2752}")
            A(f"s_add_u32 {s(sWo)}, {s(sWo)}, {s(sWB)}")
            A(f"s_lshl_b32 {s(sXo)}, {s(sC)}, 7")
            A(f"s_add_u32 {s(sXo)}, {s(sXo)}, {s(sXB)}")
        if st == 0:
            A(f"s_cmp_eq_u32 {s(sA)}, 0")
            A("s_waitcnt lgkmcnt(0)")
            A(f"s_cselect_b64 {s(sWG,2)}, {s(P_WG,2)}, {s(P_WU,2)}")
            A(f"s_mov_b64 {s(sX,2)}, {s(P_X,2)}")
            stamp(A, 1)
            if OPT["TS"] == -2: wtouch(A)
            A(f"s_cmp_ge_u32 {s(sIDX)}, 30")
            A("s_cbranch_scc1 L_spare_ld")
        if st == NWS: ev_addr(EV(0, 4), 4)
        if st > NWS: A(f"v_add_u32 {v(vEV)}, 32, {v(vEV)}")
        if st >= NWS: ev_wait()
        wl = [("w", i) for i in range(6)]; xl = [("x", i) for i in range(8)] if st % 2 == 0 else []
        for k, i in (xl + wl if OPT["XFIRST"] else wl + xl):
            if n == 6: A("s_barrier")
            if n >= D: A(f"s_waitcnt vmcnt({D-1})")
            n += 1
            if k == "x":
                if i % 4 == 0:
                    A(f"s_add_u32 m0, {s(sLX)}, {L_X + ((st//2) % NXS) * XSLOT + i * 1024}")
                    if i: A(f"s_add_u32 {s(sXo)}, {s(sXo)}, 32768")
                    else: A("s_nop 0")
                A(f"buffer_load_dwordx4 {v(Vx + i%4)}, {s(sX,4)}, {s(sXo)} offen offset:{1024*(i%4)} lds")
            else:
                if i % 3 == 0:
                    A(f"s_add_u32 m0, {s(sLW)}, {L_W + (st % NWS) * WSLOT + (i//3) * 3072}")
                    if i or st % 2: A(f"s_add_u32 {s(sWo)}, {s(sWo)}, {16*2752}")
                    else: A("s_nop 0")
                A(f"buffer_load_dwordx4 {v(Vw + i%3)}, {s(sWG,4)}, {s(sWo)} offen offset:{1024*(i%3)} lds")
        if st == 0: stamp(A, 2); mapping3()
        A(f"s_mov_b32 m0, {s(sEF)}")
        ev_dma(32 * st); n += 1
        if st == OPT["TS"]: wtouch(A)
        if st == OPT["TD"]: dtouch(A)
        if st in (3, 7, 11): stamp(A, 3 + st // 4)
    stamp(A, 6)
    A.label("L_fetch")
    A(f"v_lshrrev_b32 v8, 2, {v(vLANE)}"); A(f"v_mul_u32_u24 v8, {UBLK}, v8")
    A(f"v_and_b32 v9, 3, {v(vLANE)}"); A("v_lshl_add_u32 v8, v9, 4, v8")
    A(f"v_lshrrev_b32 v10, 1, {v(vLANE)}"); A(f"v_mul_u32_u24 v10, {UBLK}, v10")
    A(f"v_lshrrev_b32 v9, 4, {v(vLANE)}"); A(f"v_xor_b32 v9, v9, {v(vLANE)}"); A("v_and_b32 v9, 1, v9"); A("v_lshl_add_u32 v10, v9, 4, v10")
    A(f"s_mul_i32 s34, {s(sRT)}, {16*UBLK}"); A(f"s_add_u32 s34, s34, {WS_U+8192}")
    A(f"s_and_b32 s32, {s(sD)}, 7"); A("s_lshl_b32 s32, s32, 10"); A(f"s_lshr_b32 s33, {s(sD)}, 4"); A("s_lshl_b32 s33, s33, 5")
    A("s_add_u32 s32, s32, s33"); A(f"s_mul_i32 s33, {s(sA)}, {128*UBLK}"); A("s_add_u32 s32, s32, s33"); A(f"s_add_u32 s32, s32, {WS_U}")
    A(f"s_lshl_b32 s33, {s(sA)}, 12"); A(f"s_add_u32 s33, s33, {L_U[0] + 1024}")
    ev_wait(E_LNOK)
    A(f"s_cmp_eq_u32 {s(sA)}, 1"); A("s_cbranch_scc1 L_nost")
    A(f"s_mov_b32 m0, {L_STAT}"); A("s_nop 0")
    A(f"buffer_load_dwordx4 v8, {s(sWS,4)}, s34 offen {SC} lds")
    A(f"s_mov_b32 m0, {E_SRDY}"); ev_dma(0)
    A.label("L_nost")
    for i in range(4):
        A(f"s_add_u32 m0, s33, {1024*i}")
        if i: A(f"s_add_u32 s32, s32, {32*UBLK}")
        else: A("s_nop 0")
        A(f"buffer_load_dwordx4 v10, {s(sWS,4)}, s32 offen {SC} lds")
    A(f"s_lshl_b32 s33, {s(sA)}, 2"); A(f"s_add_u32 m0, s33, {E_URDY}"); ev_dma(0)
    stamp(A, 7)
    wd_addr(A, 6, 12)
    A(f"s_lshl_b32 s40, {s(sDT)}, 7"); A(f"s_lshl_b32 s41, {s(sA)}, 13"); A("s_add_u32 s40, s40, s41"); A(f"s_add_u32 s42, s40, {43*16384}")
    A(f"s_lshl_b32 s41, {s(sA)}, 10")
    have = -1; n = 0
    for i in range(G2_P):
        if _need(pslot(i)) > have:
            have = _need(pslot(i)); ev_wait(EV(have, 4), 4)
            if i == 0: stamp(A, 8)
        for kq in range(2):
            if n >= OPT["WTH"]: A(f"s_waitcnt vmcnt({OPT['WTH']-1})")
            n += 1
            A(f"s_add_u32 m0, s41, {4096*pslot(i) + 2048*kq}")
            if i: A(f"s_add_u32 s{40+2*kq}, s{40+2*kq}, 16384")
            else: A("s_nop 0")
            A(f"buffer_load_dwordx4 v6, {s(sWD,4)}, s{40+2*kq} offen lds")
    A(f"s_lshl_b32 s33, {s(sA)}, 2"); A(f"s_add_u32 m0, s33, {E_WD}"); ev_dma(0)
    stamp(A, 9)
    get_v()
    S = SLOW
    S.label("L_spare_ld")
    if OPT["TS"] >= 0: wtouch(S)
    mapping3(S); S("s_barrier")
    if OPT["TD"] >= 0: dtouch(S)
    PB = wd_piece_addr(S, T, T+2)
    S(f"s_and_b32 s42, {s(sIDX)}, 1"); S(f"s_mul_i32 s42, s42, {43*16384}"); S(f"s_mul_i32 s43, {s(sA)}, {PB}"); S("s_add_u32 s42, s42, s43")
    if OPT["PFR"]: S(f"s_add_u32 s42, s42, {43*16384 - 2*PB}")
    for i in range(OPT["NPF"]):
        S(f"buffer_load_dword {v(T+2)}, {v(T)}, {s(sWD,4)}, s42 offen")
        S(f"s_{'sub' if OPT['PFR'] else 'add'}_u32 s42, s42, {2*PB}"); S(f"s_waitcnt vmcnt({OPT['PFD']-1})")
        if i == OPT["SPF"]:
            S(f"s_lshl_b32 s40, {s(sA)}, 2"); S(f"s_add_u32 s40, s40, {EV(0)}")
            S(f"v_lshl_add_u32 {v(T+4)}, {v(vLANE)}, 5, s40"); S("s_mov_b64 exec, 0x3fff"); S(f"ds_write_b32 {v(T+4)}, {v(vZERO)}"); S("s_mov_b64 exec, -1")
    S("s_waitcnt vmcnt(0)")
    stamp(S, 19)
    S(f"s_lshl_b32 s40, {s(sA)}, 2"); S(f"s_add_u32 s40, s40, {EV(0)}")
    S(f"v_lshl_add_u32 {v(T)}, {v(vLANE)}, 5, s40"); S("s_mov_b64 exec, 0xffff"); S(f"ds_write_b32 {v(T)}, {v(vZERO)}"); S("s_mov_b64 exec, -1")
    S("s_branch L_fetch")

def conv_setup():
    vA = 8; vB = 4; T = 10
    A(f"v_and_b32 {v(T)}, 3, {v(vLANE)}"); A(f"v_sub_u32 {v(T)}, 3, {v(T)}"); A(f"v_mul_u32_u24 {v(T)}, {KCS}, {v(T)}")
    A(f"v_bfe_u32 {v(T+1)}, {v(vLANE)}, 2, 2"); A(f"v_lshlrev_b32 {v(T+1)}, 3, {v(T+1)}"); A(f"v_sub_u32 {v(T)}, {v(T)}, {v(T+1)}")
    A(f"v_and_b32 {v(T+2)}, 48, {v(vLANE)}")
    A(f"s_lshl_b32 s32, {s(sB2)}, 8"); A(f"s_sub_u32 s33, {s(sKB)}, s32"); A(f"s_add_u32 s33, s33, {24+256}")
    A(f"v_add3_u32 {v(vA)}, {v(T)}, {v(T+2)}, s33")
    A(f"v_and_b32 {v(T)}, 15, {v(vLANE)}"); A(f"v_lshrrev_b32 {v(T+1)}, 4, {v(vLANE)}"); A(f"v_lshl_add_u32 {v(T)}, {v(T)}, 1, {v(T+1)}")
    A(f"s_lshl_b32 s32, {s(sB2)}, 4"); A("s_sub_u32 s32, 30, s32"); A(f"v_add_u32 {v(T)}, s32, {v(T)}")
    for i in range(4):
        if i: A(f"v_subrev_u32 {v(T)}, 4, {v(T)}")
        A(f"v_bfe_u32 {v(T+1)}, {v(T)}, 3, 1"); A(f"v_xor_b32 {v(T+1)}, {s(sA)}, {v(T+1)}")
        A(f"v_lshl_add_u32 {v(T+1)}, {v(T)}, 1, {v(T+1)}"); A(f"v_lshlrev_b32 {v(T+1)}, 4, {v(T+1)}"); A(f"v_add_u32 {v(vB+i)}, {L_U[0]}, {v(T+1)}")
def conv_main2(filler):
    vA = 8; vB = 4
    def reads(i):
        F = CV_F + 64 * (i & 1); L = []
        for k in range(8):
            L.append(f"ds_read_b128 {v(F+32+4*k,4)}, {v(vB+i)} offset:{1024*k}")
            o = 64 * (59 - i - 8 * k)
            L.append(f"ds_read_b64 {v(F+4*k,2)}, {v(vA)} offset:{o}"); L.append(f"ds_read_b64 {v(F+4*k+2,2)}, {v(vA)} offset:{o+8}")
        return L
    for l in reads(0): A(l)
    first = set(); nm = 0
    prs = sorted([(a, b) for a in range(8) for b in range(8) if a + b <= 7], key=lambda p: (max(p), p[0] + p[1]))
    for i in range(4):
        F = CV_F + 64 * (i & 1)
        nxt = reads(i + 1) if i < 3 else []
        if i > 0: A("s_waitcnt lgkmcnt(0)")
        lastmax = -1
        for a, b in prs:
            if i == 0 and max(a, b) > lastmax and lastmax < 4:
                lastmax = max(a, b); A(f"s_waitcnt lgkmcnt({0 if lastmax == 4 else min(15, 3*(7-lastmax))})")
            c = a + b; acc = v(CV_ACC + 4 * c, 4)
            A(f"v_mfma_f32_16x16x32_bf16 {acc}, {v(F+4*a,4)}, {v(F+32+4*b,4)}, {acc if c in first else '0'}")
            first.add(c); nm += 1
            if nxt and (i > 0 or lastmax == 4):
                A(nxt.pop(0))
                if i == 0 and nxt: A(nxt.pop(0))
            filler(nm)
        assert not nxt
def h_common():
    A.label("L_conv")
    T = 12; vWD = 6
    if OPT["HPRIO"]: A("s_setprio 1")
    wcol(R_WD, "s38")
    fin_loads(A, sTT, sDT, SC, FX, 20)
    conv_setup()
    ev_wait(E_KRDY, 4)
    ev_wait(EV(R_EPI, 4), 4)
    stamp(A, 10)
    if OPT["CPRIO"]: A("s_setprio 1")
    def filler(nm):
        if nm == 109: A("s_add_u32 s38, s38, 32"); ev_set("s38")
        if nm == 112:
            A(f"s_lshl_b32 s32, {s(sB2)}, 12"); A(f"s_add_u32 s32, s32, {s(sKB)}"); A(f"v_lshl_add_u32 v16, {v(vLANE)}, 4, s32")
        if nm == 114: A(f"s_lshl_b32 s32, {s(sB2)}, 12"); A("s_xor_b32 s32, s32, 4096"); A(f"s_add_u32 s32, s32, {s(sKB)}"); A(f"v_lshl_add_u32 v17, {v(vLANE)}, 4, s32")
        if nm == 116: A(f"s_lshl_b32 s32, {s(sD)}, 12"); A(f"s_lshl_b32 s33, {s(sB2)}, 11"); A("s_add_u32 s32, s32, s33"); A(f"s_add_u32 s34, s32, {WS_S}")
        if nm == 118: A(f"v_lshlrev_b32 v18, 4, {v(vLANE)}"); A(f"s_cmp_eq_u32 {s(sB2)}, 1"); A("s_cselect_b64 s[42:43], -1, 0")
        if nm == 134: A("s_xor_b32 s39, s38, 8"); A(f"v_mov_b32 {v(vEV)}, s39"); A(f"ds_read_b32 {v(vET)}, {v(vEV)}")
    conv_main2(filler)
    stamp(A, 13)
    A("s_waitcnt lgkmcnt(0)"); A(f"v_cmp_ne_u32 vcc, 0, {v(vET)}"); ev_check()
    A("s_nop 2")
    for k in range(16):
        A(f"v_cndmask_b32 {v(CV_F+k)}, {v(CV_ACC+16+k)}, {v(CV_ACC+k)}, s[42:43]")
        if k % 4 == 3: A(f"ds_write_b128 v16, {v(CV_F+k-3,4)} offset:{256*(k-3)}")
    A("s_add_u32 s38, s38, 32"); ev_set("s38")
    for k in range(16): A(f"v_cndmask_b32 {v(CV_F+16+k)}, {v(CV_ACC+k)}, {v(CV_ACC+16+k)}, s[42:43]")
    A("s_xor_b32 s39, s38, 8"); ev_wait("s39")
    for k in range(4): A(f"ds_read_b128 {v(CV_F+32+4*k,4)}, v17 offset:{1024*k}")
    O = CV_F + 48
    for pr in range(2):
        A(f"s_waitcnt lgkmcnt({2-2*pr})")
        for k in range(8): A(f"v_add_f32 {v(CV_F+16+8*pr+k)}, {v(CV_F+16+8*pr+k)}, {v(CV_F+32+8*pr+k)}")
        for k in range(4): A(f"v_cvt_pk_bf16_f32 {v(O+4*pr+k)}, {v(CV_F+16+8*pr+2*k)}, {v(CV_F+17+8*pr+2*k)}")
        A("s_nop 1")
        A(f"v_permlane16_swap_b32 {v(O+4*pr)}, {v(O+4*pr+2)}"); A(f"v_permlane16_swap_b32 {v(O+4*pr+1)}, {v(O+4*pr+3)}")
        A(f"buffer_store_dwordx4 {v(O+4*pr,4)}, v18, {s(sWS,4)}, s34 offen offset:{1024*pr} {SC}")
    if OPT["CPRIO"]: A("s_setprio 0")
    A("s_add_u32 s38, s38, 32"); ev_set("s38")
    stamp(A, 14)
    A(f"s_lshr_b32 s32, {s(sD)}, 6"); A("s_lshl_b32 s32, s32, 1"); A(f"s_add_u32 s32, s32, {s(sB2)}"); A("s_lshl_b32 s32, s32, 6")
    A(f"s_and_b32 s33, {s(sD)}, 63"); A("s_add_u32 s32, s32, s33"); A("s_lshl_b32 s32, s32, 3"); A(f"s_add_u32 s36, s32, {FL_S}")
    A("s_waitcnt vmcnt(0)")
    stamp(A, 11)
    gflag_store(36)
    A(f"s_lshr_b32 s32, {s(sTT)}, 4"); A(f"s_lshl_b32 s33, {s(sDT)}, 1"); A("s_add_u32 s32, s32, s33"); A("s_lshl_b32 s32, s32, 2")
    A(f"s_and_b32 s40, {s(sWAVE)}, 3"); A("s_add_u32 s32, s32, s40"); A("s_lshl_b32 s32, s32, 7"); A(f"s_add_u32 s36, s32, {FL_S}")
    A(f"s_mov_b64 s[100:101], {s(P_WS,2)}")
    A(f"v_lshrrev_b32 v12, 3, {v(vLANE)}"); A("v_lshlrev_b32 v12, 12, v12"); A(f"v_and_b32 v13, 3, {v(vLANE)}"); A("v_lshl_add_u32 v12, v13, 4, v12")
    A(f"v_bfe_u32 v13, {v(vLANE)}, 2, 1"); A("v_lshl_add_u32 v12, v13, 9, v12")
    A(f"s_lshl_b32 s37, {s(sDT)}, 18"); A("s_lshl_b32 s33, s40, 16"); A("s_add_u32 s37, s37, s33")
    A(f"s_lshr_b32 s33, {s(sTT)}, 3"); A("s_lshl_b32 s33, s33, 10"); A("s_add_u32 s37, s37, s33")
    A(f"s_and_b32 s33, {s(sTT)}, 7"); A("s_lshl_b32 s33, s33, 6"); A("s_add_u32 s37, s37, s33"); A(f"s_add_u32 s37, s37, {WS_S}")
    A("s_lshl_b32 s41, s40, 11"); A(f"s_add_u32 s41, s41, {L_ST}")
    if OPT["LATE"] >= 0: ev_wait(EV(R_LATE, 4), 4)
    stamp(A, 15)
    spoll(A, "s36", 16, False, "s")
    stamp(A, 12)
    for i in range(2):
        A(f"s_add_u32 m0, s41, {1024*i}")
        if i: A("s_add_u32 s37, s37, 32768")
        else: A("s_nop 0")
        A(f"buffer_load_dwordx4 v12, {s(sWS,4)}, s37 offen {SC} lds")
    A.label("L_final")
    body = final(A, FX, OPT["SCOUT"], T=48, perm=True)
    A("s_waitcnt vmcnt(0) lgkmcnt(0)"); stamp(A, 20); A("s_barrier"); stamp(A, 21)
    body()
    stamp(A, 22)
    if Stamp.on: A("s_waitcnt vmcnt(0)"); stamp(A, 23); stamp_flush(A, 0)
    A.label("L_done")
    A("s_endpgm")

def kg():
    A(f"s_load_dwordx2 s[6:7], {s(P_WS,2)}, 0")
    mapping2(); mapping3()
    A("s_barrier")
    if OPT["YPRIO"]: A(f"s_setprio {OPT['YPRIO']}")
    kg4_pre(A)
    A("s_waitcnt lgkmcnt(0)")
    A("s_mov_b64 s[44:45], s[100:101]")
    A(f"s_cmp_lg_u32 {s(sWAVE)}, 6"); A("s_cbranch_scc1 L_k1")
    A(f"s_add_u32 {s(sV)}, s6, 0x7f4a7c15"); A(f"s_addc_u32 {s(sV+1)}, s7, 0x9e3779b9")
    for i in range(4): A(f"v_mov_b32 v{8+i}, 0")
    A(f"v_lshlrev_b32 v12, 4, {v(vLANE)}"); A(f"v_add_u32 v12, {L_U[0]}, v12"); A("ds_write_b128 v12, v[8:11]")
    A(f"v_mov_b32 v8, {s(sV)}"); A(f"v_mov_b32 v9, {s(sV+1)}"); A(f"v_mov_b32 v12, {L_V}")
    A("s_mov_b64 exec, 1"); A("ds_write_b64 v12, v[8:9]"); A("s_mov_b64 exec, -1")
    ev_set(E_VRDY)
    A.label("L_k1")
    A("s_waitcnt vmcnt(0)")
    stamp(A, 2)
    def hook():
        A(f"s_cmp_eq_u32 {s(sA)}, 1"); A("s_cbranch_scc1 L_k2")
        ev_wait(EV(R_LND, 6), 2)
        A(f"s_lshl_b32 s32, {s(sB)}, 5"); A(f"s_add_u32 s32, s32, {FL_LN}")
        stamp(A, 3)
        gflag_store(32)
        A.label("L_k2")
    PT = [224, 238, 240, 242]
    def hook2():
        A(f"s_cmp_eq_u32 {s(sA)}, 0"); A("s_cbranch_scc1 L_k5")
        S = SLOW; S.label("L_k5")
        if OPT["WTS"]:
            S(f"s_and_b32 s32, {s(sIDX)}, 30"); S("s_cmp_lg_u32 s32, 28"); S("s_cbranch_scc1 L_k3")
            PBs = wd_piece_addr(S, 244, 245)
            S(f"s_and_b32 s34, {s(sIDX)}, 1"); S(f"s_mul_i32 s34, s34, {43*16384}")
            for i in range(OPT["WTS"]):
                S(f"buffer_load_dword v246, v244, {s(sWD,4)}, s34 offen"); S(f"s_add_u32 s34, s34, {PBs}"); S("s_waitcnt vmcnt(1)")
            S("s_waitcnt vmcnt(0)")
        S("s_branch L_k3")
        ev_wait(E_VRDY); get_v()
        WT = OPT["WT"]
        A(f"s_and_b32 s32, {s(sIDX)}, {OPT['PST']}"); A("s_lshl_b32 s32, s32, 5"); A(f"s_add_u32 s32, s32, {EV(OPT['PWAIT']-1)}")
        PB = wd_piece_addr(A, 244, 245)
        A(f"s_and_b32 s34, {s(sIDX)}, 1"); A(f"s_mul_i32 s34, s34, {43*16384}"); A(f"s_lshr_b32 s35, {s(sIDX)}, 1"); A(f"s_mul_i32 s35, s35, {WT*PB}")
        A("s_add_u32 s34, s34, s35"); A(f"s_add_u32 s34, s34, {16*16384}")
        A(f"v_lshlrev_b32 v245, 5, {v(vLANE)}")
        A(f"s_mov_b32 s36, {FL_LN}"); A(f"s_mov_b32 s37, {FL_LN+4096}")
        ev_wait("s32", 2)
        stamp(A, 5)
        for i in range(WT):
            A(f"buffer_load_dword v{246+i}, v244, {s(sWD,4)}, s34 offen")
            if i + 1 < WT: A(f"s_add_u32 s34, s34, {PB}")
        def loads():
            for i in range(4): A(f"buffer_load_dwordx2 {v(PT[i],2)}, v245, {s(sWS,4)}, s{36+i//2} offen offset:{2048*(i%2)} {SC}")
        def test():
            for i in range(4):
                A(f"v_cmp_ne_u64 {'vcc' if i == 0 else 's[38:39]'}, {s(sV,2)}, {v(PT[i],2)}")
                if i: A("s_nop 0"); A("s_or_b64 vcc, vcc, s[38:39]")
        retry_loop(loads, test)
        A(f"s_mov_b32 m0, {E_LNOK}"); ev_dma(0)
        stamp(A, 6)
        A("s_cmp_lg_u32 s2, 0"); A(f"s_cbranch_scc1 L_k3")
        A("s_mov_b32 s33, 0"); gflag_store(33)
        A.label("L_k3")
    kg5_pass(A, sD, 44)
    A(f"v_lshl_add_u32 v8, {v(vLANE)}, 4, {s(sKB)}")
    A(f"s_lshl_b32 s32, {s(sA)}, 2"); A(f"s_add_u32 s32, s32, {E_XRDY}")
    A(f"s_cmp_gt_u32 {s(sWAVE)}, 3"); A("s_cbranch_scc1 L_k6")
    A("s_nop 6")
    for q in range(4): A(f"ds_write_b128 v8, {v(kgen5.ACC+4*q,4)} offset:{1024*q}")
    ev_set("s32")
    A("s_setprio 0")
    stamp(A, 17)
    A("s_branch L_gsetup")
    A.label("L_k6")
    stamp(A, 16)
    def partial():
        ev_wait("s32")
        for q in range(4): A(f"ds_read_b128 {v(128+4*q,4)}, v8 offset:{1024*q}")
        A("s_waitcnt lgkmcnt(0)")
        for q in range(16): A(f"v_add_f32 {v(kgen5.ACC+q)}, {v(kgen5.ACC+q)}, {v(128+q)}")
    kg5_expand(A, 44, sKB, partial)
    stamp(A, 8)
    A("s_setprio 0")
    hook(); hook2()
    if OPT["YPRIO"]: A("s_setprio 0")
    stamp(A, 4)
    if OPT["KW"] == 0: ev_wait(EV(15), 2)
    elif OPT["KW"] == 1: ev_wait(E_WD, 2)
    stamp(A, 7)
    if not OPT['KNOST']: kg4_store(A)
    A(f"s_lshl_b32 s32, {s(sA)}, 2"); A(f"s_add_u32 s32, s32, {E_KRDY}"); ev_set("s32")
    stamp(A, 9)
    ev_wait(E_LNOK)
    A("s_branch L_conv")

LNO = 48
def ln_stores(X):
    sk = X.new("L_ls")
    X(f"s_cmp_lt_u32 {s(sWAVE)}, 2"); X(f"s_cbranch_scc1 {sk}")
    for e in range(4): X(f"buffer_store_dwordx4 {v(LNO+4*e,4)}, v240, {s(sWS,4)}, s66 offen offset:{1024*e} {SC}")
    X("s_mov_b64 exec, s[68:69]")
    X(f"buffer_store_dwordx4 v[236:239], v240, {s(sWS,4)}, s67 offen {SC}")
    ev_dma(32 * R_LND, X)
    X.label(sk)
def ln2():
    Xr, Dd, S_, C = 64, 80, 112, 120
    A(f"v_mov_b32 {v(C)}, 0x3f803f80"); A(f"v_mov_b32 {v(C+1)}, 0x3f80"); A(f"v_mov_b32 {v(C+2)}, 0x3f800000")
    A(f"s_lshl_b32 s32, {s(sA)}, 12"); A(f"s_add_u32 s32, s32, {L_LNX}"); A(f"v_lshl_add_u32 {v(C+3)}, {v(vLANE)}, 4, s32")
    A(f"s_lshl_b32 s32, {s(sA)}, 11"); A(f"s_add_u32 s32, s32, {L_LNX}"); A(f"v_lshl_add_u32 {v(C+4)}, {v(vLANE)}, 4, s32")
    A(f"v_lshrrev_b32 {v(C+5)}, 4, {v(vLANE)}"); A(f"s_lshl_b32 s32, {s(sA)}, 5"); A(f"s_add_u32 s32, s32, {L_LNX+8192}")
    A(f"v_lshl_add_u32 {v(C+5)}, {v(C+5)}, 3, s32")
    A(f"v_lshlrev_b32 v240, 4, {v(vLANE)}"); A(f"v_add_u32 {v(C+6)}, {L_LNX+8192}, v240")
    A(f"s_mul_i32 s67, {s(sB)}, {UBLK}"); A(f"s_add_u32 s67, s67, {WS_U}"); A(f"s_lshl_b32 s66, {s(sA)}, 12"); A("s_add_u32 s66, s66, s67")
    A("s_add_u32 s67, s67, 8192"); A(f"s_cmp_eq_u32 {s(sA)}, 0"); A("s_cselect_b64 s[68:69], 15, 0")
    def red():
        A("s_nop 2")
        for i in range(2): A(f"v_permlane32_swap_b32 {v(S_+i)}, {v(S_+2+i)}")
        for i in range(2): A(f"v_add_f32 {v(S_+i)}, {v(S_+i)}, {v(S_+2+i)}")
        A("s_nop 1"); A(f"v_permlane16_swap_b32 {v(S_)}, {v(S_+1)}"); A(f"v_add_f32 {v(S_)}, {v(S_)}, {v(S_+1)}")
        for k in (8, 4, 2, 1): A("s_nop 1"); A(f"v_add_f32_dpp {v(S_)}, {v(S_)}, {v(S_)} row_ror:{k} row_mask:0xf bank_mask:0xf")
    def rb(r): A(f"v_cvt_pk_bf16_f32 {v(r)}, {v(r)}, {v(r)}"); A(f"v_and_b32 {v(r)}, 0xffff0000, {v(r)}")
    for q in range(4):
        for r in range(4):
            if q == 0: A(f"s_waitcnt vmcnt({3-r})")
            A(f"v_dot2_f32_bf16 {v(S_+r)}, {v(Xr+4*r+q)}, {v(C)}, {'0' if q == 0 else v(S_+r)}")
    red()
    A(f"v_mul_f32 {v(S_+6)}, {fl(1/512)}, {v(S_)}"); A(f"v_mov_b32 {v(S_+4)}, {v(S_+6)}"); rb(S_+4)
    A(f"v_xor_b32 {v(S_+3)}, 0x80000000, {v(S_+4)}"); A(f"v_sub_f32 {v(S_+6)}, {v(S_+6)}, {v(S_+4)}")
    for r in range(4): A(f"v_readlane_b32 s{32+r}, {v(S_+3)}, {16*r}")
    for r in range(4):
        for q in range(4):
            A(f"v_dot2_f32_bf16 {v(Dd+8*r+2*q)}, {v(Xr+4*r+q)}, {v(C+1)}, s{32+r}"); A(f"v_dot2_f32_bf16 {v(Dd+8*r+2*q+1)}, {v(Xr+4*r+q)}, {v(C+2)}, s{32+r}")
    for q in range(4):
        for r in range(4):
            d = v(Dd+8*r+2*q, 2)
            A(f"v_pk_mul_f32 {v(Xr+2*r,2)}, {d}, {d}" if q == 0 else f"v_pk_fma_f32 {v(Xr+2*r,2)}, {d}, {d}, {v(Xr+2*r,2)}")
    for r in range(4): A(f"v_add_f32 {v(S_+r)}, {v(Xr+2*r)}, {v(Xr+2*r+1)}")
    red()
    A(f"v_mul_f32 {v(S_)}, {fl(1/512)}, {v(S_)}"); A(f"v_fma_f32 {v(S_)}, -{v(S_+6)}, {v(S_+6)}, {v(S_)}"); A(f"v_max_f32 {v(S_)}, 0, {v(S_)}")
    rb(S_); A(f"v_add_f32 {v(S_)}, {fl(1e-5)}, {v(S_)}"); rb(S_); A(f"v_sqrt_f32 {v(S_)}, {v(S_)}"); A("s_nop 0"); rb(S_)
    A(f"v_rcp_f32 {v(S_+5)}, {v(S_)}"); A("s_nop 0")
    for r in range(4): A(f"v_readlane_b32 s{32+r}, {v(S_+5)}, {16*r}")
    for r in range(4):
        sel = "op_sel_hi:[1,0]" if r % 2 == 0 else "op_sel:[0,1] op_sel_hi:[1,1]"
        for q in range(4): A(f"v_pk_mul_f32 {v(Dd+8*r+2*q,2)}, {v(Dd+8*r+2*q,2)}, s[{32+(r&2)}:{33+(r&2)}] {sel}")
    for e in range(8):
        for p in range(2): A(f"v_cvt_pk_bf16_f32 {v(Xr+2*e+p)}, {v(Dd+16*p+e)}, {v(Dd+16*p+8+e)}")
        if e % 2: A(f"ds_write_b128 {v(C+3)}, {v(Xr+2*e-2,4)} offset:{512*(e-1)}")
    A("s_mov_b32 exec_lo, 0x10001"); A("s_mov_b32 exec_hi, 0x10001"); A(f"ds_write_b64 {v(C+5)}, {v(S_+4,2)}"); A("s_mov_b64 exec, -1")
    A(f"s_add_u32 s32, s39, {32*R_LNX}"); ev_set("s32")
    ev_wait(EV(R_LNX, 6), 2)
    for e in range(4):
        for p in range(2): A(f"ds_read_b64 {v(LNO+4*e+2*p,2)}, {v(C+4)} offset:{4096*p+1024*(e>>1)+8*(e&1)}")
    A(f"ds_read_b128 v[236:239], {v(C+6)}")
    if OPT["LS"] == 0: A("s_waitcnt lgkmcnt(0)"); A("s_mov_b32 m0, s39"); ln_stores(A)
def gwave():
    vW = 4; vXs = 10; T = 24; ST = 20
    sMH, sNH = sA, sB2
    sTB, sKQ = sA, sB2
    stamp(A, 14)
    mapping2(); mapping3()
    A("s_barrier")
    if OPT["LNPRIO"]: A("s_setprio 2")
    wcol(0, "s39")
    ln2()
    if OPT["LNPRIO"]: A("s_setprio 0")
    stamp(A, 17)
    A.label("L_gsetup")
    A(f"v_lshlrev_b32 v240, 4, {v(vLANE)}")
    A(f"v_bfe_u32 {v(T)}, {v(vLANE)}, 4, 1")
    A(f"v_mul_u32_u24 {v(T)}, {UPOFF}, {v(T)}")
    A(f"v_lshrrev_b32 {v(T+1)}, 5, {v(vLANE)}")
    A(f"v_bfe_u32 {v(T+2)}, {v(vLANE)}, 2, 2")
    A(f"v_lshl_add_u32 {v(T+2)}, {v(T+1)}, 3, {v(T+2)}")
    A(f"v_mul_u32_u24 {v(T+2)}, 192, {v(T+2)}")
    A(f"v_and_b32 {v(T+3)}, 3, {v(vLANE)}")
    A(f"v_lshl_add_u32 {v(T+2)}, {v(T+3)}, 3, {v(T+2)}")
    A(f"s_mul_i32 s32, {s(sMH)}, 96")
    A(f"v_add3_u32 {v(T+4)}, {v(T)}, {v(T+2)}, s32")
    A(f"s_lshl_b32 s33, {s(sNH)}, 5"); A("s_xor_b32 s34, s33, 32"); A("s_mov_b32 s35, 64")
    A(f"s_mul_i32 s36, {s(sNH)}, 3072"); A("s_sub_u32 s37, 3072, s36")
    for sl in range(3):
        for i in range(2):
            A(f"s_add_u32 s38, s{33+sl}, s{36+i}")
            A(f"v_add_u32 {v(vW+2*sl+i)}, s38, {v(T+4)}")
    A(f"v_and_b32 {v(T)}, 31, {v(vLANE)}")
    A(f"v_bfe_u32 {v(T+2)}, {v(vLANE)}, 1, 3")
    A(f"v_xor_b32 {v(T+2)}, {v(T+2)}, {v(T+1)}")
    A(f"v_lshlrev_b32 {v(T+2)}, 4, {v(T+2)}")
    A(f"v_lshl_add_u32 {v(T)}, {v(T)}, 7, {v(T+2)}")
    A(f"v_xor_b32 {v(T)}, s33, {v(T)}")
    A(f"s_lshl_b32 s32, {s(sNH)}, 13"); A(f"s_add_u32 s32, s32, {L_X}")
    for k in range(4):
        A(f"v_xor_b32 {v(T+3)}, {32*k}, {v(T)}")
        A(f"v_add_u32 {v(vXs+k)}, s32, {v(T+3)}")
    A(f"v_lshrrev_b32 {v(T)}, 2, {v(vLANE)}")
    A(f"v_lshrrev_b32 {v(T+1)}, 4, {v(vLANE)}")
    A(f"v_xor_b32 {v(T)}, {v(T)}, {v(T+1)}")
    A(f"v_and_b32 {v(T)}, 1, {v(T)}")
    A(f"v_cmp_eq_u32 vcc, 0, {v(T)}")
    A(f"v_mov_b32 {v(T+1)}, 0x3f803f80")
    wcol(0, "s39")
    for k in range(4): A(f"v_cndmask_b32 {v(G_SEL+k)}, 0, {v(T+1)}, vcc")
    A("s_mov_b32 m0, s39")
    stamp(A, 18)
    ev_addr(EV(0), 2)
    BF = G_F + 40; AF = G_F + 48
    LT = []
    X = LT.append
    X(f"s_lshl_b32 s32, {s(sWAVE)}, 9"); X(f"s_add_u32 s32, s32, {L_CSX}"); X(f"v_lshl_add_u32 v16, {v(vLANE)}, 2, s32")
    X(f"s_xor_b32 s33, {s(sWAVE)}, 2"); X("s_lshl_b32 s33, s33, 9"); X(f"s_add_u32 s33, s33, {L_CSX}"); X(f"v_lshl_add_u32 v17, {v(vLANE)}, 2, s33")
    X(f"v_and_b32 {v(T)}, 31, {v(vLANE)}"); X(f"s_lshl_b32 s33, {s(sNH)}, 9"); X(f"s_add_u32 s33, s33, {L_STAT}"); X(f"v_lshl_add_u32 v19, {v(T)}, 3, s33")
    for k in (2, 3, 6, 7): X(f"v_mov_b32 {v(BF+k)}, 0")
    for sl in range(3): X(f"v_mov_b32 {v(AF+4*sl+2)}, 0"); X(f"v_mov_b32 {v(AF+4*sl+3)}, 0")
    X(f"v_cmp_gt_u32 s[42:43], 32, {v(vLANE)}")
    X("s_mov_b32 s41, 0x07060302")
    X("s_xor_b32 s33, s39, 8"); X(f"s_add_u32 s33, s33, {32*R_CS}"); X("v_mov_b32 v18, s33")
    X(f"v_lshlrev_b32 v37, 4, {v(vLANE)}"); X(f"s_lshl_b32 s32, {s(sNH)}, 10"); X("v_add_u32 v14, s32, v37"); X("v_xor_b32 v15, 1024, v14")
    X(f"s_lshl_b32 s32, {s(sRT)}, 2"); X(f"s_lshl_b32 s33, {s(sNH)}, 1"); X("s_add_u32 s32, s32, s33"); X("s_mul_i32 s32, s32, 86")
    X(f"s_lshl_b32 s36, {s(sFC)}, 1"); X(f"s_add_u32 s36, s36, {s(sMH)}")
    X(f"s_lshl_b32 s37, {s(sRT)}, 1"); X(f"s_add_u32 s37, s37, {s(sNH)}"); X("s_lshl_b32 s37, s37, 5"); X("s_add_u32 s37, s37, s36")
    X("s_cmp_gt_u32 s36, 14\ns_cselect_b32 s33, 2, 0"); X("s_add_u32 s37, s37, s33")
    X("s_lshl_b32 s37, s37, 3"); X(f"s_add_u32 s37, s37, {FL_H}")
    X(f"v_mov_b32 {v(T+12)}, {L_V}")
    X("s_mul_i32 s36, s36, 3"); X("s_add_u32 s32, s32, s36"); X("s_lshl_b32 s32, s32, 10")
    X(f"s_add_u32 s34, s32, {WS_H}"); X(f"s_add_u32 s35, s34, {86*1024}")
    X(f"v_mov_b32 {v(T+2)}, 1.0")
    X(f"s_lshr_b32 s32, {s(sWAVE)}, 1"); X(f"s_lshl_b32 s33, {s(sTT)}, 2"); X("s_add_u32 s32, s32, s33")
    X(f"s_mul_i32 s38, s32, {2*UBLK}"); X(f"s_add_u32 s38, s38, {WS_U + 8192 + 4}")
    X(f"s_lshl_b32 s33, {s(sDT)}, 1"); X(f"s_add_u32 s33, s33, {s(sA)}"); X("s_lshl_b32 s33, s33, 6"); X("s_lshl_b32 s32, s32, 14"); X("s_add_u32 s33, s33, s32")
    X(f"v_and_b32 v42, 15, {v(vLANE)}"); X("v_lshlrev_b32 v42, 10, v42"); X(f"v_and_b32 v43, 48, {v(vLANE)}"); X(f"v_add3_u32 {v(FX+5)}, v42, v43, s33")
    X(f"v_bfe_u32 v42, {v(vLANE)}, 3, 1"); X(f"v_mul_u32_u24 v42, {UBLK}, v42"); X(f"v_and_b32 v43, 7, {v(vLANE)}"); X("v_lshl_add_u32 v3, v43, 3, v42")
    nG1 = len(LT)
    X(f"v_and_b32 v2, 3, {v(vLANE)}"); X("v_lshlrev_b32 v2, 2, v2"); X(f"v_add_u32 v2, {EV(15, 4)}, v2")
    X(f"v_lshlrev_b32 v37, 4, {v(vLANE)}")
    t = 42
    X(f"v_bfe_u32 {v(t)}, {v(vLANE)}, 2, 2"); X(f"v_lshrrev_b32 {v(t+1)}, 5, {v(vLANE)}"); X(f"v_lshl_add_u32 {v(t+1)}, {v(t+1)}, 2, {v(t)}")
    X(f"v_lshlrev_b32 {v(t+1)}, 7, {v(t+1)}"); X(f"v_lshrrev_b32 {v(t)}, 1, {v(t)}"); X(f"v_lshlrev_b32 {v(t)}, 6, {v(t)}")
    X(f"v_bfe_u32 {v(t+2)}, {v(vLANE)}, 4, 1"); X(f"v_lshlrev_b32 {v(t+2)}, 5, {v(t+2)}"); X(f"v_and_b32 {v(t+3)}, 3, {v(vLANE)}")
    X(f"v_lshl_add_u32 {v(t+2)}, {v(t+3)}, 3, {v(t+2)}"); X(f"v_add3_u32 {v(t)}, {v(t)}, {v(t+1)}, {v(t+2)}")
    X(f"s_lshl_b32 s32, {s(sKQ)}, 11"); X(f"v_add_u32 {v(vR)}, s32, {v(t)}"); X(f"v_xor_b32 {v(vR+1)}, 64, {v(vR)}")
    X(f"v_add_u32 {v(vR+2)}, 0x10000, {v(vR)}"); X(f"v_add_u32 {v(vR+3)}, 0x10000, {v(vR+1)}")
    X(f"s_lshl_b32 s32, {s(sTT)}, 1"); X(f"s_add_u32 s32, s32, {s(sTB)}"); X("s_mul_i32 s32, s32, 86")
    X(f"s_mul_i32 s33, {s(sKQ)}, 43"); X("s_add_u32 s32, s32, s33"); X("s_lshl_b32 s32, s32, 10"); X(f"s_add_u32 s40, s32, {WS_H}")
    X(f"v_lshrrev_b32 {v(t)}, 3, {v(vLANE)}"); X(f"v_lshlrev_b32 {v(t)}, 10, {v(t)}"); X(f"v_lshrrev_b32 {v(t+1)}, 2, {v(vLANE)}"); X(f"v_and_b32 {v(t+1)}, 4, {v(t+1)}")
    X(f"v_and_b32 {v(t+2)}, 7, {v(vLANE)}"); X(f"v_xor_b32 {v(t+1)}, {v(t+1)}, {v(t+2)}"); X(f"v_lshl_add_u32 v46, {v(t+1)}, 4, {v(t)}")
    X(f"s_mul_i32 s44, {s(sKQ)}, {43*16384}"); X(f"s_lshl_b32 s32, {s(sDT)}, 7"); X("s_add_u32 s44, s44, s32")
    X(f"s_lshl_b32 s32, {s(sTB)}, 13"); X("s_add_u32 s44, s44, s32"); X(f"s_add_u32 s44, s44, {(G2_P-1)*16384}")
    X(f"s_lshl_b32 s45, {s(sKQ)}, 11"); X(f"s_lshl_b32 s32, {s(sTB)}, 10"); X("s_add_u32 s45, s45, s32")
    X(f"s_lshl_b32 s32, {s(sTT)}, 1"); X(f"s_add_u32 s32, s32, {s(sKQ)}"); X("s_lshl_b32 s32, s32, 7"); X(f"s_add_u32 s47, s32, {FL_H}")
    X(f"s_mov_b64 s[100:101], {s(P_WS,2)}")
    A(f"s_cmp_ge_u32 {s(sIDX)}, 30"); A("s_cbranch_scc1 L_spare_g")
    S = SLOW
    S.label("L_spare_g")
    if OPT["LS"]: S("s_waitcnt lgkmcnt(0)"); ln_stores(S)
    for l in LT[nG1:]: S(l)
    ev_wait(E_SRDY, 1, S)
    get_v(S)
    S(f"s_lshl_b32 s37, {s(sB)}, 2"); S(f"s_add_u32 s37, s37, {s(sWAVE)}"); S("s_lshl_b32 s37, s37, 6"); S(f"s_add_u32 s37, s37, 0x20000"); S("s_mov_b32 s36, 0")
    S(f"v_lshl_add_u32 {v(T)}, {v(vLANE)}, 5, s39")
    S("s_mov_b64 exec, 0xffff"); S(f"ds_write_b32 {v(T)}, {v(vZERO)}"); S("s_mov_b64 exec, -1")
    fin_loads(S, sTT, sDT, SC, FX, 10)
    S("s_branch L_e1end")
    def reads(ks):
        st, i = ks // 2, ks % 2
        F = G_F + 20 * (ks % 2); L = []
        wo = L_W + (st % NWS) * WSLOT
        xo = ((ks // 4) % NXS) * XSLOT
        L.append(f"ds_read_b128 {v(F+12,4)}, {v(vXs + ks%4)} offset:{xo}")
        for sl in range(3):
            for h in range(2): L.append(f"ds_read_b64_tr_b16 {v(F+4*sl+2*h,2)}, {v(vW+2*sl+i)} offset:{wo + h*768}")
            if sl == 0: L.append(f"ds_read_b128 {v(F+16,4)}, {v(vXs + ks%4)} offset:{xo+4096}")
        return L
    def split(c, sl):
        a = AF + 4 * sl
        A(f"v_and_b32 {v(T+8)}, 0xffff0000, {v(c)}")
        A(f"v_sub_f32 {v(T+4)}, {v(c)}, {v(T+8)}")
        A(f"v_and_b32 {v(T+9)}, 0xffff0000, {v(T+4)}")
        A(f"v_sub_f32 {v(T+4)}, {v(T+4)}, {v(T+9)}")
        A(f"v_perm_b32 {v(a)}, {v(T+9)}, {v(T+8)}, s41")
        A(f"v_lshrrev_b32 {v(a+1)}, 16, {v(T+4)}")
    def fold(sl, nt):
        acc = v(G_ACC + 16*(2*sl+nt), 16)
        A(f"v_mfma_f32_32x32x16_bf16 {acc}, {v(AF+4*sl,4)}, {v(BF+4*nt,4)}, {acc}")
    ev_wait()
    stamp(A, 2)
    for l in reads(0): A(l)
    for ks in range(32):
        F = G_F + 20 * (ks % 2)
        A(f"s_waitcnt lgkmcnt(0)")
        nxt = reads(ks + 1) if ks < 31 else []
        if ks % 2 == 0 and ks < 30: nxt += [f"v_add_u32 {v(vEV)}, 32, {v(vEV)}", f"ds_read_b32 {v(vET)}, {v(vEV)}"]
        if ks == 30: nxt += [f"v_mov_b32 {v(vEV)}, {E_SRDY}", f"ds_read_b32 {v(vET)}, {v(vEV)}"]
        cs = [0, 2] if ks % 2 == 0 else [0]
        if ks % 2 == 1: A(f"v_cmp_ne_u32 vcc, 0, {v(vET)}")
        def csm(c): A(f"v_mfma_f32_16x16x32_bf16 {v(G_CS+4*c,4)}, {v(G_SEL,4)}, {v(F+4*c,4)}, {'0' if ks == 0 else v(G_CS+4*c,4)}")
        if ks == 31: csm(cs.pop(0))
        n = 0
        for sl in range(3):
            for nt in range(2):
                acc = v(G_ACC + 16*(2*sl+nt), 16)
                A(f"v_mfma_f32_32x32x16_bf16 {acc}, {v(F+4*sl,4)}, {v(F+12+4*nt,4)}, {'0' if ks == 0 else acc}")
                n += 1
                if n == 1 and ks % 2 == 1:
                    ev_dma(32 * (ks // 2))
                    ev_check()
                    if ks < 31: continue
                if ks == 31:
                    if n == 1:
                        for q in range(2): A(f"ds_read_b64 {v(ST+2*q,2)}, v19 offset:{256*q}")
                        A(f"ds_read_b64 {v(T+10,2)}, {v(T+12)}")
                    if n == 2:
                        A(f"ds_write_b32 v16, {v(G_CS)}"); A(f"ds_write_b32 v16, {v(G_CS+8)} offset:256")
                        A(f"s_add_u32 s32, s39, {32*R_CS}"); ev_set("s32")
                    if n == 3: split(G_CS, 0)
                    if n == 4:
                        A("s_waitcnt lgkmcnt(3)")
                        A(f"v_readfirstlane_b32 {s(sV)}, {v(T+10)}"); A(f"v_readfirstlane_b32 {s(sV+1)}, {v(T+11)}")
                    if n in (4, 5):
                        q = n - 4
                        A(f"v_xor_b32 {v(T+8)}, 0x80000000, {v(ST+2*q)}")
                        A(f"v_cndmask_b32 {v(T+8)}, 0, {v(T+8)}, s[42:43]")
                        A(f"v_lshrrev_b32 {v(BF+4*q+1)}, 16, {v(T+8)}")
                        A(f"v_or_b32 {v(BF+4*q)}, {v(T+8)}, {v(BF+4*q+1)}")
                    continue
                for _ in range(3 if (n < 3 or ks % 2 == 1) else 2):
                    if nxt: A(nxt.pop(0))
                if n >= 3 and n < 6 and cs and not (len(cs) < 6 - n): csm(cs.pop(0))
                if n == 6 and ks + 1 == OPT["LS"]: ln_stores(A); continue
                if n == 6 or (n == 5 and ks % 2 == 1):
                    for _ in range(4 if ks < 8 else 3):
                        if LT: A(LT.pop(0))
        assert not nxt and not cs, (ks, nxt, cs)
        if ks in (7, 15, 23): stamp(A, 3 + ks // 8)
    assert not LT
    stamp(A, 6)
    A("s_nop 0")
    fold(0, 0); fold(0, 1)
    for nt in range(2): A(f"v_mul_f32 {v(ST+2*nt)}, {fl(-LOG2E)}, {v(ST+2*nt+1)}")
    A(f"v_mov_b32 {v(vEV)}, v18")
    A(f"buffer_load_dwordx4 {v(FX,4)}, {v(FX+5)}, {s(sX,4)}, 0 offen")
    A(f"buffer_load_dword {v(FX+4)}, v3, {s(sWS,4)}, s38 offen {SC}")
    A("s_cmp_ge_u32 s36, 85"); A("s_cbranch_scc1 L_e1end")
    A("s_nop 3")
    stamp(A, 7)
    def tile(sl, nt, fill, mid=None, mf=()):
        a = G_ACC + 16*(2*sl+nt)
        va, off = ((14, 0), (15, 0), (37, 2048))[sl]
        L = [f"v_pk_mul_f32 {v(a+2*k,2)}, {v(a+2*k,2)}, {v(ST+2*nt,2)} op_sel_hi:[1,0]" for k in range(4)]
        L += [f"v_exp_f32 {v(a+k)}, {v(a+k)}" for k in range(8)]
        L += [f"v_pk_add_f32 {v(a+2*k,2)}, {v(a+2*k,2)}, {v(T+2,2)} op_sel_hi:[1,0]" for k in range(4)]
        L += [f"v_rcp_f32 {v(a+k)}, {v(a+k)}" for k in range(8)]
        L += [f"v_pk_mul_f32 {v(a+2*k,2)}, {v(a+2*k,2)}, {v(a+8+2*k,2)}" for k in range(4)]
        L += [f"v_cvt_pk_bf16_f32 {v(a+8+k)}, {v(a+2*k)}, {v(a+2*k+1)}" for k in range(4)]
        mf = list(mf)
        for n, l in enumerate(L):
            if n == 4 and mid: mid()
            A(l)
            if fill and l.startswith(("v_exp", "v_rcp")): A(fill.pop(0))
            if mf and n in (5, 8, 16, 19): fold(*mf.pop(0))
        if not OPT["NOST"]: A(f"buffer_store_dwordx4 {v(a+8,4)}, {v(va)}, {s(sWS,4)}, s{34+nt} offen offset:{off} {SC}")
    tile(0, 0, [f"ds_read_b32 {v(vET)}, {v(vEV)}"])
    A("s_waitcnt lgkmcnt(0)"); A(f"v_cmp_ne_u32 vcc, 0, {v(vET)}"); ev_check()
    A(f"ds_read_b32 {v(T+5)}, v17"); A(f"ds_read_b32 {v(T+6)}, v17 offset:256")
    def folds():
        A("s_waitcnt lgkmcnt(0)")
        split(T+5, 1)
        A(f"v_add_f32 {v(T+6)}, {v(T+6)}, {v(G_CS+8)}")
        split(T+6, 2)
    tile(0, 1, [], mid=folds, mf=[(1, 0), (1, 1), (2, 0), (2, 1)])
    tile(1, 0, []); tile(1, 1, [])
    A("s_cmp_ge_u32 s36, 84"); A("s_cbranch_scc1 L_e1end")
    tile(2, 0, []); tile(2, 1, [f"v_mov_b32 {v(vEV)}, v2", f"ds_read_b32 {v(vET)}, {v(vEV)}"])
    S.label("L_e1end"); S(f"v_mov_b32 {v(vEV)}, v2"); S(f"ds_read_b32 {v(vET)}, {v(vEV)}"); S("s_nop 7"); S("s_branch L_e2end")
    A.label("L_e2end")
    if OPT["GPRIO"]: A("s_setprio 2")
    stamp(A, 8)
    A("s_waitcnt lgkmcnt(0)"); A(f"v_cmp_ne_u32 vcc, 0, {v(vET)}"); ev_check()
    if OPT["EE"]: A(f"s_add_u32 s32, s39, {32*R_EPI}"); ev_set("s32")
    ev_addr(E_WD, 2)
    nv = 0
    for i in range(G2_P, 43):
        k = i - G2_P
        if k == OPT["FD"]:
            A(f"s_waitcnt vmcnt({nv})")
            stamp(A, 9)
            gflag_store(37)
            A("s_cmp_lg_u32 s36, 42"); A("s_cbranch_scc1 L_f2")
            A("s_add_u32 s37, s37, 16"); A(f"s_mov_b64 s[34:35], {s(sV,2)}"); A(f"s_atomic_swap_x2 s[34:35], {s(P_WS,2)}, s37")
            A.label("L_f2")
        if i == G2_NA:
            A("s_mov_b32 m0, s39"); ev_dma(32 * R_WD2)
            ev_wait_sm()
            for p in range(G2_P):
                for l in wd_reads(p, PRE[p]): A(l)
            A(f"s_add_u32 s32, s39, {32*(R_PULL if OPT['EE'] else R_EPI)}"); ev_set("s32")
            A("s_xor_b32 s32, s32, 4"); ev_wait_sm("s32")
        if k == OPT["PP"]:
            spoll_issue(A, "s47")
        A(f"s_add_u32 m0, s45, {4096*pslot(i)}")
        A("s_add_u32 s44, s44, 16384")
        A(f"buffer_load_dwordx4 v46, {s(sWD,4)}, s44 offen lds"); nv += 1
    A("s_mov_b32 m0, s39"); ev_dma(32 * R_BL); nv += 1
    for k in range(4): A(f"v_mov_b32 {v(4+k)}, {v(vR+k)}")
    globals()["vR"] = 4
    vH = 8
    A(f"v_lshlrev_b32 {v(vH)}, 4, {v(vLANE)}")
    stamp(A, 11)
    spoll(A, "s47", 15, True, "h")
    if Stamp.on: A("v_writelane_b32 v255, s46, 31")
    stamp(A, 12)
    NH = len(HW)
    def hload(i):
        if i % 4 == 0 and i: A(f"s_add_u32 s40, s40, 4096")
        A(f"buffer_load_dwordx4 {v(HW[i%NH],4)}, {v(vH)}, {s(sWS,4)}, s40 offen offset:{1024*(i%4)} {SC}")
    def mid(row):
        A(f"s_lshl_b32 s33, {s(sKQ)}, 3"); A(f"s_add_u32 s33, s33, {EV(row, 4)}"); ev_wait("s33", 2)
    for i in range(NH): hload(i)
    if OPT["GPRIO"]: A("s_setprio 0")
    LA = 3
    lg = []
    for i in range(43):
        F = PRE[i % G2_P]
        nxt = []
        if G2_P <= i + LA < 43:
            if i + LA == G2_P: mid(R_WD2); lg = []
            if i + LA == G2_NA: mid(R_BL); lg = []
            nxt = wd_reads(i + LA, PRE[(i + LA) % G2_P])
        w = f"s_waitcnt vmcnt({min(43, i + NH) - i - 1})"
        if i in lg: w += f" lgkmcnt({len(lg) - 1 - max(n for n, x in enumerate(lg) if x == i)})"
        A(w)
        lg += [i + LA] * len(nxt)
        for dt in range(2):
            acc = v(G2_ACC + 16*dt, 16)
            if not OPT["NOMF"]: A(f"v_mfma_f32_32x32x16_bf16 {acc}, {v(F+4*dt,4)}, {v(HW[i%NH],4)}, {'0' if i == 0 else acc}")
            for _ in range(2):
                if nxt: A(nxt.pop(0))
        if i == OPT["LATE"]: lg.append(-1)
        if Stamp.on and Stamp.only is None and i in (0, 14, 28): stamp(A, {0: 15, 14: 16, 28: 19}[i]); lg = []
        if i + NH < 43: hload(i + NH)
        if i == OPT["LATE"]:
            A(f"s_add_u32 s33, s39, {32*R_LATE}"); ev_set("s33")
    stamp(A, 13)
    ev_wait(EV(R_XR, 4), 4)
    g2_partials(A, sTB, sKQ)
    A("s_branch L_final")

if Stamp.on: A("v_mov_b32 v255, 0"); stamp(A, 0)
A("s_load_dwordx16 s[64:79], s[0:1], 0")
A("s_load_dwordx16 s[80:95], s[0:1], 64")
A("s_cmp_ge_u32 s2, 256"); A("s_cbranch_scc1 L_done")
A("s_getpc_b64 s[32:33]"); A.label("L_pcref")
A(f"s_lshr_b32 {s(sIDX)}, s2, 3")
A(f"s_lshl_b32 s34, {s(sIDX)}, 11")
A("v_lshl_add_u32 v2, v0, 2, s34")
A("v_min_u32 v2, L_codeend-L_pcref-4, v2")
A("global_load_dword v242, v2, s[32:33]")
A("v_lshrrev_b32 v2, 6, v0")
A(f"v_and_b32 {v(vLANE)}, 63, v0")
A(f"v_readfirstlane_b32 {s(sWAVE)}, v2")
A("v_and_b32 v2, 255, v0"); A("v_lshlrev_b32 v2, 2, v2"); A(f"v_add_u32 v2, {L_CTL}, v2"); A("v_mov_b32 v3, 1"); A("ds_write_b32 v2, v3")
A(f"s_and_b32 {s(sXCD)}, s2, 7")
A(f"s_lshl_b32 {s(sB)}, {s(sXCD)}, 5"); A(f"s_add_u32 {s(sB)}, {s(sB)}, {s(sIDX)}")
A(f"s_and_b32 {s(sA)}, {s(sWAVE)}, 1")
A(f"s_and_b32 s34, {s(sIDX)}, 3"); A("s_lshl_b32 s34, s34, 1"); A(f"s_add_u32 s34, s34, {s(sA)}")
A(f"s_lshl_b32 s35, {s(sXCD)}, 3"); A("s_add_u32 s34, s34, s35"); A("s_lshl_b32 s34, s34, 3")
A(f"s_lshr_b32 s35, {s(sIDX)}, 2"); A(f"s_add_u32 {s(sD)}, s34, s35")
A(f"s_lshr_b32 s36, {s(sWAVE)}, 1"); A("s_cmp_eq_u32 s36, 2"); A("s_cbranch_scc1 L_ld")
A(f"s_lshl_b32 s34, {s(sD)}, 8"); A(f"s_lshl_b32 s35, {s(sWAVE)}, 5"); A("s_and_b32 s35, s35, 128"); A("s_add_u32 s34, s34, s35")
A(f"v_and_b32 v3, 31, v0"); A(f"v_lshl_add_u32 v3, v3, 2, s34")
A(f"s_lshr_b32 s35, {s(sD)}, 1"); A("s_lshl_b32 s35, s35, 2")
A(f"s_lshl_b32 s34, {s(sB)}, 1"); A(f"s_add_u32 s34, s34, {s(sA)}"); A("s_lshl_b32 s34, s34, 12"); A(f"v_lshl_add_u32 v2, {v(vLANE)}, 4, s34")
A("s_waitcnt lgkmcnt(0)")
stamp(A, 1)
A(f"s_cmp_eq_u32 s36, 1"); A("s_cbranch_scc1 L_e1")
A(f"s_load_dword s100, {s(P_LDT,2)}, s35")
A(f"s_load_dword s101, {s(P_DSK,2)}, s35")
for i, p in enumerate((P_ARE, P_AIM, P_BRE, P_BIM, P_CRE, P_CIM)): A(f"global_load_dword {v(PRM4+i)}, v3, {s(p,2)}")
A("s_branch L_kg")
A.label("L_e1")
for r in range(4): A(f"global_load_dwordx4 {v(64+4*r,4)}, v2, {s(P_X,2)} offset:{r*1024}")
A("s_branch L_g")
A.label("L_ld")
loader(); h_common()
A.label("L_stub")
A(f"s_sleep {OPT['SLP']}")
A(f"ds_read_b32 {v(vET)}, {v(vEV)}"); A("s_waitcnt lgkmcnt(0)"); A(f"v_cmp_ne_u32 vcc, 0, {v(vET)}")
A("s_cbranch_vccnz L_stub"); A("s_setpc_b64 s[62:63]")
A(".p2align 6"); A.label("L_kg"); kg()
A(".p2align 6"); A.label("L_g"); gwave()
lines = A.lines + ["    .p2align 6"] + SLOW.lines + ["L_codeend:"]
if OPT["ALIGN"]:
    lines, npm, nn = align8([KNAME + ":"] + lines); lines = lines[1:]; print("align: promoted", npm, "nops", nn)
body = "\n".join(lines) + "\n"
out = HDR + f"; @launch grid=(256,1,1) block=(512,1,1) lds={LDS_TOTAL}\n"
out += f'.amdgcn_target "amdgcn-amd-amdhsa--gfx950"\n.text\n.globl {KNAME}\n.p2align 8\n.type {KNAME},@function\n{KNAME}:\n' + body
out += f""".section .rodata,"a"
.p2align 6
.amdhsa_kernel {KNAME}
  .amdhsa_next_free_vgpr 256
  .amdhsa_next_free_sgpr 102
  .amdhsa_accum_offset 256
  .amdhsa_group_segment_fixed_size 0
  .amdhsa_kernarg_size 128
  .amdhsa_user_sgpr_count 2
  .amdhsa_user_sgpr_kernarg_segment_ptr 1
  .amdhsa_system_sgpr_workgroup_id_x 1
.end_amdhsa_kernel
"""
open(sys.argv[1], "w").write(out)
print("hazards:", check(body))
```

```python
from roles import *
import roles
def pairs(x): return [x, x + 2]
PRM4 = 226
DT, EH, U = 2, 3, 4
Z8, Z1, ZB, ZH, Z16, Z2 = 8, 12, 16, 20, 24, 28
WK, D, PKD, YF, SX, SY, ACC = 32, 64, 128, 160, 192, 200, 208
KO = 64; KADR = 16
def sel_build(A, Dst, vd, T):
    A(f"v_and_b32 {v(T)}, 1, {v(vd)}"); A(f"v_lshlrev_b32 {v(T)}, 4, {v(T)}")
    A(f"v_mov_b32 {v(T+1)}, 0x3f80"); A(f"v_lshlrev_b32 {v(T)}, {v(T)}, {v(T+1)}")
    A(f"v_lshrrev_b32 {v(T+1)}, 1, {v(vd)}")
    for p in range(0, 8, 2):
        A(f"v_cmp_eq_u32 vcc, {p}, {v(T+1)}"); A(f"v_cmp_eq_u32 s[32:33], {p+1}, {v(T+1)}"); A("s_nop 0")
        A(f"v_cndmask_b32 {v(Dst+p)}, 0, {v(T)}, vcc"); A(f"v_cndmask_b32 {v(Dst+p+1)}, 0, {v(T)}, s[32:33]")
def kg4_pre(A):
    T = WK
    A(f"v_lshrrev_b32 {v(T+2)}, 5, {v(vLANE)}")
    A(f"v_and_b32 {v(T+3)}, 31, {v(vLANE)}")
    A(f"v_lshlrev_b32 {v(T+4)}, 4, {v(T+2)}"); A(f"v_sub_u32 {v(T+4)}, {v(T+3)}, {v(T+4)}")
    sel_build(A, SY, T+4, T)
    nib = lambda l: "0x%x" % sum(x << (4*i) for i, x in enumerate(l))
    A(f"v_mov_b32 {v(T+4)}, {nib([0,1,2,3,4,5,6,7])}"); A(f"v_mov_b32 {v(T+5)}, {nib([0,0,2,4,4,4,6,15])}")
    A(f"v_cmp_gt_u32 vcc, 32, {v(vLANE)}"); A(f"v_cmp_gt_u32 s[32:33], 16, {v(T+3)}")
    A(f"v_mov_b32 {v(T)}, {nib([8,14,9,10,11,12,13,0])}")
    A(f"v_cndmask_b32 {v(T+4)}, {v(T+5)}, {v(T+4)}, vcc")
    A(f"v_cndmask_b32 {v(T+4)}, {v(T)}, {v(T+4)}, s[32:33]")
    A(f"v_bfe_u32 {v(T)}, {v(vLANE)}, 3, 1"); A(f"v_and_b32 {v(T+1)}, 3, {v(vLANE)}"); A(f"v_lshl_add_u32 {v(T)}, {v(T)}, 2, {v(T+1)}")
    A(f"v_lshlrev_b32 {v(T)}, 2, {v(T)}"); A(f"v_bfe_u32 {v(T+4)}, {v(T+4)}, {v(T)}, 4")
    A(f"v_bfe_u32 {v(T)}, {v(vLANE)}, 2, 1"); A(f"v_xor_b32 {v(T)}, {v(T)}, {v(T+2)}"); A(f"v_lshl_add_u32 {v(T+4)}, {v(T)}, 4, {v(T+4)}")
    sel_build(A, SX, T+4, T)
    A(f"v_cvt_f32_u32 {v(EH)}, {v(T+2)}"); A(f"v_mul_f32 {v(EH)}, {fl(128.0)}, {v(EH)}")

def kg5_pass(A, sD, sT):
    P = PRM4; T = WK
    A(f"s_bitcmp1_b32 {s(sD)}, 0")
    A(f"s_cselect_b32 {s(sT+2)}, 0, 16")
    A(f"s_lshl_b32 {s(sT)}, {s(sT)}, {s(sT+2)}"); A(f"s_lshl_b32 {s(sT+1)}, {s(sT+1)}, {s(sT+2)}")
    A(f"s_and_b32 {s(sT)}, {s(sT)}, 0xffff0000"); A(f"s_and_b32 {s(sT+1)}, {s(sT+1)}, 0xffff0000")
    hi = struct.unpack("<f", struct.pack("<f", LOG2E))[0]; lo = LOG2E - hi
    A(f"v_mov_b32 {v(T)}, {fl(hi)}")
    A(f"v_mul_f32 {v(T+1)}, {s(sT)}, {v(T)}")
    A(f"v_fma_f32 {v(T+2)}, {s(sT)}, {v(T)}, -{v(T+1)}")
    A(f"v_mov_b32 {v(T+3)}, {fl(lo)}")
    A(f"v_fma_f32 {v(T+2)}, {s(sT)}, {v(T+3)}, {v(T+2)}")
    A(f"v_exp_f32 {v(T+1)}, {v(T+1)}")
    A(f"v_mul_f32 {v(T+2)}, {fl(0.6931471805599453)}, {v(T+2)}")
    A(f"v_fma_f32 {v(T+1)}, {v(T+1)}, {v(T+2)}, {v(T+1)}")
    A(f"v_cvt_pk_bf16_f32 {v(T+1)}, {v(T+1)}, {v(T+1)}")
    A(f"v_and_b32 {v(DT)}, 0xffff0000, {v(T+1)}")
    w = lambda i: WK + 4 * i
    def cm(*tr): cmul2(A, sum([pairs(d) for d, p, z in tr], []), sum([pairs(p) for d, p, z in tr], []), sum([pairs(z) for d, p, z in tr], []))
    def pack(dw, a, b, neg):
        for u in range(2):
            A(f"v_cvt_pk_bf16_f32 {v(PKD+16*u+dw)}, {v(a+2*u)}, {v(b+2*u)}")
            n = "-" if neg else ""
            A(f"v_cvt_pk_bf16_f32 {v(PKD+16*u+8+dw)}, {n}{v(a+2*u+1)}, {n}{v(b+2*u+1)}")
    def transposes(SEL):
        A("s_nop 1")
        for st in range(2):
            for blk in range(4):
                d = v(D + 16*blk, 16)
                A(f"v_mfma_f32_32x32x16_bf16 {d}, {v(PKD+8*blk+4*st,4)}, {v(SEL+4*st,4)}, {'0' if st == 0 else d}")
    def repack(F):
        for k in range(32): A(f"v_cvt_pk_bf16_f32 {v(F+k)}, {v(D+2*k)}, {v(D+2*k+1)}")
    def finish(first):
        repack(WK)
        A("s_nop 1")
        for k in range(8): A(f"v_mfma_f32_32x32x16_bf16 {v(ACC,16)}, {v(WK+4*k,4)}, {v(YF+4*k,4)}, {'0' if first and k == 0 else v(ACC,16)}")
    def unp(d, p, u): A(f"v_lshlrev_b32 {v(d)}, 16, {v(p)}" if u == 0 else f"v_and_b32 {v(d)}, 0xffff0000, {v(p)}")
    for ps in range(1):
        for i in range(2):
            for u in range(2): unp(U+2*i+u, P+i, u)
        for k in range(4): A(f"v_mul_f32 {v(U+k)}, {v(DT)}, {v(U+k)}")
        for u in range(2):
            A(f"v_mul_f32 {v(U+u)}, {fl(LOG2E)}, {v(U+u)}")
            A(f"v_mul_f32 {v(U+2+u)}, {fl(0.15915494309189535)}, {v(U+2+u)}")
        it = [(Z + 2*u, e, u, WK + 4*(2*k+u)) for k, (Z, e) in enumerate(((Z8, fl(8.0)), (ZH, v(EH)), (Z1, "1.0"), (ZB, fl(512.0)))) for u in range(2)]
        for z, e, u, t in it:
            A(f"v_mul_f32 {v(t)}, {e}, {v(U+u)}"); A(f"v_mul_f32 {v(t+1)}, {e}, {v(U+2+u)}")
        for z, e, u, t in it:
            A(f"v_rndne_f32 {v(t+2)}, {v(t+1)}"); A(f"v_exp_f32 {v(t)}, {v(t)}")
        for z, e, u, t in it: A(f"v_sub_f32 {v(t+1)}, {v(t+1)}, {v(t+2)}")
        for z, e, u, t in it:
            A(f"v_cos_f32 {v(t+2)}, {v(t+1)}"); A(f"v_sin_f32 {v(t+3)}, {v(t+1)}")
        A("s_nop 0")
        for z, e, u, t in it:
            A(f"v_mul_f32 {v(z)}, {v(t+2)}, {v(t)}"); A(f"v_mul_f32 {v(z+1)}, {v(t+3)}, {v(t)}")
        cm((Z16, Z8, Z8), (w(1), ZH, Z8), (Z2, Z1, Z1))
        cur = (ZH, w(1))
        for p in range(1, 8):
            nx = (w(2), w(3)) if p % 2 else (w(0), w(1))
            cm((nx[0], cur[0], Z16), (nx[1], cur[1], Z16))
            pack(p - 1, cur[0], cur[1], False); cur = nx
        pack(7, cur[0], cur[1], False)
        transposes(SY)
        for u in range(2):
            for i in range(2): unp(w(6)+2*u+i, P+2+i, u); unp(w(7)+2*u+i, P+4+i, u)
        for k in range(4): A(f"v_mul_f32 {v(w(6)+k)}, {v(DT)}, {v(w(6)+k)}")
        cm((w(1), w(7), w(6)), (w(2), ZH, ZH))
        a, b, c, d, e, f, g, h = [w(i) for i in range(8)]
        cm((a, b, c))
        cm((b, a, Z1), (c, a, Z2), (f, a, Z8), (g, a, ZB))
        cm((d, b, Z2), (e, c, Z2), (h, f, ZB)); pack(0, a, b, True)
        cm((b, d, Z2), (a, g, ZB)); pack(1, c, d, True); pack(4, g, h, True)
        cm((c, e, Z2), (d, b, Z2), (g, h, ZB)); pack(2, e, b, True)
        cm((b, e, ZB), (h, a, ZB)); pack(3, c, d, True); pack(5, a, g, True)
        cm((c, g, ZB)); pack(7, b, f, True)
        pack(6, h, c, True)
        def tr(blk):
            d = v(D + 16*blk, 16)
            for st in range(2): A(f"v_mfma_f32_32x32x16_bf16 {d}, {v(PKD+8*blk+4*st,4)}, {v(SX+4*st,4)}, {'0' if st == 0 else d}")
        def rp(F, blk):
            for q in range(8): A(f"v_cvt_pk_bf16_f32 {v(F+8*blk+q)}, {v(D+16*blk+2*q)}, {v(D+16*blk+2*q+1)}")
        def fin(blk):
            for f_ in range(2):
                q = 2*blk + f_
                A(f"v_mfma_f32_32x32x16_bf16 {v(ACC,16)}, {v(WK+4*q,4)}, {v(YF+4*q,4)}, {'0' if q == 0 else v(ACC,16)}")
        for blk in range(4): rp(YF, blk); tr(blk)
        rp(WK, 0); rp(WK, 1); fin(0); rp(WK, 2); fin(1); rp(WK, 3); fin(2); fin(3)

def kg5_expand(A, sT, sKB, partial):
    T = KADR
    A(f"v_and_b32 {v(T)}, 31, {v(vLANE)}"); A(f"v_lshlrev_b32 {v(T)}, 4, {v(T)}")
    A(f"v_lshrrev_b32 {v(T+1)}, 5, {v(vLANE)}"); A(f"v_lshlrev_b32 {v(T+1)}, 9, {v(T+1)}")
    A(f"v_add_u32 {v(T)}, {v(T)}, {v(T+1)}"); A(f"v_sub_u32 {v(T)}, {4080-3072}, {v(T)}"); A(f"v_add_u32 {v(T)}, {s(sKB)}, {v(T)}")
    A(f"v_lshrrev_b32 {v(T+1)}, 2, {v(vLANE)}"); A(f"v_mul_u32_u24 {v(T+1)}, {KCS}, {v(T+1)}")
    A(f"v_and_b32 {v(T+2)}, 3, {v(vLANE)}"); A(f"v_lshlrev_b32 {v(T+2)}, 4, {v(T+2)}")
    A(f"v_add3_u32 {v(T+1)}, {v(T+1)}, {v(T+2)}, {s(sKB)}")
    for i in range(4): A(f"v_mov_b32 {v(T+4+i)}, 0")
    A(f"v_mov_b32 {v(T+2)}, 0"); A(f"v_writelane_b32 {v(T+2)}, {s(sT+1)}, 0")
    partial()
    A(f"v_and_b32 {v(T+3)}, 1, {v(vLANE)}"); A(f"v_cmp_eq_u32 vcc, 1, {v(T+3)}")
    A(f"v_add_f32 {v(ACC)}, {v(ACC)}, {v(T+2)}")
    C = lambda qq: KO + 16 * qq
    for p in range(4): A(f"v_cvt_pk_bf16_f32 {v(C(0)+p)}, {v(ACC+7-2*p)}, {v(ACC+6-2*p)}")
    for p, (a_, b_) in enumerate(((10,10),(9,9),(9,8),(8,8))): A(f"v_cvt_pk_bf16_f32 {v(C(1)+p)}, {v(ACC+a_)}, {v(ACC+b_)}")
    for qq, lo_ in ((2, 11), (3, 13)):
        c = C(qq)
        A(f"v_cndmask_b32 {v(T+3)}, {v(ACC+lo_)}, {v(ACC+lo_+1)}, vcc")
        A(f"v_cvt_pk_bf16_f32 {v(c)}, {v(ACC+lo_+1)}, {v(ACC+lo_+1)}")
        A(f"v_cvt_pk_bf16_f32 {v(c+1)}, {v(ACC+lo_+1)}, {v(T+3)}")
        A(f"v_cvt_pk_bf16_f32 {v(c+2)}, {v(ACC+lo_)}, {v(ACC+lo_)}")
        A(f"v_cvt_pk_bf16_f32 {v(c+3)}, {v(ACC+lo_)}, {v(ACC+lo_)}")
    N = PKD
    for qq in range(4):
        for k in range(2):
            if qq == 0: A(f"v_mov_b32 {v(N+k)}, 0")
            else: A(f"v_mov_b32_dpp {v(N+2*qq+k)}, {v(C(qq-1)+k)} wave_ror:1 row_mask:0xf bank_mask:0xf")
    for qq in range(4):
        for k in range(2): A(f"v_mov_b32_dpp {v(N+2*qq+k)}, {v(C(qq)+k)} wave_shr:1 row_mask:0xf bank_mask:0xf")
    for qq in range(4):
        R = [C(qq) + k for k in range(4)] + [N + 2*qq, N + 2*qq + 1]
        for k in range(4): A(f"v_alignbit_b32 {v(C(qq)+4+k)}, {v(R[k+1])}, {v(R[k])}, 16")
        for k in range(4): A(f"v_mov_b32 {v(C(qq)+8+k)}, {v(R[k+1])}")
        for k in range(4): A(f"v_alignbit_b32 {v(C(qq)+12+k)}, {v(R[k+2])}, {v(R[k+1])}, 16")

def kg4_store(A):
    T = KADR
    for qq in range(4):
        for cp in range(4): A(f"ds_write_b128 {v(T)}, {v(KO+16*qq+4*cp,4)} offset:{1024*(3-qq) + cp*KCS}")
    A(f"s_mov_b64 exec, 0xffff")
    A(f"ds_write_b128 {v(T+1)}, {v(T+4,4)} offset:4096")
    A(f"s_mov_b64 exec, -1")
```

```python
from roles import *
import kgen6
from kgen6 import kg4_pre, kg5_pass, kg5_expand, kg4_store, PRM4
import roles, sys
KNAME = "recurrent_scan__ssm_conv_s4__glu_gated_glu__prompt_kernel"
HDR = open("recurrent_scan__ssm_conv_s4__glu_gated_glu__prompt.s.ref").read().split("; Override launch")[0]
OPT = dict(D=20, NPF=16, PWAIT=10, PST=0, ROT=1, SCOUT="sc1", ALIGN=1, WTH=16, LATE=8, XT=0, PFD=2, WT=0, LNPRIO=1, HPRIO=0, ARR2=1,
           FD=11, PP=19, EE=1, PSL=6, PFR=1, WTS=-2, CPRIO=1, TS=-1, TD=2, TX=3, SLP=1, UM=0, PF1=0, EA=1, PL=0, BP=1, KOFF=0, GPRIO=1, KNOST=0, LNOST=0, LS=4, NOCV=0, NOST=0, NOMF=0, NH=13, KW=4, KPK=1, YPRIO=1, LNW=0, LNLATE=0, PH=2, FF=1, SPF=15, ROT2=0, XFIRST=0)
for a in sys.argv[2:]:
    if "=" in a:
        k, x = a.split("="); assert k in OPT, k; OPT[k] = x if k == "SCOUT" else int(x)
Stamp.on = any(a.startswith("--stamp") for a in sys.argv)
for a in sys.argv:
    if a.startswith("--stamp:"): Stamp.only = {0, 23} | {int(x) for x in a[8:].split(",") if x}
SC = "sc1"
roles.PLAIN[0] = not OPT['KPK']
sV = 4
sXCD, sIDX, sRT, sFC, sROT, sB, sD, sTT, sDT, sA, sB2, sKB, sUB, sRG = range(48, 62)
FL_H = 0x4000; FL_S = 0x14000
FL_LN = 0x1000
L_STAT = L_ST + 4096
L_XS = [L_U[0], L_X + 2 * XSLOT]
SPIN_MAX = 30000
def EV(row, col=0): return L_CTL + 32 * row + 4 * col
R_EPI, R_PULL, R_BL, R_LATE = 16, 17, 18, 19
R_WD, R_CV, R_XW, R_XR = 20, 21, 22, 23
R_CS, R_WD2 = 26, 27
E_KRDY, E_URDY, E_XRDY, E_XDONE = EV(24, 0), EV(24, 2), EV(24, 4), EV(24, 6)
E_VRDY, E_SRDY, E_LNOK, E_LND = EV(25, 0), EV(25, 1), EV(25, 2), EV(25, 3)
E_WD = EV(25, 4)
R_LNX, R_LND = 29, 30
L_LNX = L_K[0] + 4096
L_V = EV(28, 0)
LNW, TW = OPT['LNW'], OPT['LNW'] + 1
vOOB, vZERO, vEV, vET = 252, 253, 250, 251
PRM = 236
FX = 244
A = Asm(); SLOW = Asm(); SLOW.uid = 100000

def mapping2():
    A(f"s_lshr_b32 s32, {s(sXCD)}, 1")
    A(f"s_and_b32 s33, {s(sXCD)}, 1")
    A(f"s_and_b32 s34, {s(sIDX)}, 3")
    A(f"s_lshr_b32 s35, {s(sIDX)}, 2")
    if OPT["ARR2"] == 0:
        A(f"s_lshl_b32 {s(sDT)}, s33, 2"); A(f"s_add_u32 {s(sDT)}, {s(sDT)}, s34")
        A(f"s_lshl_b32 {s(sTT)}, s32, 3"); A(f"s_add_u32 {s(sTT)}, {s(sTT)}, s35")
    else:
        A(f"s_and_b32 {s(sDT)}, {s(sIDX)}, 7"); A(f"s_lshr_b32 {s(sTT)}, {s(sB)}, 3")
    if OPT["ROT2"]: A(f"s_and_b32 {s(sROT)}, s34, 1"); A(f"s_lshl_b32 {s(sROT)}, {s(sROT)}, 2")
    else: A(f"s_mul_i32 {s(sROT)}, s34, {2*OPT['ROT']}")
    A(f"s_mul_i32 {s(sFC)}, s33, 7")
    A(f"s_add_u32 {s(sFC)}, {s(sFC)}, s35")
    A(f"s_lshl_b32 s36, s33, 1")
    A(f"s_add_u32 s36, s36, s34")
    A(f"s_cmp_ge_u32 {s(sIDX)}, 28")
    A(f"s_cselect_b32 {s(sFC)}, 14, {s(sFC)}")
    A(f"s_cselect_b32 s34, s36, s34")
    A(f"s_and_b32 s34, s34, 3")
    A(f"s_lshl_b32 {s(sRT)}, s32, 2")
    A(f"s_add_u32 {s(sRT)}, {s(sRT)}, s34")
    A(f"s_bfe_u32 {s(sB2)}, {s(sWAVE)}, 0x10001")
    A(f"s_mov_b32 {s(sX+2)}, 0x200000"); A(f"s_mov_b32 {s(sX+3)}, 0x20000")
def mapping3(X=None):
    X = X or A
    X(f"s_mov_b64 {s(sX,2)}, {s(P_X,2)}")
    X(f"s_mul_i32 {s(sKB)}, {s(sA)}, {L_K[1]-L_K[0]}")
    X(f"s_add_u32 {s(sKB)}, {s(sKB)}, {L_K[0]}")
    X(f"s_lshl_b32 {s(sUB)}, {s(sA)}, 4")
    X(f"s_add_u32 {s(sUB)}, {s(sUB)}, {L_U[0]}")
    for srd, p, sz in ((sWD, P_WD, 1409024), (sWS, P_WS, WS_SIZE), (sOUT, P_OUT, 0x200000)):
        X(f"s_mov_b64 {s(srd,2)}, {s(p,2)}"); X(f"s_mov_b32 {s(srd+2)}, {sz}"); X(f"s_mov_b32 {s(srd+3)}, 0x20000")
    X(f"v_mov_b32 {v(vOOB)}, 0x7ff00000")
    X(f"v_mov_b32 {v(vZERO)}, 0")

def ev_addr(base, n, X=None):
    X = X or A
    if n == 1: X(f"v_mov_b32 {v(vEV)}, {base}")
    else:
        X(f"v_and_b32 {v(vEV)}, {n-1}, {v(vLANE)}")
        if isinstance(base, int):
            X(f"v_lshlrev_b32 {v(vEV)}, 2, {v(vEV)}"); X(f"v_add_u32 {v(vEV)}, {base}, {v(vEV)}")
        else: X(f"v_lshl_add_u32 {v(vEV)}, {v(vEV)}, 2, {base}")
def ev_check(X=None):
    X = X or A
    X("s_getpc_b64 s[62:63]"); X("s_cbranch_vccnz L_stub")
def ev_wait(base=None, n=1, X=None):
    X = X or A
    if base is not None: ev_addr(base, n, X)
    X(f"ds_read_b32 {v(vET)}, {v(vEV)}")
    X("s_waitcnt lgkmcnt(0)")
    X(f"v_cmp_ne_u32 vcc, 0, {v(vET)}")
    ev_check(X)
def ev_wait_sm(base=None, n=1):
    if base is not None: ev_addr(base, n)
    A(f"ds_read_b32 {v(vET)}, {v(vEV)}")
    for k in range(4): A(f"ds_read_b32 v14, {v(vEV)}")
    A("s_waitcnt lgkmcnt(4)")
    A(f"v_cmp_ne_u32 vcc, 0, {v(vET)}")
    ev_check()
def spoll_issue(X, sOff):
    X(f"s_load_dwordx16 s[64:79], s[100:101], {sOff} glc"); X(f"s_add_u32 s32, {sOff}, 64"); X(f"s_load_dwordx16 s[80:95], s[100:101], s32 glc")
def spoll(X, sOff, n, issued, tag):
    if not issued: spoll_issue(X, sOff)
    X("s_mov_b32 s46, 0")
    X.label(f"L_sp{tag}")
    X("s_waitcnt lgkmcnt(0)")
    for q in range(n):
        X(f"s_cmp_lg_u64 s[{64+2*q}:{65+2*q}], {s(sV,2)}"); X(f"s_cbranch_scc1 L_sr{tag}")
    X.label(f"L_so{tag}")
    SLOW.label(f"L_sr{tag}")
    if OPT["PSL"]: SLOW(f"s_sleep {OPT['PSL']}")
    SLOW(f"s_load_dwordx16 s[64:79], s[100:101], {sOff} glc"); SLOW(f"s_add_u32 s32, {sOff}, 64"); SLOW(f"s_load_dwordx16 s[80:95], s[100:101], s32 glc")
    SLOW("s_add_u32 s46, s46, 1"); SLOW(f"s_cmp_lt_u32 s46, {SPIN_MAX}"); SLOW(f"s_cbranch_scc1 L_sp{tag}")
    SLOW("s_waitcnt lgkmcnt(0)"); SLOW(f"s_branch L_so{tag}")
def ev_set(addr, X=None):
    X = X or A
    X(f"v_mov_b32 {v(vET)}, {addr}")
    X("s_mov_b64 exec, 1")
    X(f"ds_write_b32 {v(vET)}, {v(vZERO)}")
    X("s_mov_b64 exec, -1")
def ev_dma(off, X=None):
    X = X or A
    X("s_mov_b64 exec, 1")
    X(f"buffer_load_dword {v(vOOB)}, {s(sX,4)}, 0 offen offset:{off} lds")
    X("s_mov_b64 exec, -1")
def wcol(row, sOut):
    A(f"s_and_b32 {sOut}, {s(sWAVE)}, 3")
    A(f"s_lshl_b32 {sOut}, {sOut}, 2"); A(f"s_add_u32 {sOut}, {sOut}, {EV(row, 4)}")
def gflag_store(sOff, T=None):
    A(f"s_mov_b64 s[6:7], {s(sV,2)}")
    A(f"s_atomic_swap_x2 s[6:7], {s(P_WS,2)}, {s(sOff)}")
def get_v(X=None):
    X = X or A
    X(f"v_mov_b32 {v(vEV)}, {L_V}")
    X(f"ds_read_b64 {v(vEV,2)}, {v(vEV)}")
    X("s_waitcnt lgkmcnt(0)")
    X(f"v_readfirstlane_b32 {s(sV)}, {v(vEV)}")
    X(f"v_readfirstlane_b32 {s(sV+1)}, {v(vET)}")
    X("s_nop 1")
def retry_loop(loads, test):
    lp = A.new("L_gp")
    A("s_mov_b32 s46, 0")
    A.label(lp)
    loads()
    A("s_add_u32 s46, s46, 1")
    A(f"s_cmp_lt_u32 s46, {SPIN_MAX}")
    A("s_cselect_b64 s[42:43], -1, 0")
    A("s_waitcnt vmcnt(0)")
    test()
    A("s_nop 0")
    A("s_and_b64 vcc, vcc, s[42:43]")
    A(f"s_cbranch_scc1 {lp}")

def _need(m):
    lo, hi = 4096 * m, 4096 * m + 4096; n = 0
    for w in range(NWS):
        a = L_W + w * WSLOT
        if a < hi and a + WSLOT > lo: n = max(n, max(st for st in range(NSTAGE) if st % NWS == w))
    for x in range(NXS):
        a = L_X + x * XSLOT
        if a < hi and a + XSLOT > lo: n = max(n, max(st for st in range(NSTAGE) if (st // 2) % NXS == x))
    return n
PSLOT = sorted(range(G2_NA), key=lambda m_: (_need(m_), m_))
def pslot(i): return PSLOT[i if i < G2_NA else i - G2_NA]
PRE = [48 + 8*i for i in range(6)] + [176 + 8*i for i in range(5)] + [160] + [96 + 8*i for i in range(4)]
JIT = [128, 136]
HW = [168, 172, 216, 220, 224, 228, 232, 236, 240, 144, 148, 152, 156, 128, 132, 136, 140][:OPT['NH']]
vR = 38
def wd_reads(i, F):
    o = 4096 * pslot(i); b = vR + 2 * (o >> 16); o &= 0xffff
    return [f"ds_read_b64_tr_b16 {v(F+4*dt+2*h,2)}, {v(b+dt)} offset:{o + 1024*h}" for dt in range(2) for h in range(2)]
def wd_piece_addr(X, vD, vT):
    if OPT["ARR2"] == 0:
        X(f"v_lshrrev_b32 {v(vD)}, 2, {v(vLANE)}"); X(f"v_lshlrev_b32 {v(vD)}, 10, {v(vD)}")
        X(f"v_and_b32 {v(vT)}, 3, {v(vLANE)}"); X(f"v_lshl_add_u32 {v(vD)}, {v(vT)}, 7, {v(vD)}")
        X(f"s_and_b32 s41, {s(sXCD)}, 1"); X("s_lshl_b32 s41, s41, 9"); X(f"v_add_u32 {v(vD)}, s41, {v(vD)}")
        return 16384
    X(f"v_lshlrev_b32 {v(vD)}, 7, {v(vLANE)}")
    return 8192

def loader():
    D = OPT["D"]; Vw = 8; Vx = 12; T = 18; sT = 36
    sXB, sWB, sC, sXo, sWo, sLW, sLX, sEF = range(sT+2, sT+10)
    A("s_movk_i32 s36, 2752"); A("s_movk_i32 s37, 0x1556")
    for j in range(3):
        if j: A(f"v_add_u32 v18, {64*j}, {v(vLANE)}")
        src = "v18" if j else v(vLANE)
        A(f"v_mul_u32_u24 v19, s37, {src}"); A("v_lshrrev_b32 v19, 16, v19")
        A(f"v_mad_i32_i24 v{21+j}, v19, -12, {src}")
        A("v_mul_u32_u24 v19, s36, v19")
        A(f"v_lshl_add_u32 v{8+j}, v{21+j}, 4, v19")
        if j: A(f"v_subrev_u32 v{8+j}, {1024*j}, v{8+j}")
    mapping2()
    A(f"s_cmp_eq_u32 {s(sFC)}, 14"); A("s_cselect_b32 s36, 3, 11"); A("v_mov_b32 v18, 0x7ff00000")
    for j in range(3):
        A(f"v_cmp_lt_u32 vcc, s36, v{21+j}"); A("s_nop 1"); A(f"v_cndmask_b32 v{8+j}, v{8+j}, v18, vcc")
    A(f"s_mov_b32 {s(sWG+2)}, 1409024"); A(f"s_mov_b32 {s(sWG+3)}, 0x20000")
    A(f"s_mul_i32 {s(sWB)}, {s(sFC)}, 192")
    A(f"s_mul_i32 {s(sLW)}, {s(sA)}, {UPOFF}")
    A(f"v_lshrrev_b32 {v(T)}, 3, {v(vLANE)}")
    A(f"v_lshlrev_b32 {v(T)}, 10, {v(T)}")
    A(f"v_lshrrev_b32 {v(T+1)}, 4, {v(vLANE)}")
    A(f"v_and_b32 {v(T+2)}, 7, {v(vLANE)}")
    A(f"v_xor_b32 {v(T+1)}, {v(T+1)}, {v(T+2)}")
    A(f"v_lshl_add_u32 {v(Vx)}, {v(T+1)}, 4, {v(T)}")
    A(f"v_xor_b32 {v(Vx+1)}, 64, {v(Vx)}")
    A(f"v_add_u32 {v(Vx+2)}, {2*7168}, {v(Vx)}")
    A(f"v_add_u32 {v(Vx+3)}, {3*7168}, {v(Vx+1)}")
    A(f"v_add_u32 {v(Vx+1)}, {7168}, {v(Vx+1)}")
    A(f"s_lshl_b32 {s(sXB)}, {s(sRT)}, 17")
    A(f"s_lshl_b32 {s(sT)}, {s(sA)}, 16")
    A(f"s_add_u32 {s(sXB)}, {s(sXB)}, {s(sT)}")
    A(f"s_lshl_b32 {s(sLX)}, {s(sA)}, 13")
    A(f"s_lshl_b32 {s(sEF)}, {s(sA)}, 2")
    A(f"s_add_u32 {s(sEF)}, {s(sEF)}, {EV(0)}")
    def wtouch(X):
        X(f"v_mul_u32_u24 v24, 0x1556, {v(vLANE)}"); X("v_lshrrev_b32 v24, 16, v24"); X("v_mul_u32_u24 v24, 2752, v24"); X("v_lshl_add_u32 v24, v21, 7, v24")
        X(f"s_and_b32 s32, {s(sXCD)}, 1"); X("s_mul_i32 s32, s32, 1344"); X(f"s_lshl_b32 s33, {s(sIDX)}, 2"); X(f"s_lshr_b32 s34, {s(sXCD)}, 1")
        X("s_add_u32 s33, s33, s34"); X(f"s_mul_i32 s33, s33, {4*2752}"); X("s_add_u32 s32, s32, s33")
        X("s_mov_b32 exec_hi, 0xffff")
        X(f"buffer_load_dword v25, v24, {s(sWG,4)}, s32 offen")
        X("s_mov_b64 exec, -1")
    def xtouch(X):
        X(f"v_lshlrev_b32 v24, 7, {v(vLANE)}"); X(f"s_xor_b32 s32, {s(sB)}, 32"); X("s_lshl_b32 s32, s32, 1"); X(f"s_add_u32 s32, s32, {s(sA)}"); X("s_lshl_b32 s32, s32, 12")
        X("s_mov_b32 exec_hi, 0")
        X(f"buffer_load_dword v27, v24, {s(sX,4)}, s32 offen")
        X("s_mov_b64 exec, -1")
    def dtouch(X):
        X(f"v_lshlrev_b32 v24, 7, {v(vLANE)}"); X(f"s_lshl_b32 s32, {s(sB)}, 1"); X(f"s_add_u32 s32, s32, {s(sA)}"); X(f"s_mul_i32 s32, s32, {22*128}")
        X("s_mov_b64 exec, 0x3fffff")
        X(f"buffer_load_dword v26, v24, {s(sWD,4)}, s32 offen")
        X("s_mov_b64 exec, -1")
    n = 0
    for st in range(NSTAGE):
        if st % 2 == 0:
            A(f"s_add_u32 {s(sC)}, {s(sROT)}, {st//2}")
            A(f"s_and_b32 {s(sC)}, {s(sC)}, 7")
            A(f"s_mul_i32 {s(sWo)}, {s(sC)}, {64*2752}")
            A(f"s_add_u32 {s(sWo)}, {s(sWo)}, {s(sWB)}")
            A(f"s_lshl_b32 {s(sXo)}, {s(sC)}, 7")
            A(f"s_add_u32 {s(sXo)}, {s(sXo)}, {s(sXB)}")
        if st == 0:
            A(f"s_cmp_eq_u32 {s(sA)}, 0")
            A("s_waitcnt lgkmcnt(0)")
            A(f"s_cselect_b64 {s(sWG,2)}, {s(P_WG,2)}, {s(P_WU,2)}")
            A(f"s_mov_b64 {s(sX,2)}, {s(P_X,2)}")
            stamp(A, 1)
            if OPT["TS"] == -2: wtouch(A)
            A(f"s_cmp_ge_u32 {s(sIDX)}, 30")
            A("s_cbranch_scc1 L_spare_ld")
        if st == NWS: ev_addr(EV(0, 4), 4)
        if st > NWS: A(f"v_add_u32 {v(vEV)}, 32, {v(vEV)}")
        if st >= NWS: ev_wait()
        wl = [("w", i) for i in range(6)]; xl = [("x", i) for i in range(8)] if st % 2 == 0 else []
        for k, i in (xl + wl if OPT["XFIRST"] else wl + xl):
            if n == 6: A("s_barrier")
            if n >= D: A(f"s_waitcnt vmcnt({D-1})")
            n += 1
            if k == "x":
                if i % 4 == 0:
                    A(f"s_add_u32 m0, {s(sLX)}, {L_X + ((st//2) % NXS) * XSLOT + i * 1024}")
                    if i: A(f"s_add_u32 {s(sXo)}, {s(sXo)}, 32768")
                    else: A("s_nop 0")
                A(f"buffer_load_dwordx4 {v(Vx + i%4)}, {s(sX,4)}, {s(sXo)} offen offset:{1024*(i%4)} lds")
            else:
                if i % 3 == 0:
                    A(f"s_add_u32 m0, {s(sLW)}, {L_W + (st % NWS) * WSLOT + (i//3) * 3072}")
                    if i or st % 2: A(f"s_add_u32 {s(sWo)}, {s(sWo)}, {16*2752}")
                    else: A("s_nop 0")
                A(f"buffer_load_dwordx4 {v(Vw + i%3)}, {s(sWG,4)}, {s(sWo)} offen offset:{1024*(i%3)} lds")
        if st == 0: stamp(A, 2); mapping3()
        A(f"s_mov_b32 m0, {s(sEF)}")
        ev_dma(32 * st); n += 1
        if st == OPT["TS"]: wtouch(A)
        if st == OPT["TD"]: dtouch(A)
        if st == OPT["TX"]: xtouch(A)
        if st in (3, 7, 11): stamp(A, 3 + st // 4)
    stamp(A, 6)
    A.label("L_fetch")
    if OPT["UM"]: ev_wait(E_LNOK) if False else None
    else:
        A(f"v_lshrrev_b32 v8, 2, {v(vLANE)}"); A(f"v_mul_u32_u24 v8, {UBLK}, v8")
        A(f"v_and_b32 v9, 3, {v(vLANE)}"); A("v_lshl_add_u32 v8, v9, 4, v8")
        A(f"v_lshrrev_b32 v10, 1, {v(vLANE)}"); A(f"v_mul_u32_u24 v10, {UBLK}, v10")
        A(f"v_lshrrev_b32 v9, 4, {v(vLANE)}"); A(f"v_xor_b32 v9, v9, {v(vLANE)}"); A("v_and_b32 v9, 1, v9"); A("v_lshl_add_u32 v10, v9, 4, v10")
        A(f"s_mul_i32 s34, {s(sRT)}, {16*UBLK}"); A(f"s_add_u32 s34, s34, {WS_U+8192}")
        A(f"s_and_b32 s32, {s(sD)}, 7"); A("s_lshl_b32 s32, s32, 10"); A(f"s_lshr_b32 s33, {s(sD)}, 4"); A("s_lshl_b32 s33, s33, 5")
        A("s_add_u32 s32, s32, s33"); A(f"s_mul_i32 s33, {s(sA)}, {128*UBLK}"); A("s_add_u32 s32, s32, s33"); A(f"s_add_u32 s32, s32, {WS_U}")
        A(f"s_lshl_b32 s33, {s(sA)}, 12"); A(f"s_add_u32 s33, s33, {L_U[0] + 1024}")
        ev_wait(E_LNOK)
        A(f"s_cmp_eq_u32 {s(sA)}, 1"); A("s_cbranch_scc1 L_nost")
        A(f"s_mov_b32 m0, {L_STAT}"); A("s_nop 0")
        A(f"buffer_load_dwordx4 v8, {s(sWS,4)}, s34 offen {SC} lds")
        A(f"s_mov_b32 m0, {E_SRDY}"); ev_dma(0)
        A.label("L_nost")
        for i in range(4):
            A(f"s_add_u32 m0, s33, {1024*i}")
            if i: A(f"s_add_u32 s32, s32, {32*UBLK}")
            else: A("s_nop 0")
            A(f"buffer_load_dwordx4 v10, {s(sWS,4)}, s32 offen {SC} lds")
        A(f"s_lshl_b32 s33, {s(sA)}, 2"); A(f"s_add_u32 m0, s33, {E_URDY}"); ev_dma(0)
    stamp(A, 7)
    conv_setup()
    wd_addr(A, 22, 12)
    A(f"s_lshl_b32 s40, {s(sDT)}, 7"); A(f"s_lshl_b32 s41, {s(sA)}, 13"); A("s_add_u32 s40, s40, s41"); A(f"s_add_u32 s42, s40, {43*16384}")
    A(f"s_lshl_b32 s41, {s(sA)}, 10")
    have = -1; n = 0
    for i in range(G2_P):
        if _need(pslot(i)) > have:
            have = _need(pslot(i)); ev_wait(EV(have, 4), 4)
            if i == 0: stamp(A, 8)
        for kq in range(2):
            if n >= OPT["WTH"]: A(f"s_waitcnt vmcnt({OPT['WTH']-1})")
            n += 1
            A(f"s_add_u32 m0, s41, {4096*pslot(i) + 2048*kq}")
            if i: A(f"s_add_u32 s{40+2*kq}, s{40+2*kq}, 16384")
            else: A("s_nop 0")
            A(f"buffer_load_dwordx4 v22, {s(sWD,4)}, s{40+2*kq} offen lds")
    A(f"s_lshl_b32 s33, {s(sA)}, 2"); A(f"s_add_u32 m0, s33, {E_WD}"); ev_dma(0)
    stamp(A, 9)

    S = SLOW
    S.label("L_spare_ld")
    if OPT["TS"] >= 0: wtouch(S)
    mapping3(S); S("s_barrier")
    if OPT["TD"] >= 0: dtouch(S)
    if OPT["TX"] >= 0: xtouch(S)
    PB = wd_piece_addr(S, T, T+2)
    S(f"s_and_b32 s42, {s(sIDX)}, 1"); S(f"s_mul_i32 s42, s42, {43*16384}"); S(f"s_mul_i32 s43, {s(sA)}, {PB}"); S("s_add_u32 s42, s42, s43")
    if OPT["PFR"]: S(f"s_add_u32 s42, s42, {43*16384 - 2*PB}")
    for i in range(OPT["NPF"]):
        S(f"buffer_load_dword {v(T+2)}, {v(T)}, {s(sWD,4)}, s42 offen")
        S(f"s_{'sub' if OPT['PFR'] else 'add'}_u32 s42, s42, {2*PB}"); S(f"s_waitcnt vmcnt({OPT['PFD']-1})")
        if i == OPT["SPF"]:
            S(f"s_lshl_b32 s40, {s(sA)}, 2"); S(f"s_add_u32 s40, s40, {EV(0)}")
            S(f"v_lshl_add_u32 {v(T+4)}, {v(vLANE)}, 5, s40"); S("s_mov_b64 exec, 0x3fff"); S(f"ds_write_b32 {v(T+4)}, {v(vZERO)}"); S("s_mov_b64 exec, -1")
    S("s_waitcnt vmcnt(0)")
    stamp(S, 19)
    S(f"s_lshl_b32 s40, {s(sA)}, 2"); S(f"s_add_u32 s40, s40, {EV(0)}")
    S(f"v_lshl_add_u32 {v(T)}, {v(vLANE)}, 5, s40"); S("s_mov_b64 exec, 0xffff"); S(f"ds_write_b32 {v(T)}, {v(vZERO)}"); S("s_mov_b64 exec, -1")
    S("s_branch L_fetch")

FT = 128
def final_pre():
    L = []; X = L.append; T = FT
    X(f"s_lshr_b32 s34, {s(sWAVE)}, 1"); X(f"v_and_b32 {v(T)}, 15, {v(vLANE)}"); X(f"v_mul_u32_u24 {v(T)}, {PROW}, {v(T)}")
    X(f"v_and_b32 {v(T+1)}, 48, {v(vLANE)}"); X(f"v_lshl_add_u32 {v(T)}, {v(T+1)}, 1, {v(T)}")
    X(f"s_mul_i32 s35, s34, {16*PROW}"); X(f"s_lshl_b32 s43, {s(sA)}, 7"); X("s_add_u32 s35, s35, s43"); X(f"s_add_u32 s35, s35, {L_PART}")
    X(f"v_add_u32 {v(T)}, s35, {v(T)}")
    X(f"v_lshlrev_b32 {v(T+1)}, 6, {v(T+1)}"); X(f"v_bfe_u32 {v(T+2)}, {v(vLANE)}, 2, 2"); X(f"v_lshl_add_u32 {v(T+1)}, {v(T+2)}, 7, {v(T+1)}")
    X(f"v_and_b32 {v(T+2)}, 1, {v(vLANE)}"); X(f"v_lshl_add_u32 {v(T+1)}, {v(T+2)}, 3, {v(T+1)}")
    X(f"v_bfe_u32 {v(T+2)}, {v(vLANE)}, 1, 1"); X(f"v_lshl_add_u32 {v(T+1)}, {v(T+2)}, 6, {v(T+1)}")
    X(f"s_lshl_b32 s35, {s(sA)}, 12"); X("s_lshl_b32 s43, s34, 4"); X("s_add_u32 s35, s35, s43"); X(f"s_add_u32 s35, s35, {L_ST}")
    X(f"v_add_u32 {v(T+1)}, s35, {v(T+1)}")
    X(f"v_mul_f32 {v(T+2)}, {fl(-LOG2E)}, {v(FX+4)}"); X(f"v_mov_b32 {v(T+4)}, 1.0")
    for k in range(4): X(f"v_lshlrev_b32 {v(T+8+2*k)}, 16, {v(FX+k)}"); X(f"v_and_b32 {v(T+9+2*k)}, 0xffff0000, {v(FX+k)}")
    if OPT["BP"]:
        X(f"v_and_b32 {v(T+6)}, 3, {v(vLANE)}"); X(f"v_lshrrev_b32 {v(T+5)}, 2, {v(vLANE)}")
        X(f"v_lshlrev_b32 {v(T+7)}, 4, {v(T+6)}"); X(f"v_add_lshl_u32 {v(T+6)}, {v(T+7)}, {v(T+5)}, 2")
        X(f"v_lshl_add_u32 {v(T+7)}, {v(T+5)}, 10, {v(T+7)}"); X(f"v_readfirstlane_b32 s35, {v(FX+5)}"); X("s_nop 1"); X(f"v_add_u32 {v(T+7)}, s35, {v(T+7)}")
    return L
def final_body():
    T = FT; P0, P1, SS, E = 56, 64, 72, 80
    for k in range(2): A(f"ds_read_b128 {v(P0+4*k,4)}, {v(T)} offset:{16*k}"); A(f"ds_read_b128 {v(P1+4*k,4)}, {v(T)} offset:{64*PROW+16*k}")
    for k in range(2): A(f"ds_read_b64_tr_b16 {v(SS+2*k,2)}, {v(T+1)} offset:{512*k}")
    for hh in range(2):
        A(f"s_waitcnt lgkmcnt({4-2*hh})")
        for k in range(2*hh, 2*hh+2): A(f"v_pk_add_f32 {v(P0+2*k,2)}, {v(P0+2*k,2)}, {v(P1+2*k,2)}")
        for k in range(2*hh, 2*hh+2): A(f"v_pk_mul_f32 {v(E+2*k,2)}, {v(P0+2*k,2)}, {v(T+2,2)} op_sel_hi:[1,0]")
        for k in range(4*hh, 4*hh+4): A(f"v_exp_f32 {v(E+k)}, {v(E+k)}")
    A("s_waitcnt lgkmcnt(0)")
    for k in range(4): A(f"v_pk_add_f32 {v(E+2*k,2)}, {v(E+2*k,2)}, {v(T+4,2)} op_sel_hi:[1,0]")
    for k in range(8): A(f"v_rcp_f32 {v(E+k)}, {v(E+k)}")
    for k in range(4): A(f"v_lshlrev_b32 {v(P1+2*k)}, 16, {v(SS+k)}"); A(f"v_and_b32 {v(P1+2*k+1)}, 0xffff0000, {v(SS+k)}")
    for k in range(4): A(f"v_pk_mul_f32 {v(P0+2*k,2)}, {v(P0+2*k,2)}, {v(FX+4,2)} op_sel_hi:[1,0]")
    for k in range(4): A(f"v_pk_mul_f32 {v(P0+2*k,2)}, {v(P0+2*k,2)}, {v(E+2*k,2)}")
    for k in range(4): A(f"v_pk_fma_f32 {v(P0+2*k,2)}, {v(P0+2*k,2)}, {v(P1+2*k,2)}, {v(T+8+2*k,2)}")
    for k in range(4):
        A(f"v_cvt_pk_bf16_f32 {v(SS+k)}, {v(P0+2*k)}, {v(P0+2*k+1)}")
        if OPT["BP"]: A(f"ds_bpermute_b32 {v(SS+4+k)}, {v(T+6)}, {v(SS+k)}")
    if OPT["BP"]:
        A("s_waitcnt lgkmcnt(0)")
        A(f"buffer_store_dwordx4 {v(SS+4,4)}, {v(T+7)}, {s(sOUT,4)}, 0 offen {OPT['SCOUT']}")
    else: A(f"buffer_store_dwordx4 {v(SS,4)}, {v(FX+5)}, {s(sOUT,4)}, 0 offen {OPT['SCOUT']}")
def conv_setup():
    vA = 8; vB = 4; T = 10
    A(f"v_and_b32 {v(T)}, 3, {v(vLANE)}"); A(f"v_sub_u32 {v(T)}, 3, {v(T)}"); A(f"v_mul_u32_u24 {v(T)}, {KCS}, {v(T)}")
    A(f"v_bfe_u32 {v(T+1)}, {v(vLANE)}, 2, 2"); A(f"v_lshlrev_b32 {v(T+1)}, 3, {v(T+1)}"); A(f"v_sub_u32 {v(T)}, {v(T)}, {v(T+1)}")
    A(f"v_and_b32 {v(T+2)}, 48, {v(vLANE)}")
    A(f"s_lshl_b32 s32, {s(sB2)}, 8"); A(f"s_sub_u32 s33, {s(sKB)}, s32"); A(f"s_add_u32 s33, s33, {24+256}")
    A(f"v_add3_u32 {v(vA)}, {v(T)}, {v(T+2)}, s33")
    A(f"v_and_b32 {v(T)}, 15, {v(vLANE)}"); A(f"v_lshrrev_b32 {v(T+1)}, 4, {v(vLANE)}"); A(f"v_lshl_add_u32 {v(T)}, {v(T)}, 1, {v(T+1)}")
    A(f"s_lshl_b32 s32, {s(sB2)}, 4"); A("s_sub_u32 s32, 30, s32"); A(f"v_add_u32 {v(T)}, s32, {v(T)}")
    for i in range(4):
        if i: A(f"v_subrev_u32 {v(T)}, 4, {v(T)}")
        A(f"v_bfe_u32 {v(T+1)}, {v(T)}, 3, 1"); A(f"v_xor_b32 {v(T+1)}, {s(sA)}, {v(T+1)}")
        A(f"v_lshl_add_u32 {v(T+1)}, {v(T)}, 1, {v(T+1)}"); A(f"v_lshlrev_b32 {v(T+1)}, 4, {v(T+1)}"); A(f"v_add_u32 {v(vB+i)}, {L_U[0]}, {v(T+1)}")
def conv_main2(filler):
    vA = 8; vB = 4
    def reads(i):
        F = CV_F + 64 * (i & 1); L = []
        for k in range(8):
            L.append(f"ds_read_b128 {v(F+32+4*k,4)}, {v(vB+i)} offset:{1024*k}")
            o = 64 * (59 - i - 8 * k)
            L.append(f"ds_read_b64 {v(F+4*k,2)}, {v(vA)} offset:{o}"); L.append(f"ds_read_b64 {v(F+4*k+2,2)}, {v(vA)} offset:{o+8}")
        return L
    for l in reads(0): A(l)
    ev_wait()
    stamp(A, 10)
    first = set(); nm = 0
    prs = sorted([(a, b) for a in range(8) for b in range(8) if a + b <= 7], key=lambda p: (max(p), p[0] + p[1]))
    for i in range(4):
        F = CV_F + 64 * (i & 1)
        nxt = reads(i + 1) if i < 3 else []
        if i > 0: A("s_waitcnt lgkmcnt(0)")
        lastmax = -1
        for a, b in prs:
            c = a + b; acc = v(CV_ACC + 4 * c, 4)
            A(f"v_mfma_f32_16x16x32_bf16 {acc}, {v(F+4*a,4)}, {v(F+32+4*b,4)}, {acc if c in first else '0'}")
            first.add(c); nm += 1
            if nxt: A(nxt.pop(0))
            filler(nm)
        assert not nxt
def h_common():
    A.label("L_conv")
    T = 12; vWD = 6
    if OPT["HPRIO"]: A("s_setprio 1")
    wcol(R_WD, "s38")
    ev_wait(E_KRDY, 4)
    ev_addr(EV(R_EPI, 4), 4)
    if OPT["CPRIO"]: A("s_setprio 1")
    def filler(nm):
        if nm == 109: A("s_add_u32 s38, s38, 32"); ev_set("s38")
        if nm == 112:
            A(f"s_lshl_b32 s32, {s(sB2)}, 12"); A(f"s_add_u32 s32, s32, {s(sKB)}"); A(f"v_lshl_add_u32 v16, {v(vLANE)}, 4, s32")
        if nm == 114: A(f"s_lshl_b32 s32, {s(sB2)}, 12"); A("s_xor_b32 s32, s32, 4096"); A(f"s_add_u32 s32, s32, {s(sKB)}"); A(f"v_lshl_add_u32 v17, {v(vLANE)}, 4, s32")
        if nm == 116: A(f"s_lshl_b32 s32, {s(sD)}, 12"); A(f"s_lshl_b32 s33, {s(sB2)}, 11"); A("s_add_u32 s32, s32, s33"); A(f"s_add_u32 s34, s32, {WS_S}")
        if nm == 118: A(f"v_lshlrev_b32 v18, 4, {v(vLANE)}"); A(f"s_cmp_eq_u32 {s(sB2)}, 1"); A("s_cselect_b64 s[42:43], -1, 0")
        if nm == 134: A("s_xor_b32 s39, s38, 8"); A(f"v_mov_b32 {v(vEV)}, s39"); A(f"ds_read_b32 {v(vET)}, {v(vEV)}")
    conv_main2(filler)
    stamp(A, 13)
    A("s_waitcnt lgkmcnt(0)"); A(f"v_cmp_ne_u32 vcc, 0, {v(vET)}"); ev_check()
    A("s_add_u32 s38, s38, 32"); A("s_xor_b32 s39, s38, 8")
    def fin_half(X, keep, send):
        for k in range(4): X(f"ds_write_b128 v16, {v(send+4*k,4)} offset:{1024*k}")
        ev_set("s38", X); ev_wait("s39", 1, X)
        for k in range(4): X(f"ds_read_b128 {v(CV_F+4*k,4)}, v17 offset:{1024*k}")
        O = CV_F + 48
        for pr in range(2):
            X(f"s_waitcnt lgkmcnt({2-2*pr})")
            for k in range(8): X(f"v_add_f32 {v(CV_F+8*pr+k)}, {v(CV_F+8*pr+k)}, {v(keep+8*pr+k)}")
            for k in range(4): X(f"v_cvt_pk_bf16_f32 {v(O+4*pr+k)}, {v(CV_F+8*pr+2*k)}, {v(CV_F+1+8*pr+2*k)}")
            X("s_nop 1")
            X(f"v_permlane16_swap_b32 {v(O+4*pr)}, {v(O+4*pr+2)}"); X(f"v_permlane16_swap_b32 {v(O+4*pr+1)}, {v(O+4*pr+3)}")
            X(f"buffer_store_dwordx4 {v(O+4*pr,4)}, v18, {s(sWS,4)}, s34 offen offset:{1024*pr} {SC}")
    A(f"s_cmp_eq_u32 {s(sB2)}, 1"); A("s_cbranch_scc1 L_cf1")
    fin_half(A, CV_ACC, CV_ACC + 16)
    A("s_branch L_cf2")
    A.label("L_cf1")
    fin_half(A, CV_ACC + 16, CV_ACC)
    A.label("L_cf2")
    if OPT["CPRIO"]: A("s_setprio 0")
    A("s_add_u32 s38, s38, 32"); ev_set("s38")
    stamp(A, 14)
    A(f"s_lshr_b32 s32, {s(sD)}, 6"); A("s_lshl_b32 s32, s32, 1"); A(f"s_add_u32 s32, s32, {s(sB2)}"); A("s_lshl_b32 s32, s32, 6")
    A(f"s_and_b32 s33, {s(sD)}, 63"); A("s_add_u32 s32, s32, s33"); A("s_lshl_b32 s32, s32, 3"); A(f"s_add_u32 s36, s32, {FL_S}")
    get_v()
    fin_loads(A, sTT, sDT, SC, FX, 20)
    A("s_waitcnt vmcnt(2)")
    stamp(A, 11)
    gflag_store(36)
    A(f"s_lshr_b32 s32, {s(sTT)}, 4"); A(f"s_lshl_b32 s33, {s(sDT)}, 1"); A("s_add_u32 s32, s32, s33"); A("s_lshl_b32 s32, s32, 2")
    A(f"s_and_b32 s40, {s(sWAVE)}, 3"); A("s_add_u32 s32, s32, s40"); A("s_lshl_b32 s32, s32, 7"); A(f"s_add_u32 s36, s32, {FL_S}")
    A(f"s_mov_b64 s[100:101], {s(P_WS,2)}")
    A(f"v_lshrrev_b32 v12, 3, {v(vLANE)}"); A("v_lshlrev_b32 v12, 12, v12"); A(f"v_and_b32 v13, 3, {v(vLANE)}"); A("v_lshl_add_u32 v12, v13, 4, v12")
    A(f"v_bfe_u32 v13, {v(vLANE)}, 2, 1"); A("v_lshl_add_u32 v12, v13, 9, v12")
    A(f"s_lshl_b32 s37, {s(sDT)}, 18"); A("s_lshl_b32 s33, s40, 16"); A("s_add_u32 s37, s37, s33")
    A(f"s_lshr_b32 s33, {s(sTT)}, 3"); A("s_lshl_b32 s33, s33, 10"); A("s_add_u32 s37, s37, s33")
    A(f"s_and_b32 s33, {s(sTT)}, 7"); A("s_lshl_b32 s33, s33, 6"); A("s_add_u32 s37, s37, s33"); A(f"s_add_u32 s37, s37, {WS_S}")
    A("s_lshl_b32 s41, s40, 11"); A(f"s_add_u32 s41, s41, {L_ST}")
    A("s_waitcnt vmcnt(0)")
    for l in final_pre(): A(l)
    if OPT["LATE"] >= 0: ev_wait(EV(R_LATE, 4), 4)
    stamp(A, 15)
    spoll(A, "s36", 16, False, "s")
    stamp(A, 12)
    for i in range(2):
        A(f"s_add_u32 m0, s41, {1024*i}")
        if i: A("s_add_u32 s37, s37, 32768")
        else: A("s_nop 0")
        A(f"buffer_load_dwordx4 v12, {s(sWS,4)}, s37 offen {SC} lds")
    A.label("L_final")
    A("s_waitcnt vmcnt(0) lgkmcnt(0)"); stamp(A, 20); A("s_barrier"); stamp(A, 21)
    final_body()
    stamp(A, 22)
    if Stamp.on: A("s_waitcnt vmcnt(0)"); stamp(A, 23); stamp_flush(A, 0)
    A.label("L_done")
    A("s_endpgm")

def g_addr(base):
    vW = base; vXs = base + 6; T = 40; sMH, sNH = sA, sB2
    A(f"v_bfe_u32 {v(T)}, {v(vLANE)}, 4, 1")
    A(f"v_mul_u32_u24 {v(T)}, {UPOFF}, {v(T)}")
    A(f"v_lshrrev_b32 {v(T+1)}, 5, {v(vLANE)}")
    A(f"v_bfe_u32 {v(T+2)}, {v(vLANE)}, 2, 2")
    A(f"v_lshl_add_u32 {v(T+2)}, {v(T+1)}, 3, {v(T+2)}")
    A(f"v_mul_u32_u24 {v(T+2)}, 192, {v(T+2)}")
    A(f"v_and_b32 {v(T+3)}, 3, {v(vLANE)}")
    A(f"v_lshl_add_u32 {v(T+2)}, {v(T+3)}, 3, {v(T+2)}")
    A(f"s_mul_i32 s32, {s(sMH)}, 96")
    A(f"v_add3_u32 {v(T+4)}, {v(T)}, {v(T+2)}, s32")
    A(f"s_lshl_b32 s33, {s(sNH)}, 5"); A("s_xor_b32 s34, s33, 32"); A("s_mov_b32 s35, 64")
    A(f"s_mul_i32 s36, {s(sNH)}, 3072"); A("s_sub_u32 s37, 3072, s36")
    for sl in range(3):
        for i in range(2):
            A(f"s_add_u32 s38, s{33+sl}, s{36+i}")
            A(f"v_add_u32 {v(vW+2*sl+i)}, s38, {v(T+4)}")
    A(f"v_and_b32 {v(T)}, 31, {v(vLANE)}")
    A(f"v_bfe_u32 {v(T+2)}, {v(vLANE)}, 1, 3")
    A(f"v_xor_b32 {v(T+2)}, {v(T+2)}, {v(T+1)}")
    A(f"v_lshlrev_b32 {v(T+2)}, 4, {v(T+2)}")
    A(f"v_lshl_add_u32 {v(T)}, {v(T)}, 7, {v(T+2)}")
    A(f"v_xor_b32 {v(T)}, s33, {v(T)}")
    A(f"s_lshl_b32 s32, {s(sNH)}, 13"); A(f"s_add_u32 s32, s32, {L_X}")
    for k in range(4):
        A(f"v_xor_b32 {v(T+3)}, {32*k}, {v(T)}")
        A(f"v_add_u32 {v(vXs+k)}, s32, {v(T+3)}")

def kg():
    if OPT["YPRIO"]: A(f"s_setprio {OPT['YPRIO']}")
    mapping2(); mapping3()
    kg4_pre(A)
    g_addr(232)
    A("s_barrier")
    A("s_waitcnt vmcnt(0) lgkmcnt(0)")
    A("s_mov_b64 s[44:45], s[100:101]")
    A(f"s_load_dwordx2 s[6:7], {s(P_WS,2)}, 0")
    stamp(A, 2)
    def hook():
        A(f"s_cmp_eq_u32 {s(sA)}, 1"); A("s_cbranch_scc1 L_k2")
        ev_wait(EV(R_LND, 6), 2)
        A(f"s_lshl_b32 s32, {s(sB)}, 5"); A(f"s_add_u32 s32, s32, {FL_LN}")
        stamp(A, 3)
        gflag_store(32)
        A.label("L_k2")
    PT = [224, 238, 240, 242]
    def hook2():
        A(f"s_cmp_eq_u32 {s(sA)}, 0"); A("s_cbranch_scc1 L_k5")
        S = SLOW; S.label("L_k5")
        if OPT["WTS"]:
            S(f"s_and_b32 s32, {s(sIDX)}, 30"); S("s_cmp_lg_u32 s32, 28"); S("s_cbranch_scc1 L_k3")
            PBs = wd_piece_addr(S, 244, 245)
            S(f"s_and_b32 s34, {s(sIDX)}, 1"); S(f"s_mul_i32 s34, s34, {43*16384}")
            for i in range(OPT["WTS"]):
                S(f"buffer_load_dword v246, v244, {s(sWD,4)}, s34 offen"); S(f"s_add_u32 s34, s34, {PBs}"); S("s_waitcnt vmcnt(1)")
            S("s_waitcnt vmcnt(0)")
        S("s_branch L_k3")
        ev_wait(E_VRDY); get_v()
        WT = OPT["WT"]
        A(f"s_and_b32 s32, {s(sIDX)}, {OPT['PST']}"); A("s_lshl_b32 s32, s32, 5"); A(f"s_add_u32 s32, s32, {EV(OPT['PWAIT']-1)}")
        PB = wd_piece_addr(A, 244, 245)
        A(f"s_and_b32 s34, {s(sIDX)}, 1"); A(f"s_mul_i32 s34, s34, {43*16384}"); A(f"s_lshr_b32 s35, {s(sIDX)}, 1"); A(f"s_mul_i32 s35, s35, {WT*PB}")
        A("s_add_u32 s34, s34, s35"); A(f"s_add_u32 s34, s34, {16*16384}")
        A(f"v_lshlrev_b32 v245, 5, {v(vLANE)}")
        A(f"s_mov_b32 s36, {FL_LN}"); A(f"s_mov_b32 s37, {FL_LN+4096}")
        ev_wait("s32", 2)
        stamp(A, 5)
        for i in range(WT):
            A(f"buffer_load_dword v{246+i}, v244, {s(sWD,4)}, s34 offen")
            if i + 1 < WT: A(f"s_add_u32 s34, s34, {PB}")
        def loads():
            for i in range(4): A(f"buffer_load_dwordx2 {v(PT[i],2)}, v245, {s(sWS,4)}, s{36+i//2} offen offset:{2048*(i%2)} {SC}")
        def test():
            for i in range(4):
                A(f"v_cmp_ne_u64 {'vcc' if i == 0 else 's[38:39]'}, {s(sV,2)}, {v(PT[i],2)}")
                if i: A("s_nop 0"); A("s_or_b64 vcc, vcc, s[38:39]")
        retry_loop(loads, test)
        A(f"s_mov_b32 m0, {E_LNOK}"); ev_dma(0)
        if OPT["UM"]:
            A(f"v_lshrrev_b32 v8, 2, {v(vLANE)}"); A(f"v_mul_u32_u24 v8, {UBLK}, v8")
            A(f"v_and_b32 v9, 3, {v(vLANE)}"); A("v_lshl_add_u32 v8, v9, 4, v8")
            A(f"s_mul_i32 s34, {s(sRT)}, {16*UBLK}"); A(f"s_add_u32 s34, s34, {WS_U+8192}")
            A(f"s_mov_b32 m0, {L_STAT}"); A("s_nop 0")
            A(f"buffer_load_dwordx4 v8, {s(sWS,4)}, s34 offen {SC} lds")
            A(f"s_mov_b32 m0, {E_SRDY}"); ev_dma(0)
            A(f"v_lshrrev_b32 v10, 1, {v(vLANE)}"); A(f"v_mul_u32_u24 v10, {UBLK}, v10")
            A(f"v_lshrrev_b32 v9, 4, {v(vLANE)}"); A(f"v_xor_b32 v9, v9, {v(vLANE)}"); A("v_and_b32 v9, 1, v9"); A("v_lshl_add_u32 v10, v9, 4, v10")
            A(f"s_and_b32 s32, {s(sD)}, 7"); A("s_lshl_b32 s32, s32, 10"); A(f"s_lshr_b32 s33, {s(sD)}, 4"); A("s_lshl_b32 s33, s33, 5")
            A("s_add_u32 s32, s32, s33"); A(f"s_add_u32 s32, s32, {WS_U}")
            for i in range(8):
                A(f"s_mov_b32 m0, {L_U[0] + 1024 + 1024*i}")
                if i: A(f"s_add_u32 s32, s32, {32*UBLK}")
                else: A("s_nop 0")
                A(f"buffer_load_dwordx4 v10, {s(sWS,4)}, s32 offen {SC} lds")
            A(f"s_mov_b32 m0, {E_URDY}"); A("s_mov_b64 exec, 3")
            A(f"buffer_load_dword {v(vOOB)}, {s(sX,4)}, 0 offen lds"); A("s_mov_b64 exec, -1")
        stamp(A, 6)
        A("s_cmp_lg_u32 s2, 0"); A(f"s_cbranch_scc1 L_k3")
        A("s_mov_b32 s33, 0"); gflag_store(33)
        A.label("L_k3")
    kg5_pass(A, sD, 44)
    A(f"v_lshl_add_u32 v8, {v(vLANE)}, 4, {s(sKB)}")
    A(f"s_lshl_b32 s32, {s(sA)}, 2"); A(f"s_add_u32 s32, s32, {E_XRDY}")
    A(f"s_cmp_gt_u32 {s(sWAVE)}, 3"); A("s_cbranch_scc1 L_k6")
    A("s_nop 6")
    for q in range(4): A(f"ds_write_b128 v8, {v(kgen6.ACC+4*q,4)} offset:{1024*q}")
    ev_set("s32")
    A("s_setprio 0")
    for k in range(10): A(f"v_mov_b32 v{4+k}, v{232+k}")
    stamp(A, 17)
    A("s_branch L_gsetup")
    A.label("L_k6")
    stamp(A, 16)
    A(f"s_cmp_lg_u32 {s(sWAVE)}, 6"); A("s_cbranch_scc1 L_k1")
    A("s_waitcnt lgkmcnt(0)")
    A(f"s_add_u32 {s(sV)}, s6, 0x7f4a7c15"); A(f"s_addc_u32 {s(sV+1)}, s7, 0x9e3779b9")
    for i in range(4): A(f"v_mov_b32 v{24+i}, 0")
    A(f"v_lshlrev_b32 v28, 4, {v(vLANE)}"); A(f"v_add_u32 v28, {L_U[0]}, v28"); A("ds_write_b128 v28, v[24:27]")
    A(f"v_mov_b32 v24, {s(sV)}"); A(f"v_mov_b32 v25, {s(sV+1)}"); A(f"v_mov_b32 v28, {L_V}")
    A("s_mov_b64 exec, 1"); A("ds_write_b64 v28, v[24:25]"); A("s_mov_b64 exec, -1")
    ev_set(E_VRDY)
    A.label("L_k1")
    def partial():
        ev_wait("s32")
        for q in range(4): A(f"ds_read_b128 {v(128+4*q,4)}, v8 offset:{1024*q}")
        A("s_waitcnt lgkmcnt(0)")
        for q in range(16): A(f"v_add_f32 {v(kgen6.ACC+q)}, {v(kgen6.ACC+q)}, {v(128+q)}")
    kg5_expand(A, 44, sKB, partial)
    stamp(A, 8)
    if OPT["KW"] == 3:
        ev_wait(EV(R_LND, 6), 2)
        kg4_store(A)
    A("s_setprio 0")
    hook(); hook2()
    if OPT["YPRIO"]: A("s_setprio 0")
    stamp(A, 4)
    conv_setup()
    if OPT["KW"] == 0: ev_wait(EV(15), 2)
    elif OPT["KW"] == 1: ev_wait(E_WD, 2)
    elif OPT["KW"] == 4: ev_wait(EV(15, 4), 4)
    stamp(A, 7)
    if OPT['KW'] != 3: kg4_store(A)
    A(f"s_lshl_b32 s32, {s(sA)}, 2"); A(f"s_add_u32 s32, s32, {E_KRDY}"); ev_set("s32")
    stamp(A, 9)
    A("s_branch L_conv")

LNO = 48
def ln_stores(X):
    sk = X.new("L_ls")
    X(f"s_cmp_lt_u32 {s(sWAVE)}, 2"); X(f"s_cbranch_scc1 {sk}")
    for e in range(4): X(f"buffer_store_dwordx4 {v(LNO+4*e,4)}, v240, {s(sWS,4)}, s66 offen offset:{1024*e} {SC}")
    X("s_mov_b64 exec, s[68:69]")
    X(f"buffer_store_dwordx4 v[236:239], v240, {s(sWS,4)}, s67 offen {SC}")
    ev_dma(32 * R_LND, X)
    X.label(sk)
def ln2():
    Xr, Dd, S_, C = 64, 80, 112, 120
    A(f"v_mov_b32 {v(C)}, 0x3f803f80"); A(f"v_mov_b32 {v(C+1)}, 0x3f80"); A(f"v_mov_b32 {v(C+2)}, 0x3f800000")
    A(f"s_lshl_b32 s32, {s(sA)}, 12"); A(f"s_add_u32 s32, s32, {L_LNX}"); A(f"v_lshl_add_u32 {v(C+3)}, {v(vLANE)}, 4, s32")
    A(f"s_lshl_b32 s32, {s(sA)}, 11"); A(f"s_add_u32 s32, s32, {L_LNX}"); A(f"v_lshl_add_u32 {v(C+4)}, {v(vLANE)}, 4, s32")
    A(f"v_lshrrev_b32 {v(C+5)}, 4, {v(vLANE)}"); A(f"s_lshl_b32 s32, {s(sA)}, 5"); A(f"s_add_u32 s32, s32, {L_LNX+8192}")
    A(f"v_lshl_add_u32 {v(C+5)}, {v(C+5)}, 3, s32")
    A(f"v_lshlrev_b32 v240, 4, {v(vLANE)}"); A(f"v_add_u32 {v(C+6)}, {L_LNX+8192}, v240")
    A(f"s_mul_i32 s67, {s(sB)}, {UBLK}"); A(f"s_add_u32 s67, s67, {WS_U}"); A(f"s_lshl_b32 s66, {s(sA)}, 12"); A("s_add_u32 s66, s66, s67")
    A("s_add_u32 s67, s67, 8192"); A(f"s_cmp_eq_u32 {s(sA)}, 0"); A("s_cselect_b64 s[68:69], 15, 0")
    def red():
        A("s_nop 2")
        for i in range(2): A(f"v_permlane32_swap_b32 {v(S_+i)}, {v(S_+2+i)}")
        for i in range(2): A(f"v_add_f32 {v(S_+i)}, {v(S_+i)}, {v(S_+2+i)}")
        A("s_nop 1"); A(f"v_permlane16_swap_b32 {v(S_)}, {v(S_+1)}"); A(f"v_add_f32 {v(S_)}, {v(S_)}, {v(S_+1)}")
        for k in (8, 4, 2, 1): A("s_nop 1"); A(f"v_add_f32_dpp {v(S_)}, {v(S_)}, {v(S_)} row_ror:{k} row_mask:0xf bank_mask:0xf")
    def rb(r): A(f"v_cvt_pk_bf16_f32 {v(r)}, {v(r)}, {v(r)}"); A(f"v_and_b32 {v(r)}, 0xffff0000, {v(r)}")
    for q in range(4):
        for r in range(4):
            if q == 0: A(f"s_waitcnt vmcnt({3-r})")
            A(f"v_dot2_f32_bf16 {v(S_+r)}, {v(Xr+4*r+q)}, {v(C)}, {'0' if q == 0 else v(S_+r)}")
    red()
    A(f"v_mul_f32 {v(S_+6)}, {fl(1/512)}, {v(S_)}"); A(f"v_mov_b32 {v(S_+4)}, {v(S_+6)}"); rb(S_+4)
    A(f"v_xor_b32 {v(S_+3)}, 0x80000000, {v(S_+4)}"); A(f"v_sub_f32 {v(S_+6)}, {v(S_+6)}, {v(S_+4)}")
    for r in range(4): A(f"v_readlane_b32 s{32+r}, {v(S_+3)}, {16*r}")
    for r in range(4):
        for q in range(4):
            A(f"v_dot2_f32_bf16 {v(Dd+8*r+2*q)}, {v(Xr+4*r+q)}, {v(C+1)}, s{32+r}"); A(f"v_dot2_f32_bf16 {v(Dd+8*r+2*q+1)}, {v(Xr+4*r+q)}, {v(C+2)}, s{32+r}")
    for q in range(4):
        for r in range(4):
            d = v(Dd+8*r+2*q, 2)
            A(f"v_pk_mul_f32 {v(Xr+2*r,2)}, {d}, {d}" if q == 0 else f"v_pk_fma_f32 {v(Xr+2*r,2)}, {d}, {d}, {v(Xr+2*r,2)}")
    for r in range(4): A(f"v_add_f32 {v(S_+r)}, {v(Xr+2*r)}, {v(Xr+2*r+1)}")
    red()
    A(f"v_mul_f32 {v(S_)}, {fl(1/512)}, {v(S_)}"); A(f"v_fma_f32 {v(S_)}, -{v(S_+6)}, {v(S_+6)}, {v(S_)}"); A(f"v_max_f32 {v(S_)}, 0, {v(S_)}")
    rb(S_); A(f"v_add_f32 {v(S_)}, {fl(1e-5)}, {v(S_)}"); rb(S_); A(f"v_sqrt_f32 {v(S_)}, {v(S_)}"); A("s_nop 0"); rb(S_)
    A(f"v_rcp_f32 {v(S_+5)}, {v(S_)}"); A("s_nop 0")
    for r in range(4): A(f"v_readlane_b32 s{32+r}, {v(S_+5)}, {16*r}")
    for r in range(4):
        sel = "op_sel_hi:[1,0]" if r % 2 == 0 else "op_sel:[0,1] op_sel_hi:[1,1]"
        for q in range(4): A(f"v_pk_mul_f32 {v(Dd+8*r+2*q,2)}, {v(Dd+8*r+2*q,2)}, s[{32+(r&2)}:{33+(r&2)}] {sel}")
    for e in range(8):
        for p in range(2): A(f"v_cvt_pk_bf16_f32 {v(Xr+2*e+p)}, {v(Dd+16*p+e)}, {v(Dd+16*p+8+e)}")
        if e % 2: A(f"ds_write_b128 {v(C+3)}, {v(Xr+2*e-2,4)} offset:{512*(e-1)}")
    A("s_mov_b32 exec_lo, 0x10001"); A("s_mov_b32 exec_hi, 0x10001"); A(f"ds_write_b64 {v(C+5)}, {v(S_+4,2)}"); A("s_mov_b64 exec, -1")
    A(f"s_add_u32 s32, s39, {32*R_LNX}"); ev_set("s32")
    ev_wait(EV(R_LNX, 6), 2)
    for e in range(4):
        for p in range(2): A(f"ds_read_b64 {v(LNO+4*e+2*p,2)}, {v(C+4)} offset:{4096*p+1024*(e>>1)+8*(e&1)}")
    A(f"ds_read_b128 v[236:239], {v(C+6)}")
    if OPT["LS"] == 0: A("s_waitcnt lgkmcnt(0)"); A("s_mov_b32 m0, s39"); ln_stores(A)
def gwave():
    vW = 4; vXs = 10; T = 24; ST = 20
    sMH, sNH = sA, sB2
    sTB, sKQ = sA, sB2
    stamp(A, 14)
    if OPT["LNPRIO"]: A("s_setprio 2")
    mapping2(); mapping3()
    A("s_barrier")
    g_addr(4)
    wcol(0, "s39")
    ln2()
    if OPT["LNPRIO"]: A("s_setprio 0")
    stamp(A, 17)
    A.label("L_gsetup")
    A(f"v_lshlrev_b32 v240, 4, {v(vLANE)}")
    A(f"v_lshrrev_b32 {v(T)}, 2, {v(vLANE)}")
    A(f"v_lshrrev_b32 {v(T+1)}, 4, {v(vLANE)}")
    A(f"v_xor_b32 {v(T)}, {v(T)}, {v(T+1)}")
    A(f"v_and_b32 {v(T)}, 1, {v(T)}")
    A(f"v_cmp_eq_u32 vcc, 0, {v(T)}")
    A(f"v_mov_b32 {v(T+1)}, 0x3f803f80")
    wcol(0, "s39")
    for k in range(4): A(f"v_cndmask_b32 {v(G_SEL+k)}, 0, {v(T+1)}, vcc")
    A("s_mov_b32 m0, s39")
    stamp(A, 18)
    ev_addr(EV(0), 2)
    BF = G_F + 40; AF = G_F + 48
    LT = []
    X = LT.append
    X(f"s_lshl_b32 s32, {s(sWAVE)}, 9"); X(f"s_add_u32 s32, s32, {L_CSX}"); X(f"v_lshl_add_u32 v16, {v(vLANE)}, 2, s32")
    X(f"s_xor_b32 s33, {s(sWAVE)}, 2"); X("s_lshl_b32 s33, s33, 9"); X(f"s_add_u32 s33, s33, {L_CSX}"); X(f"v_lshl_add_u32 v17, {v(vLANE)}, 2, s33")
    X(f"v_and_b32 {v(T)}, 31, {v(vLANE)}"); X(f"s_lshl_b32 s33, {s(sNH)}, 9"); X(f"s_add_u32 s33, s33, {L_STAT}"); X(f"v_lshl_add_u32 v19, {v(T)}, 3, s33")
    for k in (2, 3, 6, 7): X(f"v_mov_b32 {v(BF+k)}, 0")
    for sl in range(3): X(f"v_mov_b32 {v(AF+4*sl+2)}, 0"); X(f"v_mov_b32 {v(AF+4*sl+3)}, 0")
    X(f"v_cmp_gt_u32 s[42:43], 32, {v(vLANE)}")
    X("s_mov_b32 s41, 0x07060302")
    X("s_xor_b32 s33, s39, 8"); X(f"s_add_u32 s33, s33, {32*R_CS}"); X("v_mov_b32 v18, s33")
    X(f"v_lshlrev_b32 v37, 4, {v(vLANE)}"); X(f"s_lshl_b32 s32, {s(sNH)}, 10"); X("v_add_u32 v14, s32, v37"); X("v_xor_b32 v15, 1024, v14")
    X(f"s_lshl_b32 s32, {s(sRT)}, 2"); X(f"s_lshl_b32 s33, {s(sNH)}, 1"); X("s_add_u32 s32, s32, s33"); X("s_mul_i32 s32, s32, 86")
    X(f"s_lshl_b32 s36, {s(sFC)}, 1"); X(f"s_add_u32 s36, s36, {s(sMH)}")
    X(f"s_lshl_b32 s37, {s(sRT)}, 1"); X(f"s_add_u32 s37, s37, {s(sNH)}"); X("s_lshl_b32 s37, s37, 5"); X("s_add_u32 s37, s37, s36")
    X("s_cmp_gt_u32 s36, 14\ns_cselect_b32 s33, 2, 0"); X("s_add_u32 s37, s37, s33")
    X("s_lshl_b32 s37, s37, 3"); X(f"s_add_u32 s37, s37, {FL_H}")
    X(f"v_mov_b32 {v(T+12)}, {L_V}")
    X("s_mul_i32 s36, s36, 3"); X("s_add_u32 s32, s32, s36"); X("s_lshl_b32 s32, s32, 10")
    X(f"s_add_u32 s34, s32, {WS_H}"); X(f"s_add_u32 s35, s34, {86*1024}")
    X(f"v_mov_b32 {v(T+2)}, 1.0")
    X(f"s_lshr_b32 s32, {s(sWAVE)}, 1"); X(f"s_lshl_b32 s33, {s(sTT)}, 2"); X("s_add_u32 s32, s32, s33")
    X(f"s_mul_i32 s38, s32, {2*UBLK}"); X(f"s_add_u32 s38, s38, {WS_U + 8192 + 4}")
    X(f"s_lshl_b32 s33, {s(sDT)}, 1"); X(f"s_add_u32 s33, s33, {s(sA)}"); X("s_lshl_b32 s33, s33, 6"); X("s_lshl_b32 s32, s32, 14"); X("s_add_u32 s33, s33, s32")
    X(f"v_and_b32 v42, 15, {v(vLANE)}"); X("v_lshlrev_b32 v42, 10, v42"); X(f"v_and_b32 v43, 48, {v(vLANE)}"); X(f"v_add3_u32 {v(FX+5)}, v42, v43, s33")
    X(f"v_bfe_u32 v42, {v(vLANE)}, 3, 1"); X(f"v_mul_u32_u24 v42, {UBLK}, v42"); X(f"v_and_b32 v43, 7, {v(vLANE)}"); X("v_lshl_add_u32 v3, v43, 3, v42")
    nG1 = len(LT)
    X(f"v_and_b32 v2, 3, {v(vLANE)}"); X("v_lshlrev_b32 v2, 2, v2"); X(f"v_add_u32 v2, {EV(15, 4)}, v2")
    X(f"v_lshlrev_b32 v37, 4, {v(vLANE)}")
    if OPT["PF1"]:
        X(f"s_mov_b32 s33, {E_WD}"); X("v_writelane_b32 v2, s33, 4"); X("s_add_u32 s33, s33, 4"); X("v_writelane_b32 v2, s33, 5")
    t = 42
    X(f"v_bfe_u32 {v(t)}, {v(vLANE)}, 2, 2"); X(f"v_lshrrev_b32 {v(t+1)}, 5, {v(vLANE)}"); X(f"v_lshl_add_u32 {v(t+1)}, {v(t+1)}, 2, {v(t)}")
    X(f"v_lshlrev_b32 {v(t+1)}, 7, {v(t+1)}"); X(f"v_lshrrev_b32 {v(t)}, 1, {v(t)}"); X(f"v_lshlrev_b32 {v(t)}, 6, {v(t)}")
    X(f"v_bfe_u32 {v(t+2)}, {v(vLANE)}, 4, 1"); X(f"v_lshlrev_b32 {v(t+2)}, 5, {v(t+2)}"); X(f"v_and_b32 {v(t+3)}, 3, {v(vLANE)}")
    X(f"v_lshl_add_u32 {v(t+2)}, {v(t+3)}, 3, {v(t+2)}"); X(f"v_add3_u32 {v(t)}, {v(t)}, {v(t+1)}, {v(t+2)}")
    X(f"s_lshl_b32 s32, {s(sKQ)}, 11"); X(f"v_add_u32 {v(vR)}, s32, {v(t)}"); X(f"v_xor_b32 {v(vR+1)}, 64, {v(vR)}")
    X(f"v_add_u32 {v(vR+2)}, 0x10000, {v(vR)}"); X(f"v_add_u32 {v(vR+3)}, 0x10000, {v(vR+1)}")
    X(f"s_lshl_b32 s32, {s(sTT)}, 1"); X(f"s_add_u32 s32, s32, {s(sTB)}"); X("s_mul_i32 s32, s32, 86")
    X(f"s_mul_i32 s33, {s(sKQ)}, 43"); X("s_add_u32 s32, s32, s33"); X("s_lshl_b32 s32, s32, 10"); X(f"s_add_u32 s40, s32, {WS_H}")
    X(f"v_lshrrev_b32 {v(t)}, 3, {v(vLANE)}"); X(f"v_lshlrev_b32 {v(t)}, 10, {v(t)}"); X(f"v_lshrrev_b32 {v(t+1)}, 2, {v(vLANE)}"); X(f"v_and_b32 {v(t+1)}, 4, {v(t+1)}")
    X(f"v_and_b32 {v(t+2)}, 7, {v(vLANE)}"); X(f"v_xor_b32 {v(t+1)}, {v(t+1)}, {v(t+2)}"); X(f"v_lshl_add_u32 v46, {v(t+1)}, 4, {v(t)}")
    X(f"s_mul_i32 s44, {s(sKQ)}, {43*16384}"); X(f"s_lshl_b32 s32, {s(sDT)}, 7"); X("s_add_u32 s44, s44, s32")
    X(f"s_lshl_b32 s32, {s(sTB)}, 13"); X("s_add_u32 s44, s44, s32"); X(f"s_add_u32 s44, s44, {(G2_P-1)*16384}")
    X(f"s_lshl_b32 s45, {s(sKQ)}, 11"); X(f"s_lshl_b32 s32, {s(sTB)}, 10"); X("s_add_u32 s45, s45, s32")
    X(f"s_lshl_b32 s32, {s(sTT)}, 1"); X(f"s_add_u32 s32, s32, {s(sKQ)}"); X("s_lshl_b32 s32, s32, 7"); X(f"s_add_u32 s47, s32, {FL_H}")
    X(f"s_mov_b64 s[100:101], {s(P_WS,2)}")
    A(f"s_cmp_ge_u32 {s(sIDX)}, 30"); A("s_cbranch_scc1 L_spare_g")
    S = SLOW
    S.label("L_spare_g")
    if OPT["LS"]: S("s_waitcnt lgkmcnt(0)"); ln_stores(S)
    for l in LT[nG1:]: S(l)
    ev_wait(E_SRDY, 1, S)
    get_v(S)
    S(f"s_lshl_b32 s37, {s(sB)}, 2"); S(f"s_add_u32 s37, s37, {s(sWAVE)}"); S("s_lshl_b32 s37, s37, 6"); S(f"s_add_u32 s37, s37, 0x20000"); S("s_mov_b32 s36, 0")
    S(f"v_lshl_add_u32 {v(T)}, {v(vLANE)}, 5, s39")
    S("s_mov_b64 exec, 0xffff"); S(f"ds_write_b32 {v(T)}, {v(vZERO)}"); S("s_mov_b64 exec, -1")
    fin_loads(S, sTT, sDT, SC, FX, 10)
    S("s_branch L_e1end")
    def reads(ks):
        st, i = ks // 2, ks % 2
        F = G_F + 20 * (ks % 2); L = []
        wo = L_W + (st % NWS) * WSLOT
        xo = ((ks // 4) % NXS) * XSLOT
        L.append(f"ds_read_b128 {v(F+12,4)}, {v(vXs + ks%4)} offset:{xo}")
        for sl in range(3):
            for h in range(2): L.append(f"ds_read_b64_tr_b16 {v(F+4*sl+2*h,2)}, {v(vW+2*sl+i)} offset:{wo + h*768}")
            if sl == 0: L.append(f"ds_read_b128 {v(F+16,4)}, {v(vXs + ks%4)} offset:{xo+4096}")
        return L
    def split(c, sl):
        a = AF + 4 * sl
        A(f"v_and_b32 {v(T+8)}, 0xffff0000, {v(c)}")
        A(f"v_sub_f32 {v(T+4)}, {v(c)}, {v(T+8)}")
        A(f"v_and_b32 {v(T+9)}, 0xffff0000, {v(T+4)}")
        A(f"v_sub_f32 {v(T+4)}, {v(T+4)}, {v(T+9)}")
        A(f"v_perm_b32 {v(a)}, {v(T+9)}, {v(T+8)}, s41")
        A(f"v_lshrrev_b32 {v(a+1)}, 16, {v(T+4)}")
    def fold(sl, nt):
        acc = v(G_ACC + 16*(2*sl+nt), 16)
        A(f"v_mfma_f32_32x32x16_bf16 {acc}, {v(AF+4*sl,4)}, {v(BF+4*nt,4)}, {acc}")
    ev_wait()
    stamp(A, 2)
    for l in reads(0): A(l)
    for ks in range(32):
        F = G_F + 20 * (ks % 2)
        A(f"s_waitcnt lgkmcnt(0)")
        nxt = reads(ks + 1) if ks < 31 else []
        if ks % 2 == 0 and ks < 30: nxt += [f"v_add_u32 {v(vEV)}, 32, {v(vEV)}", f"ds_read_b32 {v(vET)}, {v(vEV)}"]
        if ks == 30: nxt += [f"v_mov_b32 {v(vEV)}, {E_SRDY}", f"ds_read_b32 {v(vET)}, {v(vEV)}"]
        cs = [0, 2] if ks % 2 == 0 else [0]
        if ks % 2 == 1: A(f"v_cmp_ne_u32 vcc, 0, {v(vET)}")
        def csm(c): A(f"v_mfma_f32_16x16x32_bf16 {v(G_CS+4*c,4)}, {v(G_SEL,4)}, {v(F+4*c,4)}, {'0' if ks == 0 else v(G_CS+4*c,4)}")
        if ks == 31: csm(cs.pop(0))
        n = 0
        for sl in range(3):
            for nt in range(2):
                acc = v(G_ACC + 16*(2*sl+nt), 16)
                A(f"v_mfma_f32_32x32x16_bf16 {acc}, {v(F+4*sl,4)}, {v(F+12+4*nt,4)}, {'0' if ks == 0 else acc}")
                n += 1
                if n == 1 and ks % 2 == 1:
                    ev_dma(32 * (ks // 2))
                    ev_check()
                    if ks < 31: continue
                if ks == 31:
                    if n == 1:
                        for q in range(2): A(f"ds_read_b64 {v(ST+2*q,2)}, v19 offset:{256*q}")
                        A(f"ds_read_b64 {v(T+10,2)}, {v(T+12)}")
                    if n == 2:
                        A(f"ds_write_b32 v16, {v(G_CS)}"); A(f"ds_write_b32 v16, {v(G_CS+8)} offset:256")
                        A(f"s_add_u32 s32, s39, {32*R_CS}"); ev_set("s32")
                    if n == 3: split(G_CS, 0)
                    if n == 4:
                        A("s_waitcnt lgkmcnt(3)")
                        A(f"v_readfirstlane_b32 {s(sV)}, {v(T+10)}"); A(f"v_readfirstlane_b32 {s(sV+1)}, {v(T+11)}")
                    if n in (4, 5):
                        q = n - 4
                        A(f"v_xor_b32 {v(T+8)}, 0x80000000, {v(ST+2*q)}")
                        A(f"v_cndmask_b32 {v(T+8)}, 0, {v(T+8)}, s[42:43]")
                        A(f"v_lshrrev_b32 {v(BF+4*q+1)}, 16, {v(T+8)}")
                        A(f"v_or_b32 {v(BF+4*q)}, {v(T+8)}, {v(BF+4*q+1)}")
                    continue
                for _ in range(3 if (n < 3 or ks % 2 == 1) else 2):
                    if nxt: A(nxt.pop(0))
                if n >= 3 and n < 6 and cs and not (len(cs) < 6 - n): csm(cs.pop(0))
                if n == 6 and ks + 1 == OPT["LS"]: ln_stores(A); continue
                if n == 6 or (n == 5 and ks % 2 == 1):
                    for _ in range(4 if ks < 8 else 3):
                        if LT: A(LT.pop(0))
        assert not nxt and not cs, (ks, nxt, cs)
        if ks in (7, 15, 23): stamp(A, 3 + ks // 8)
    assert not LT
    stamp(A, 6)
    A("s_nop 0")
    fold(0, 0); fold(0, 1)
    for nt in range(2): A(f"v_mul_f32 {v(ST+2*nt)}, {fl(-LOG2E)}, {v(ST+2*nt+1)}")
    A(f"v_mov_b32 {v(vEV)}, v18")
    A(f"buffer_load_dwordx4 {v(FX,4)}, {v(FX+5)}, {s(sX,4)}, 0 offen")
    A(f"buffer_load_dword {v(FX+4)}, v3, {s(sWS,4)}, s38 offen {SC}")
    A("s_cmp_ge_u32 s36, 85"); A("s_cbranch_scc1 L_e1end")
    A("s_nop 3")
    stamp(A, 7)
    def tile(sl, nt, fill, mid=None, mf=(), plain=False):
        a = G_ACC + 16*(2*sl+nt)
        va, off = ((14, 0), (15, 0), (37, 2048))[sl]
        L = [f"v_pk_mul_f32 {v(a+2*k,2)}, {v(a+2*k,2)}, {v(ST+2*nt,2)} op_sel_hi:[1,0]" for k in range(4)]
        L += [f"v_exp_f32 {v(a+k)}, {v(a+k)}" for k in range(8)]
        L += [f"v_pk_add_f32 {v(a+2*k,2)}, {v(a+2*k,2)}, {v(T+2,2)} op_sel_hi:[1,0]" for k in range(4)]
        L += [f"v_rcp_f32 {v(a+k)}, {v(a+k)}" for k in range(8)]
        L += [f"v_pk_mul_f32 {v(a+2*k,2)}, {v(a+2*k,2)}, {v(a+8+2*k,2)}" for k in range(4)]
        L += [f"v_cvt_pk_bf16_f32 {v(a+8+k)}, {v(a+2*k)}, {v(a+2*k+1)}" for k in range(4)]
        if plain:
            L = [f"v_mul_f32 {v(a+k)}, {v(a+k)}, {v(ST+2*nt)}" for k in range(8)] + [f"v_exp_f32 {v(a+k)}, {v(a+k)}" for k in range(8)]
            L += [f"v_add_f32 {v(a+k)}, 1.0, {v(a+k)}" for k in range(8)] + [f"v_rcp_f32 {v(a+k)}, {v(a+k)}" for k in range(8)]
            L += [f"v_mul_f32 {v(a+k)}, {v(a+k)}, {v(a+8+k)}" for k in range(8)]
            L += [f"v_cvt_pk_bf16_f32 {v(a+8+k)}, {v(a+2*k)}, {v(a+2*k+1)}" for k in range(4)]
        mf = list(mf)
        for n, l in enumerate(L):
            if n == 4 and mid: mid()
            A(l)
            if fill and l.startswith(("v_exp", "v_rcp")): A(fill.pop(0))
            if mf and n in (5, 8, 16, 19): fold(*mf.pop(0))
        if not OPT["NOST"]: A(f"buffer_store_dwordx4 {v(a+8,4)}, {v(va)}, {s(sWS,4)}, s{34+nt} offen offset:{off} {SC}")
    tile(0, 0, [f"ds_read_b32 {v(vET)}, {v(vEV)}"])
    A("s_waitcnt lgkmcnt(0)"); A(f"v_cmp_ne_u32 vcc, 0, {v(vET)}"); ev_check()
    A(f"ds_read_b32 {v(T+5)}, v17"); A(f"ds_read_b32 {v(T+6)}, v17 offset:256")
    def folds():
        A("s_waitcnt lgkmcnt(0)")
        split(T+5, 1)
        A(f"v_add_f32 {v(T+6)}, {v(T+6)}, {v(G_CS+8)}")
        split(T+6, 2)
    tile(0, 1, [], mid=folds, mf=[(1, 0), (1, 1), (2, 0), (2, 1)])
    def early():
        A("s_setprio 2"); A(f"s_add_u32 s32, s39, {32*R_EPI}"); ev_set("s32")
    EA = OPT["EA"]; PL = OPT["PL"]
    tile(1, 0, [])
    if EA == 3: early()
    tile(1, 1, [])
    A("s_cmp_ge_u32 s36, 84"); A("s_cbranch_scc1 L_e1end")
    if EA == 2: early()
    tile(2, 0, [], plain=PL >= 2)
    if EA == 1: early()
    tile(2, 1, [f"v_mov_b32 {v(vEV)}, v2", f"ds_read_b32 {v(vET)}, {v(vEV)}"], plain=PL >= 1)
    S.label("L_e1end"); S(f"s_add_u32 s32, s39, {32*R_EPI}"); ev_set("s32", S); S(f"v_mov_b32 {v(vEV)}, v2"); S(f"ds_read_b32 {v(vET)}, {v(vEV)}"); S("s_nop 7"); S("s_branch L_e2end")
    A.label("L_e2end")
    if OPT["GPRIO"]: A("s_setprio 2")
    stamp(A, 8)
    def flagpost(X, lab):
        X(f"s_mov_b64 s[6:7], {s(sV,2)}"); X(f"s_atomic_swap_x2 s[6:7], {s(P_WS,2)}, s37")
        X("s_cmp_lg_u32 s36, 42"); X(f"s_cbranch_scc1 {lab}")
        X("s_add_u32 s37, s37, 16"); X(f"s_mov_b64 s[34:35], {s(sV,2)}"); X(f"s_atomic_swap_x2 s[34:35], {s(P_WS,2)}, s37")
        X.label(lab)
    A("s_mov_b32 s46, 0")
    A("s_waitcnt lgkmcnt(0)"); A(f"v_cmp_ne_u32 vcc, 0, {v(vET)}")
    if OPT["PF1"]:
        A("s_cbranch_vccnz L_ff")
        S.label("L_ff"); S(f"s_add_u32 s32, s39, {32*R_EPI}"); ev_set("s32", S)
        S("s_waitcnt vmcnt(0)"); stamp(S, 9); flagpost(S, "L_f3"); S("s_mov_b32 s46, 1")
        S(f"ds_read_b32 {v(vET)}, {v(vEV)}")
        for q in range(4): S(f"ds_read_b32 v14, {v(vEV)}")
        S("s_waitcnt lgkmcnt(4)"); S(f"v_cmp_ne_u32 vcc, 0, {v(vET)}"); ev_check(S); S("s_branch L_ff2")
        A.label("L_ff2")
        for p in range(G2_P):
            for l in wd_reads(p, PRE[p]): A(l)
        A(f"s_add_u32 s32, s39, {32*R_EPI}"); A(f"v_mov_b32 {v(vET)}, s32"); A("s_mov_b64 exec, 1")
        A(f"ds_write2_b32 {v(vET)}, {v(vZERO)}, {v(vZERO)} offset0:0 offset1:8"); A("s_mov_b64 exec, -1")
        A(f"s_add_u32 s32, s39, {32*R_PULL}"); A("s_xor_b32 s32, s32, 4"); A(f"v_mov_b32 {v(vEV)}, s32")
        stamp(A, 10)
    else:
        ev_check()
        if not EA: A(f"s_add_u32 s32, s39, {32*R_EPI}"); ev_set("s32")
        ev_addr(E_WD, 2)
    nv = 0
    for i in range(G2_P, 43):
        k = i - G2_P
        if k == OPT["FD"]:
            A(f"s_waitcnt vmcnt({nv})")
            A("s_cmp_eq_u32 s46, 1"); A("s_cbranch_scc1 L_f2")
            stamp(A, 9)
            flagpost(A, "L_f2")
        if i == G2_NA:
            A("s_mov_b32 m0, s39"); ev_dma(32 * R_WD2)
            ev_wait_sm()
            if not OPT["PF1"]:
                for p in range(G2_P):
                    for l in wd_reads(p, PRE[p]): A(l)
                A(f"s_add_u32 s32, s39, {32*R_PULL}"); ev_set("s32")
                A("s_xor_b32 s32, s32, 4"); ev_wait_sm("s32")
        if k == OPT["PP"]:
            spoll_issue(A, "s47")
        A(f"s_add_u32 m0, s45, {4096*pslot(i)}")
        A("s_add_u32 s44, s44, 16384")
        A(f"buffer_load_dwordx4 v46, {s(sWD,4)}, s44 offen lds"); nv += 1
    A("s_mov_b32 m0, s39"); ev_dma(32 * R_BL); nv += 1
    for k in range(4): A(f"v_mov_b32 {v(4+k)}, {v(vR+k)}")
    globals()["vR"] = 4
    vH = 8
    A(f"v_lshlrev_b32 {v(vH)}, 4, {v(vLANE)}")
    stamp(A, 11)
    spoll(A, "s47", 15, True, "h")
    if Stamp.on: A("v_writelane_b32 v255, s46, 31")
    stamp(A, 12)
    NH = len(HW)
    def hload(i):
        if i % 4 == 0 and i: A(f"s_add_u32 s40, s40, 4096")
        A(f"buffer_load_dwordx4 {v(HW[i%NH],4)}, {v(vH)}, {s(sWS,4)}, s40 offen offset:{1024*(i%4)} {SC}")
    def mid(row):
        A(f"s_lshl_b32 s33, {s(sKQ)}, 3"); A(f"s_add_u32 s33, s33, {EV(row, 4)}"); ev_wait("s33", 2)
    for i in range(NH): hload(i)
    if OPT["GPRIO"]: A("s_setprio 0")
    FP = final_pre()
    FP += [f"v_and_b32 v10, 31, {v(vLANE)}", f"v_mul_u32_u24 v10, {PROW}, v10", f"v_lshrrev_b32 v11, 5, {v(vLANE)}", "v_lshlrev_b32 v11, 4, v11",
           f"s_mul_i32 s35, {s(sWAVE)}, {32*PROW}", f"s_add_u32 s35, s35, {L_PART}", "v_add3_u32 v10, v10, v11, s35"]
    LA = 3
    lg = []
    for i in range(43):
        F = PRE[i % G2_P]
        nxt = []
        if G2_P <= i + LA < 43:
            if i + LA == G2_P: mid(R_WD2); lg = []
            if i + LA == G2_NA: mid(R_BL); lg = []
            nxt = wd_reads(i + LA, PRE[(i + LA) % G2_P])
        w = f"s_waitcnt vmcnt({min(43, i + NH) - i - 1})"
        if i in lg: w += f" lgkmcnt({len(lg) - 1 - max(n for n, x in enumerate(lg) if x == i)})"
        A(w)
        lg += [i + LA] * len(nxt)
        for dt in range(2):
            acc = v(G2_ACC + 16*dt, 16)
            if not OPT["NOMF"]: A(f"v_mfma_f32_32x32x16_bf16 {acc}, {v(F+4*dt,4)}, {v(HW[i%NH],4)}, {'0' if i == 0 else acc}")
            for _ in range(2):
                if nxt: A(nxt.pop(0))
                elif FP and i < 13:
                    A(FP.pop(0))
                    if FP: A(FP.pop(0))
            if i == 40 and dt == 0: ev_addr(EV(R_XR, 4), 4); A(f"ds_read_b32 {v(vET)}, {v(vEV)}"); lg.append(42)
            if i == 42 and dt == 0: A(f"v_cmp_ne_u32 vcc, 0, {v(vET)}")
        if i == OPT["LATE"]: lg.append(-1)
        if Stamp.on and Stamp.only is None and i in (0, 14, 28): stamp(A, {0: 15, 14: 16, 28: 19}[i]); lg = []
        if i + NH < 43: hload(i + NH)
        if i == OPT["LATE"]:
            A(f"s_add_u32 s33, s39, {32*R_LATE}"); ev_set("s33")
    stamp(A, 13)
    assert not FP
    ev_check()
    A("s_nop 7")
    for dt in range(2):
        for q in range(4): A(f"ds_write_b128 v10, {v(G2_ACC+16*dt+4*q,4)} offset:{128*dt+32*q}")
    A("s_branch L_final")

if Stamp.on: A("v_mov_b32 v255, 0"); stamp(A, 0)
A("s_load_dwordx16 s[64:79], s[0:1], 0")
A("s_load_dwordx16 s[80:95], s[0:1], 64")
A("s_cmp_ge_u32 s2, 256"); A("s_cbranch_scc1 L_done")
A("s_getpc_b64 s[32:33]"); A.label("L_pcref")
A(f"s_lshr_b32 {s(sIDX)}, s2, 3")
A(f"s_lshl_b32 s34, {s(sIDX)}, 11")
A("v_lshl_add_u32 v2, v0, 2, s34")
A("v_min_u32 v2, L_codeend-L_pcref-4, v2")
A("global_load_dword v242, v2, s[32:33]")
A("v_lshrrev_b32 v2, 6, v0")
A(f"v_and_b32 {v(vLANE)}, 63, v0")
A(f"v_readfirstlane_b32 {s(sWAVE)}, v2")
A("v_and_b32 v2, 255, v0"); A("v_lshlrev_b32 v2, 2, v2"); A(f"v_add_u32 v2, {L_CTL}, v2"); A("v_mov_b32 v3, 1"); A("ds_write_b32 v2, v3")
A(f"s_and_b32 {s(sXCD)}, s2, 7")
A(f"s_lshl_b32 {s(sB)}, {s(sXCD)}, 5"); A(f"s_add_u32 {s(sB)}, {s(sB)}, {s(sIDX)}")
A(f"s_and_b32 {s(sA)}, {s(sWAVE)}, 1")
A(f"s_and_b32 s34, {s(sIDX)}, 3"); A("s_lshl_b32 s34, s34, 1"); A(f"s_add_u32 s34, s34, {s(sA)}")
A(f"s_lshl_b32 s35, {s(sXCD)}, 3"); A("s_add_u32 s34, s34, s35"); A("s_lshl_b32 s34, s34, 3")
A(f"s_lshr_b32 s35, {s(sIDX)}, 2"); A(f"s_add_u32 {s(sD)}, s34, s35")
A(f"s_lshr_b32 s36, {s(sWAVE)}, 1"); A("s_cmp_eq_u32 s36, 2"); A("s_cbranch_scc1 L_ld")
A(f"s_lshl_b32 s34, {s(sD)}, 8"); A(f"s_lshl_b32 s35, {s(sWAVE)}, 5"); A("s_and_b32 s35, s35, 128"); A("s_add_u32 s34, s34, s35")
A(f"v_and_b32 v3, 31, v0"); A(f"v_lshl_add_u32 v3, v3, 2, s34")
A(f"s_lshr_b32 s35, {s(sD)}, 1"); A("s_lshl_b32 s35, s35, 2")
A(f"s_lshl_b32 s34, {s(sB)}, 1"); A(f"s_add_u32 s34, s34, {s(sA)}"); A("s_lshl_b32 s34, s34, 12"); A(f"v_lshl_add_u32 v2, {v(vLANE)}, 4, s34")
A("s_waitcnt lgkmcnt(0)")
stamp(A, 1)
A(f"s_cmp_eq_u32 s36, 1"); A("s_cbranch_scc1 L_e1")
A(f"s_load_dword s100, {s(P_LDT,2)}, s35")
A(f"s_load_dword s101, {s(P_DSK,2)}, s35")
for i, p in enumerate((P_ARE, P_AIM, P_BRE, P_BIM, P_CRE, P_CIM)): A(f"global_load_dword {v(PRM4+i)}, v3, {s(p,2)}")
A("s_branch L_kg")
A.label("L_e1")
for r in range(4): A(f"global_load_dwordx4 {v(64+4*r,4)}, v2, {s(P_X,2)} offset:{r*1024}")
A("s_branch L_g")
A.label("L_ld")
loader(); h_common()
A.label("L_stub")
A(f"s_sleep {OPT['SLP']}")
A(f"ds_read_b32 {v(vET)}, {v(vEV)}"); A("s_waitcnt lgkmcnt(0)"); A(f"v_cmp_ne_u32 vcc, 0, {v(vET)}")
A("s_cbranch_vccnz L_stub"); A("s_setpc_b64 s[62:63]")
A(".p2align 6"); A.label("L_kg"); kg()
A(".p2align 6"); A.label("L_g"); gwave()
lines = A.lines + ["    .p2align 6"] + SLOW.lines + ["L_codeend:"]
if OPT["ALIGN"]:
    lines, npm, nn = align8([KNAME + ":"] + lines); lines = lines[1:]; print("align: promoted", npm, "nops", nn)
body = "\n".join(lines) + "\n"
out = HDR + f"; @launch grid=(256,1,1) block=(512,1,1) lds={LDS_TOTAL}\n"
out += f'.amdgcn_target "amdgcn-amd-amdhsa--gfx950"\n.text\n.globl {KNAME}\n.p2align 8\n.type {KNAME},@function\n{KNAME}:\n' + body
out += f""".section .rodata,"a"
.p2align 6
.amdhsa_kernel {KNAME}
  .amdhsa_next_free_vgpr 256
  .amdhsa_next_free_sgpr 102
  .amdhsa_accum_offset 256
  .amdhsa_group_segment_fixed_size 0
  .amdhsa_kernarg_size 128
  .amdhsa_user_sgpr_count 2
  .amdhsa_user_sgpr_kernarg_segment_ptr 1
  .amdhsa_system_sgpr_workgroup_id_x 1
.end_amdhsa_kernel
"""
open(sys.argv[1], "w").write(out)
print("hazards:", check(body))
```
